```python
import torch

def _softmax(x, axis=-1):
    return torch.softmax(x, dim=axis)
def _gelu(x):
    return torch.nn.functional.gelu(x, approximate="tanh")
def _silu(x):
    return torch.nn.functional.silu(x)
def _sigmoid(x):
    return torch.sigmoid(x)
def _layernorm(x, axis=-1, eps=1e-5):
    m = x.mean(dim=axis, keepdim=True)
    v = x.var(dim=axis, keepdim=True, unbiased=False)
    return (x - m) / torch.sqrt(v + eps)
def _scatter_add(tgt, idx, src, axis=0):
    return tgt.clone().index_add_(axis, idx, src)
def _segment_sum(src, seg, n):
    out = torch.zeros((n,) + src.shape[1:], dtype=src.dtype)
    return out.index_add_(0, seg, src)
def _pad(x, pw):
    flat = tuple(v for pair in reversed(pw) for v in pair)
    return torch.nn.functional.pad(x, flat)

kernel_name = 'standalone__gqa_block_cached__near_ridge'

def setup_inputs():

    _w = (lambda a: (lambda t: t.to(torch.bfloat16) if t.is_floating_point() else t)(torch.as_tensor(a)))
    B, Sq, D = 16, 80, 576
    Hq, Hkv, Sk, Dh = 32, 16, 512, 128
    assert Hq % Hkv == 0, (Hq, Hkv)
    return {
        "x": _w((lambda *s: torch.randn(*s, dtype=torch.bfloat16) * 0.8)(B, Sq, D)),
        "k_cache": _w((lambda *s: torch.randn(*s, dtype=torch.bfloat16) * 0.8)(B, Hkv, Sk, Dh)),
        "v_cache": _w((lambda *s: torch.randn(*s, dtype=torch.bfloat16) * 0.05)(B, Hkv, Sk, Dh)),
        "wq": _w((lambda *s: torch.randn(*s, dtype=torch.bfloat16) * 0.8)(D, Hq * Dh) * (D ** -0.5)),
        "wo": _w((lambda *s: torch.randn(*s, dtype=torch.bfloat16) * 0.05)(Hq * Dh, D) * ((Hq * Dh) ** -0.5)),
    }

def reference(x, k_cache, v_cache, wq, wo):
    B, Sq, D = x.shape
    Hq, Dh = 32, 128
    Hkv = k_cache.shape[1]
    rep = Hq // Hkv
    q = (lambda x, *d: x.permute(*d))((x @ wq).reshape(B, Sq, Hq, Dh), 0, 2, 1, 3)
    k = (lambda x, n, axis: torch.repeat_interleave(x, n, dim=axis))(k_cache, rep, axis=1)
    v = (lambda x, n, axis: torch.repeat_interleave(x, n, dim=axis))(v_cache, rep, axis=1)
    scores = torch.einsum("bhqd,bhkd->bhqk", q, k) * (Dh ** -0.5)
    p = _softmax(scores, axis=-1)
    o = torch.einsum("bhqk,bhkd->bhqd", p, v)
    return (lambda x, *d: x.permute(*d))(o, 0, 2, 1, 3).reshape(B, Sq, Hq * Dh) @ wo
```

```python
KN = "standalone__gqa_block_cached__near_ridge"
HEADER = """; Kernarg layout for this problem (64 bytes, ptrs only, base s[0:1]):
;
"""
def v(i, n=1): return f"v{i}" if n == 1 else f"v[{i}:{i+n-1}]"
def a(i, n=1): return f"a{i}" if n == 1 else f"a[{i}:{i+n-1}]"
def s(i, n=1): return f"s{i}" if n == 1 else f"s[{i}:{i+n-1}]"

class Asm:
    def __init__(self): self.L = []; self.uid = 0
    def __call__(self, txt):
        for ln in txt.split("\n"):
            ln = ln.strip()
            if ln: self.L.append(ln if ln.endswith(":") else "    " + ln)
    def label(self, base="L"):
        self.uid += 1; return f"{base}_{self.uid}"
    def text(self): return "\n".join(self.L) + "\n"

def kernel_begin(name):
    return f".globl {name}\n.p2align 8\n.type {name},@function\n{name}:\n"
def kd(name, vgpr, agpr=0, sgpr=102):
    acc = (vgpr + 3) // 4 * 4
    nfv = acc + agpr if agpr else vgpr
    return f""".p2align 6
.amdhsa_kernel {name}
  .amdhsa_next_free_vgpr {nfv}
  .amdhsa_next_free_sgpr {sgpr}
  .amdhsa_accum_offset {acc}
  .amdhsa_group_segment_fixed_size 0
  .amdhsa_kernarg_size 64
  .amdhsa_user_sgpr_count 2
  .amdhsa_user_sgpr_kernarg_segment_ptr 1
  .amdhsa_system_sgpr_workgroup_id_x 1
.end_amdhsa_kernel
"""
def build(launches, kernels):
    out = HEADER
    if len(launches) == 1 and launches[0][0] == KN + "_kernel":
        n, g, b, l = launches[0]
        out += f"; @launch grid=({g},1,1) block=({b},1,1) lds={l}\n"
    else:
        for n, g, b, l in launches:
            out += f"; @launch kernel={n} grid=({g},1,1) block=({b},1,1) lds={l}\n"
    out += '.amdgcn_target "amdgcn-amd-amdhsa--gfx950"\n.text\n'
    for n, body, vg, ag in kernels:
        out += kernel_begin(n) + body
    out += '.section .rodata,"a"\n'
    for n, body, vg, ag in kernels:
        out += kd(n, vg, ag)
    return out
```

```python
import sys, math, struct
from asmlib import *
QSCALE = struct.unpack("<I", struct.pack("<f", math.log2(math.e) / math.sqrt(128.0)))[0]
QOFF = 0
OOFF = 1280 * 4096 * 2

def srd(A, d, base, nbytes, add=0):
    if add:
        A(f"s_add_u32 s{d}, s{base}, {add}\ns_addc_u32 s{d+1}, s{base+1}, 0")
    else:
        A(f"s_mov_b32 s{d}, s{base}\ns_mov_b32 s{d+1}, s{base+1}")
    A(f"s_mov_b32 s{d+2}, {nbytes}\ns_mov_b32 s{d+3}, 0x20000")

def gemm(name, nwg, ncg_per_row, a_slot, a_add, a_bytes, lda, w_slot, w_bytes, ldw, o_slot, o_add, o_bytes, ldo, ksteps, scale):
    A = Asm()
    A(f"s_cmp_ge_u32 s2, {nwg}\ns_cbranch_scc1 {name}_end")
    A(f"s_load_dwordx2 s[4:5], s[0:1], {a_slot*8}\ns_load_dwordx2 s[6:7], s[0:1], {w_slot*8}\ns_load_dwordx2 s[20:21], s[0:1], {o_slot*8}")
    magic = (2**32 + ncg_per_row - 1) // ncg_per_row
    A(f"s_mov_b32 s22, {magic}\ns_mul_hi_u32 s23, s2, s22\ns_mul_i32 s24, s23, {ncg_per_row}\ns_sub_u32 s24, s2, s24")
    A("s_waitcnt lgkmcnt(0)")
    srd(A, 8, 4, a_bytes, a_add); srd(A, 12, 6, w_bytes); srd(A, 16, 20, o_bytes, o_add)
    A(f"""v_and_b32 v1, 15, v0
    v_lshrrev_b32 v2, 4, v0
    s_lshl_b32 s25, s23, 4
    v_add_u32 v3, s25, v1
    s_mov_b32 s26, {lda}
    v_mul_lo_u32 v4, s26, v3
    v_lshl_add_u32 v4, v2, 4, v4
    s_mov_b32 s26, {ldw*8}
    v_mul_lo_u32 v5, s26, v2
    v_lshl_add_u32 v5, v1, 3, v5
    s_lshl_b32 s27, s24, 7
    v_add_u32 v5, s27, v5
    s_mov_b32 s26, {ldo}
    v_mul_lo_u32 v6, s26, v3
    v_lshl_add_u32 v6, v2, 5, v6
    v_add_u32 v6, s27, v6
    s_mov_b32 s28, 0x05040100
    s_mov_b32 s29, 0x07060302
    s_mov_b32 s30, 0
    s_mov_b32 s31, 0
    s_mov_b32 s32, 0""")
    for i in range(16): A(f"v_mov_b32 v{64+i}, 0")
    A(f"{name}_loop:")
    A("buffer_load_dwordx4 v[8:11], v4, s[8:11], s31 offen")
    for j in range(8):
        A(f"s_add_u32 s33, s32, {j*ldw}")
        A(f"buffer_load_dwordx2 v[{16+2*j}:{17+2*j}], v5, s[12:15], s33 offen")
    A("s_waitcnt vmcnt(0)")
    for t in range(4):
        for i in range(4):
            A(f"v_perm_b32 v{32+4*t+i}, v{16+2*(2*i+1)+(t>>1)}, v{16+2*(2*i)+(t>>1)}, s{28+(t&1)}")
    A("s_nop 1")
    for t in range(4):
        A(f"v_mfma_f32_16x16x32_bf16 v[{64+4*t}:{67+4*t}], v[{32+4*t}:{35+4*t}], v[8:11], v[{64+4*t}:{67+4*t}]")
    A(f"""s_add_u32 s31, s31, 64
    s_add_u32 s32, s32, {32*ldw}
    s_add_u32 s30, s30, 1
    s_cmp_lt_u32 s30, {ksteps}
    s_cbranch_scc1 {name}_loop
    s_nop 15""")
    if scale:
        A(f"s_mov_b32 s26, {scale}")
        for i in range(16): A(f"v_mul_f32 v{64+i}, s26, v{64+i}")
    for r in range(4):
        A(f"v_cvt_pk_bf16_f32 v{40+2*r}, v{64+r}, v{68+r}")
        A(f"v_cvt_pk_bf16_f32 v{41+2*r}, v{72+r}, v{76+r}")
    A("buffer_store_dwordx4 v[40:43], v6, s[16:19], 0 offen\nbuffer_store_dwordx4 v[44:47], v6, s[16:19], 0 offen offset:16")
    A(f"{name}_end:\ns_endpgm")
    return A.text()

def attn(name):
    A = Asm()
    A(f"s_cmp_ge_u32 s2, 2560\ns_cbranch_scc1 {name}_end")
    A("s_load_dwordx4 s[4:7], s[0:1], 8\ns_load_dwordx2 s[20:21], s[0:1], 56")
    magic = (2**32 + 4) // 5
    A(f"""s_mov_b32 s22, {magic}
    s_mul_hi_u32 s23, s2, s22
    s_mul_i32 s24, s23, 5
    s_sub_u32 s24, s2, s24
    s_and_b32 s25, s23, 31
    s_lshr_b32 s26, s23, 5
    s_lshr_b32 s27, s23, 1
    s_lshl_b32 s27, s27, 17
    s_waitcnt lgkmcnt(0)""")
    srd(A, 8, 4, 33554432); srd(A, 12, 6, 33554432); srd(A, 16, 20, 1280*4096*2, QOFF); srd(A, 36, 20, 1280*4096*2, OOFF)
    A(f"""v_and_b32 v1, 15, v0
    v_lshrrev_b32 v2, 4, v0
    s_mul_i32 s28, s26, 80
    s_lshl_b32 s29, s24, 4
    s_add_u32 s28, s28, s29
    v_add_u32 v3, s28, v1
    v_lshlrev_b32 v3, 13, v3
    s_lshl_b32 s29, s25, 8
    v_add_u32 v3, s29, v3
    v_lshl_add_u32 v4, v2, 4, v3
    v_lshl_add_u32 v7, v2, 6, v3
    v_lshlrev_b32 v5, 8, v1
    v_lshl_add_u32 v5, v2, 4, v5
    v_lshlrev_b32 v6, 10, v2
    v_lshl_add_u32 v6, v1, 4, v6
    s_mov_b32 s30, 0x05040100
    s_mov_b32 s31, 0x07060302""")
    for sx in range(4): A(f"buffer_load_dwordx4 v[{8+4*sx}:{11+4*sx}], v4, s[16:19], 0 offen offset:{sx*64}")
    S = 128
    for kt in range(32):
        A(f"s_add_u32 s33, s27, {kt*4096}")
        for sx in range(4): A(f"buffer_load_dwordx4 v[{24+4*sx}:{27+4*sx}], v5, s[8:11], s33 offen offset:{sx*64}")
        A("s_waitcnt vmcnt(0)")
        for sx in range(4):
            c = "0" if sx == 0 else f"v[{S+4*kt}:{S+4*kt+3}]"
            A(f"v_mfma_f32_16x16x32_bf16 v[{S+4*kt}:{S+4*kt+3}], v[{24+4*sx}:{27+4*sx}], v[{8+4*sx}:{11+4*sx}], {c}")
        A("s_nop 7")
    A("s_nop 7")
    A(f"v_max_f32 v8, v{S}, v{S+1}")
    for i in range(1, 64): A(f"v_max3_f32 v8, v8, v{S+2*i}, v{S+2*i+1}")
    A("""v_mov_b32 v9, v8
    s_nop 1
    v_permlane32_swap_b32 v8, v9
    s_nop 1
    v_max_f32 v8, v8, v9
    v_mov_b32 v9, v8
    s_nop 1
    v_permlane16_swap_b32 v8, v9
    s_nop 1
    v_max_f32 v8, v8, v9""")
    for i in range(128):
        A(f"v_sub_f32 v{S+i}, v{S+i}, v8\nv_exp_f32 v{S+i}, v{S+i}")
    A("s_nop 1")
    for i in range(64): A(f"v_cvt_pk_bf16_f32 v{S+i}, v{S+2*i}, v{S+2*i+1}")
    O = 88
    for i in range(36): A(f"v_mov_b32 v{O+i}, 0")
    for i in range(4): A(f"v_mov_b32 v{12+i}, 0x3f803f80")
    for kb in range(16):
        for j in range(8):
            A(f"s_add_u32 s33, s27, {(kb*32 + (j&3) + (j>>2)*16)*256}")
            A(f"buffer_load_dwordx4 v[{16+4*j}:{19+4*j}], v6, s[12:15], s33 offen")
        A("s_waitcnt vmcnt(0)")
        for t in range(8):
            for i in range(4):
                A(f"v_perm_b32 v{48+4*t+i}, v{16+4*(2*i+1)+(t>>1)}, v{16+4*(2*i)+(t>>1)}, s{30+(t&1)}")
        A("s_nop 1")
        for t in range(8):
            A(f"v_mfma_f32_16x16x32_bf16 v[{O+4*t}:{O+4*t+3}], v[{48+4*t}:{51+4*t}], v[{S+4*kb}:{S+4*kb+3}], v[{O+4*t}:{O+4*t+3}]")
        A(f"v_mfma_f32_16x16x32_bf16 v[{O+32}:{O+35}], v[12:15], v[{S+4*kb}:{S+4*kb+3}], v[{O+32}:{O+35}]")
    A(f"s_nop 15\nv_rcp_f32 v8, v{O+32}\ns_nop 1")
    for i in range(32): A(f"v_mul_f32 v{O+i}, v8, v{O+i}")
    for r in range(4):
        for p in range(4): A(f"v_cvt_pk_bf16_f32 v{16+4*r+p}, v{O+4*(2*p)+r}, v{O+4*(2*p+1)+r}")
    for r in range(4): A(f"buffer_store_dwordx4 v[{16+4*r}:{19+4*r}], v7, s[36:39], 0 offen offset:{16*r}")
    A(f"{name}_end:\ns_endpgm")
    return A.text()

def naive_parts():
    k1 = gemm("nq", 80*64, 64, 0, 0, 1280*1152, 1152, 3, 576*8192, 8192, 7, QOFF, 1280*8192, 8192, 18, QSCALE)
    k2 = attn("na")
    k3 = gemm("no", 80*9, 9, 7, OOFF, 1280*8192, 8192, 4, 4096*1152, 1152, 5, 0, 1280*1152, 1152, 128, 0)
    launches = [("nq_kernel", 80*64, 64, 0), ("na_kernel", 2560, 64, 0), ("no_kernel", 720, 64, 0)]
    kernels = [("nq_kernel", k1, 80, 0), ("na_kernel", k2, 256, 0), ("no_kernel", k3, 80, 0)]
    return launches, kernels

if __name__ == "__main__":
    l, k = naive_parts()
    open(sys.argv[1], "w").write(build(l, k))
```

```python
import re
REG = re.compile(r"\b([vas])(?:(\d+)|\[(\d+):(\d+)\])")
TRANS = ("v_exp_", "v_log_", "v_rcp_", "v_rsq_", "v_sqrt_", "v_sin_", "v_cos_")

def regs(tok):
    out = set()
    for m in REG.finditer(tok):
        lo = int(m.group(2) if m.group(2) is not None else m.group(3)); hi = int(m.group(2) if m.group(2) is not None else m.group(4))
        out |= {(m.group(1), i) for i in range(lo, hi + 1)}
    if re.search(r"\bvcc\b", tok): out |= {("s", "vcc")}
    if re.search(r"\bexec(_lo|_hi)?\b", tok): out |= {("s", "exec")}
    if re.search(r"\bm0\b", tok): out |= {("s", "m0")}
    return out

class I:
    def __init__(self, txt):
        self.txt = txt.strip(); t = self.txt.split(";")[0].strip()
        p = t.split(None, 1); self.op = p[0]; rest = p[1] if len(p) > 1 else ""
        ops = [x.strip() for x in re.split(r",(?![^\[]*\])", rest)] if rest else []
        self.ops = ops; op = self.op
        self.mfma = op.startswith("v_mfma"); self.valu = op.startswith("v_") and not self.mfma
        self.ds = op.startswith("ds_"); self.vmem = op.startswith(("buffer_", "global_")); self.salu = op.startswith("s_")
        self.trans = op.startswith(TRANS); self.lds_dma = self.vmem and (" lds" in t or "_lds_" in op)
        self.w = set(); self.r = set(); self.srcc = set(); self.sdata = set()
        if self.mfma:
            self.w = regs(ops[0]); self.r = regs(ops[1]) | regs(ops[2]); self.srcc = regs(ops[3]); self.passes = 8 if "32x32" in op else 4
        elif self.valu:
            self.w = regs(ops[0]); self.r = set().union(*[regs(o) for o in ops[1:]]) if len(ops) > 1 else set()
            if "permlane" in op and "swap" in op: self.w |= regs(ops[1]); self.r |= regs(ops[0])
            if op.startswith(("v_fmac", "v_pk_fmac")): self.r |= regs(ops[0])
            if "_co_" in op: self.w |= regs(ops[1])
        elif self.ds:
            if op.startswith("ds_read"): self.w = regs(ops[0]); self.r = regs(ops[1])
            else: self.r = set().union(*[regs(o) for o in ops])
        elif self.vmem:
            if op in ("buffer_wbl2", "buffer_inv"): pass
            elif self.lds_dma: self.r = set().union(*[regs(o) for o in ops]) | {("s", "m0")}
            elif "load" in op: self.w = regs(ops[0]); self.r = set().union(*[regs(o) for o in ops[1:]])
            else:
                self.r = set().union(*[regs(o) for o in ops])
                if "x4" in op or "x3" in op: self.sdata = regs(ops[0] if op.startswith("buffer") else ops[1])
        elif self.salu:
            if op.startswith(("s_cmp", "s_bitcmp", "s_cbranch", "s_branch", "s_waitcnt", "s_nop", "s_barrier", "s_sleep", "s_setprio", "s_endpgm")):
                self.r = set().union(*[regs(o) for o in ops]) if ops and not op.startswith(("s_cbranch", "s_branch", "s_waitcnt")) else set()
            else:
                self.w = regs(ops[0]); self.r = set().union(*[regs(o) for o in ops[1:]]) if len(ops) > 1 else set()
                if "saveexec" in op: self.w |= {("s", "exec")}
        self.states = int(ops[0]) + 1 if op == "s_nop" else 1

def need(p, c):
    n = 0
    vw = {x for x in p.w if x[0] in "va"}; sw = {x for x in p.w if x[0] == "s"}
    if p.mfma:
        k = p.passes
        if c.mfma:
            if vw & c.r: n = max(n, 8 if k == 4 else 12)
            if vw & c.srcc and not (c.srcc == p.w and c.passes == k): n = max(n, 6 if k == 4 else 10)
            if vw & c.w and c.srcc != p.w: n = max(n, 6 if k == 4 else 10)
        elif c.valu or c.ds or c.vmem:
            if vw & (c.r | c.w): n = max(n, 8 if k == 4 else 12)
            if (c.valu or c.ds or c.vmem) and p.srcc & c.w: n = max(n, 3 if k == 4 else 7)
    if p.valu:
        if c.mfma and vw & (c.r | c.srcc): n = max(n, 2)
        if c.mfma and ("s", "exec") in sw: n = max(n, 4)
        if p.trans and (c.valu or c.ds or c.vmem) and not c.trans and vw & c.r: n = max(n, 1)
        if p.trans and c.trans and vw & c.r: n = max(n, 1)
        if "permlane" in c.op and vw & c.r: n = max(n, 2)
        if "_dpp" in c.op and vw & c.r: n = max(n, 2)
        if c.op.startswith(("v_readlane", "v_readfirstlane")) and vw & c.r: n = max(n, 1)
        if c.vmem and sw & c.r: n = max(n, 5)
        if c.valu and sw & c.r: n = max(n, 2)
    if p.salu and ("s", "m0") in p.w and c.lds_dma: n = max(n, 1)
    if p.sdata and p.sdata & c.w: n = max(n, 2)
    return n

def check(lines, name=""):
    ins = [I(l) for l in lines if l.strip() and not l.strip().endswith(":") and not l.strip().startswith((";", "."))]
    bad = 0
    for j, c in enumerate(ins):
        dist = 0
        for i in range(j - 1, max(-1, j - 24), -1):
            p = ins[i]; n = need(p, c)
            if n > dist:
                print(f"HAZARD {name}: need {n} have {dist}:\n   {p.txt}\n   {c.txt}"); bad += 1
            dist += p.states
    vm = []; lg = []
    for c in ins:
        if c.op == "s_waitcnt":
            m = re.search(r"vmcnt\((\d+)\)", c.txt)
            if m: n = int(m.group(1)); assert n <= 63, c.txt; vm = vm[len(vm) - n:] if n < len(vm) else vm; vm = vm if n else []
            m = re.search(r"lgkmcnt\((\d+)\)", c.txt)
            if m:
                n = int(m.group(1)); assert n <= 15, c.txt
                if n and any(x.salu for x in lg): pass
                else: lg = lg[len(lg) - n:] if n < len(lg) else lg; lg = lg if n else []
            continue
        for q in vm + lg:
            if q.w & (c.r | c.srcc | c.w) and not (q.ds and c.ds and not (q.w & c.r)) and not (q.vmem and c.vmem and not (q.w & c.r)):
                print(f"UNWAITED {name}:\n   {q.txt}\n   {c.txt}"); bad += 1
        if c.vmem: vm.append(c)
        if c.ds or c.op.startswith(("s_load", "s_memtime", "s_memrealtime")): lg.append(c)
    return bad

def fix(lines):
    L = list(lines); forced = 0
    def isins(l):
        t = l.strip(); return t and not t.endswith(":") and not t.startswith((";", "."))
    cache = {}
    def parse(l):
        if l not in cache: cache[l] = I(l)
        return cache[l]
    j = 0
    while j < len(L):
        if not isins(L[j]): j += 1; continue
        c = parse(L[j]); dist = 0; i = j - 1; seen = 0; idles = []; redo = False
        while i >= 0 and seen < 24:
            if L[i].strip() in (";idle", ";sfree"): idles.append(i)
            elif isins(L[i]):
                p = parse(L[i]); n = need(p, c)
                if n > dist:
                    k = n - dist
                    for x in idles[:k]: L[x] = "    s_nop 0"
                    k -= min(k, len(idles))
                    if k: L.insert(j, f"    s_nop {k-1}"); forced += k
                    redo = True; break
                dist += p.states; seen += 1
            i -= 1
        if not redo: j += 1
    return [l for l in L if l.strip() not in (";idle", ";sfree")], forced

def autowait(lines):
    L = list(lines); lg = []; paid = 0
    def isins(l):
        t = l.strip(); return t and not t.endswith(":") and not t.startswith((";", "."))
    j = 0
    while j < len(L):
        if not isins(L[j]): j += 1; continue
        c = I(L[j])
        if c.op == "s_waitcnt":
            m = re.search(r"lgkmcnt\((\d+)\)", c.txt)
            if m:
                n = int(m.group(1)); lg = lg[len(lg) - n:] if 0 < n < len(lg) else ([] if n == 0 else lg)
            j += 1; continue
        hit = [k for k, (q, pos) in enumerate(lg) if q.w & (c.r | c.srcc | c.w) and not (c.ds and not (q.w & c.r))]
        if hit:
            k = max(hit); i = j - 1; slot = None
            while i > lg[k][1]:
                if L[i].strip() == ";sfree": slot = i; break
                if isins(L[i]) and I(L[i]).mfma: break
                i -= 1
            smem = any(q.salu for q, _ in lg)
            if slot is not None:
                n = 0 if smem else min(12, sum(1 for q, pos in lg[k+1:] if pos < slot))
                before = [x for x in lg if x[1] < slot]; after = [x for x in lg if x[1] > slot]
                L[slot] = f"    s_waitcnt lgkmcnt({n})"
                lg = (before[len(before) - n:] if n else []) + after
            else:
                n = 0 if smem else min(12, len(lg) - 1 - k)
                L.insert(j, f"    s_waitcnt lgkmcnt({n})"); paid += 1
                lg = lg[len(lg) - n:] if n else []
                j += 1
            continue
        if c.ds or c.op.startswith(("s_load", "s_memtime", "s_memrealtime")): lg.append((c, j))
        j += 1
    return L, paid
```

```python
COST = {"s": 1, "D": 1, "d": 1, "L": 2, "v": 1, "e": 2, "b": 1}
ORDER = {"s": 0, "b": 0, "D": 1, "d": 1, "L": 2, "v": 3, "e": 3}
class Op:
    n = 0
    def __init__(self, txt, kind, lo=0, dl=10**6, after=(), same=(), dist=1, pri=None, cb=None):
        self.txt = txt; self.kind = kind; self.lo = lo; self.dl = dl; self.dist = dist
        self.after = [a for a in after if a]; self.same = [a for a in same if a]; self.gap = None
        self.pri = dl if pri is None else pri; self.cb = cb
        Op.n += 1; self.id = Op.n

def schedule(mfmas, ops):
    out = []; left = sorted(ops, key=lambda o: (o.pri, o.id)); over = idle = 0
    for g, m in enumerate(mfmas):
        out.append(m)
        free = 2; sfree = 1; placed = []
        def ready(o):
            if o.lo > g: return False
            if any(a.gap is None or a.gap + o.dist > g for a in o.after): return False
            for a in o.same:
                if a.gap is None: return False
                if a.gap == g and ORDER[a.kind] > ORDER[o.kind]: return False
            return True
        def take(o):
            nonlocal free, sfree
            o.gap = g; left.remove(o); placed.append(o)
            if o.kind == "s" and sfree: sfree = 0
            elif o.kind == "b": free -= 1 if sfree else 2; sfree = 0
            else: free -= COST[o.kind]
        while True:
            r = [o for o in left if o.lo <= g and ready(o)]
            must = [o for o in r if o.dl <= g]
            if must: take(must[0]); continue
            sc = [o for o in r if o.kind == "s"]
            hasD = any(p.kind == "D" for p in placed); hasd = any(p.kind in "Dd" for p in placed)
            r2 = [o for o in r if o.kind != "s" and not (o.kind == "b" and not sfree) and not (o.kind == "D" and hasd) and not (o.kind == "d" and hasD)]
            if sfree and sc and not (r2 and r2[0].kind == "b" and free): take(sc[0]); continue
            pick = None
            ones = [o for o in r2 if COST[o.kind] == 1]; twos = [o for o in r2 if COST[o.kind] == 2]
            if free >= 2:
                if r2 and COST[r2[0].kind] == 2: pick = r2[0]
                elif ones:
                    o = ones[0]; o.gap = g
                    follow = [x for x in left if x is not o and x.kind in ("v" if o.kind == "D" else "dv" if o.kind == "d" else "Ddv") and ready(x)]
                    o.gap = None
                    pick = o if (follow or not twos) else twos[0]
                elif twos: pick = twos[0]
            elif free == 1 and ones: pick = ones[0]
            if pick is None: break
            take(pick)
        placed.sort(key=lambda o: ORDER[o.kind])
        if sfree: out.append(";sfree")
        for o in placed: out.append(o)
        if free < 0: over -= free
        else: idle += free; out.extend([";idle"] * free)
    assert not left, [(o.txt, o.lo, o.dl) for o in left[:5]]
    return out, over, idle
```

```python
import sys, math, struct, json
from asmlib import *
from sched import Op, schedule
import hazard
QSCALE = struct.unpack("<I", struct.pack("<f", math.log2(math.e) / math.sqrt(128.0)))[0]
STAMP = 64 << 20
OOB = 0x7fff0000
SPIN = 200000
MF = "v_mfma_f32_16x16x32_bf16"
LLO, LHI = (127 - 60) << 23, (127 + 60) << 23

SDBG, SX, SK, SV, SWQ, SWO, SWS, SOUT = 4, 20, 24, 28, 32, 36, 40, 44
sW, sH, sS, sJ, sHG, sB, sHKV, sW4K, sX0, sT0, sT1, sT2, sQS, sRET, sSAFE, sCNT = 48, 49, 50, 51, 52, 53, 54, 55, 56, 57, 58, 59, 60, 62, 64, 65
sU = 8
sST = 76
vWD, vXD, vKD, vVD, vWR, vXR, vKR, vVR, vT = 4, 8, 11, 15, 17, 25, 31, 39, 55
vQ, vO, vS, vE = 64, 112, 208, 248
vNEG = 252
aK, aV, aL, aONE = 0, 128, 192, 204
aWA, aWB = 64, 208
XR, WQR, QX = 94208, 114688, 81920
def kslot(i): return (i % 3) * 16384
def vslot(i): return 49152 + (i % 3) * 16384
ORDER = ["K0"] + [x for i in range(7) for x in (f"K{i+1}", f"V{i}")] + ["V7"]
JSLOT, JSET = [0, 1, 2, 0, 1], [0, 0, 0, 1, 1]

class Cfg:
    nact = 256; abl = ""; abl2 = ""; wg = 5; cyc = 0; NB = 3; stamps = 0; tail = "h"; split = 3; touch = "cXoW"
    dg = (76, 78, 80, 82, 85, 87, 89, 91); of = "sc1"; wot = 2; wa = 540; wb = 615; lf = "sc1"; fg = 36; lr = 4.2; a2 = 22; na = 7; rush = 0; pg = 140; aq = 62; lead = 14; no = 7; sg = 0
    def __init__(self, **kw):
        for k, val in kw.items(): setattr(self, k, val)

class VM:
    def __init__(self): self.q = []
    def add(self, tag, n=1): self.q += [tag] * n
    def wait(self, *tags):
        idx = [i for i, t in enumerate(self.q) if t in tags]
        if not idx: return None
        n = len(self.q) - 1 - max(idx)
        self.q = self.q[max(idx) + 1:]
        assert n <= 63
        return n

def srd(A, d, base, off, size):
    if off is None: A(f"s_mov_b32 s{d}, s{base}\ns_mov_b32 s{d+1}, s{base+1}")
    else: A(f"s_add_u32 s{d}, s{base}, {off}\ns_addc_u32 s{d+1}, s{base+1}, 0")
    A(f"s_mov_b32 s{d+2}, {size}\ns_mov_b32 s{d+3}, 0x20000")
def stamp_txt(C, i): return f"{'s_memtime' if C.cyc else 's_memrealtime'} s[{sST+2*i}:{sST+2*i+1}]"
def stamp(A, C, i):
    if C.stamps: A(stamp_txt(C, i))
def r4(p, i): return f"{p}[{i}:{i+3}]"

def emit(A, vm, out):
    for o in out:
        if isinstance(o, str): A(o); continue
        if getattr(o, "want", None) is not None:
            n = vm.wait(*o.want)
            if n is None: A(f"s_waitcnt {o.txt}" if o.txt else ";sfree")
            else: A(f"s_waitcnt vmcnt({n}) {o.txt}")
        else: A(o.txt)
        if getattr(o, "tag", None) is not None: vm.add(o.tag)
def waitop(tags, extra="", **kw):
    o = Op(extra, "s", **kw); o.want = tags; return o
class Chain:
    def __init__(self): self.last = None
    def group(self, ops, x, tag, gaps, first=(), nscal=2):
        prev = self.last
        for t in reversed(x[:nscal]):
            o = Op(t, "s", lo=gaps[0] - 2, dl=gaps[0], pri=gaps[0] - 2, after=[prev] if prev and prev.kind == "L" else [], same=[prev] if prev and prev.kind == "s" else [])
            ops.append(o); prev = o
        for t, gp in zip(x[len(x) - len(gaps):] if nscal == 1 else x[2:], gaps):
            o = Op(t, "L", lo=gp, dl=gp, after=[prev] + list(first))
            o.tag = tag; ops.append(o); prev = o
        self.last = prev
        return prev

def prologue(A, C, name):
    A(f"s_cmp_ge_u32 s2, {C.nact}\ns_cbranch_scc1 {name}_end")
    stamp(A, C, 0)
    t = vT
    A(f"""s_load_dwordx16 s[4:19], s[0:1], 0
    v_lshrrev_b32 v1, 6, v0
    v_and_b32 v2, 63, v0
    v_readfirstlane_b32 s{sW}, v1
    s_and_b32 s{sHG}, s2, 3
    s_bfe_u32 s{sJ}, s2, 0x20003
    s_lshr_b32 s{sB}, s2, 5
    s_bfe_u32 s{sT0}, s2, 0x10002
    s_lshl_b32 s{sT0}, s{sT0}, 3
    s_add_u32 s{sB}, s{sB}, s{sT0}
    s_lshl_b32 s{sHKV}, s{sHG}, 2
    s_add_u32 s{sHKV}, s{sHKV}, s{sJ}
    s_lshr_b32 s{sH}, s{sW}, 1
    s_and_b32 s{sS}, s{sW}, 1
    s_lshl_b32 s{sW4K}, s{sW}, 12
    s_mul_i32 s{sX0}, s{sW}, 2560
    s_add_u32 s{sX0}, s{sX0}, {XR}
    v_lshrrev_b32 v{t}, 4, v2
    v_and_b32 v{t+1}, 15, v2
    v_lshlrev_b32 v{t+2}, 1, v{t}
    v_xor_b32 v{t+2}, v{t+1}, v{t+2}
    v_lshlrev_b32 v{t+2}, 4, v{t+2}
    v_lshl_add_u32 v{vWD}, v{t}, 13, v{t+2}
    v_xor_b32 v{vWD+2}, 128, v{vWD}
    v_add_u32 v{vWD+1}, {4*8192-1024}, v{vWD}
    v_add_u32 v{vWD+3}, {12*8192-3072}, v{vWD+2}
    v_add_u32 v{vWD+2}, {8*8192-2048}, v{vWD+2}
    v_lshl_add_u32 v{vVD}, v{t}, 8, v{t+2}
    v_xor_b32 v{vVD+1}, 128, v{vVD}
    v_xor_b32 v{t+2}, v{t+1}, v{t}
    v_lshlrev_b32 v{t+2}, 4, v{t+2}
    v_lshl_add_u32 v{vKD}, v{t}, 8, v{t+2}
    v_xor_b32 v{vKD+1}, 64, v{vKD}
    v_xor_b32 v{vKD+2}, 128, v{vKD}
    v_xor_b32 v{vKD+3}, 192, v{vKD}
    v_lshrrev_b32 v{t}, 3, v2
    v_and_b32 v{t+1}, 7, v2
    s_mul_i32 s{sT0}, s{sW}, 20""")
    for i in range(3):
        A(f"""v_add_u32 v{t+2}, s{sT0}, v{t}
        v_add_u32 v{t+2}, {8*i}, v{t+2}
        v_bfe_u32 v{t+3}, v{t+2}, 1, 3
        v_xor_b32 v{t+3}, v{t+1}, v{t+3}
        v_mul_u32_u24 v{t+2}, 1152, v{t+2}
        v_lshl_add_u32 v{vXD+i}, v{t+3}, 4, v{t+2}""")
        if i: A(f"v_subrev_u32 v{vXD+i}, {i*1024}, v{vXD+i}")
    A(f"""s_mul_i32 s{sT0}, s{sB}, 92160
    s_lshl_b32 s{sT1}, s{sB}, 4
    s_add_u32 s{sT1}, s{sT1}, s{sHKV}
    s_lshl_b32 s{sT1}, s{sT1}, 17
    s_waitcnt lgkmcnt(0)""")
    srd(A, SX, 4, f"s{sT0}", 92160)
    A(f"""s_lshl_b32 s{sT0}, s{sHKV}, 9
    s_lshl_b32 s{sT2}, s{sH}, 8
    s_add_u32 s{sT0}, s{sT0}, s{sT2}
    s_lshl_b32 s{sT2}, s{sS}, 17
    s_add_u32 s{sT0}, s{sT0}, s{sT2}
    s_sub_u32 s{sT2}, {576*8192}, s{sT0}""")
    srd(A, SWQ, 10, f"s{sT0}", f"s{sT2}")
    srd(A, SK, 6, f"s{sT1}", 131072)
    srd(A, SV, 8, f"s{sT1}", 131072)
    srd(A, SWS, 18, None, 128 << 20)

def late_addresses(A, C):
    g, q, r, cc, t = vT, vT + 1, vT + 2, vT + 3, vT + 4
    A(f"""v_lshrrev_b32 v{g}, 4, v2
    v_and_b32 v{q}, 15, v2
    v_bfe_u32 v{r}, v2, 2, 2
    v_and_b32 v{cc}, 3, v2
    v_and_b32 v{t+2}, 1, v{g}
    v_lshl_add_u32 v{t+1}, v{t+2}, 2, v{r}
    v_lshlrev_b32 v{t+1}, 5, v{t+1}
    v_lshl_add_u32 v{t+1}, v{cc}, 3, v{t+1}
    s_lshl_b32 s{sT1}, s{sS}, 7
    v_xor_b32 v{t+1}, s{sT1}, v{t+1}
    v_lshl_add_u32 v{t}, v{g}, 3, v{r}
    v_lshl_add_u32 v{t}, v{t}, 8, v{t+1}
    s_lshl_b32 s{sT0}, s{sH}, 13
    s_add_u32 s{sT0}, s{sT0}, {WQR}
    v_add_u32 v{vWR}, s{sT0}, v{t}""")
    for k in range(1, 8): A(f"v_xor_b32 v{vWR+k}, {32*k}, v{vWR}")
    A(f"""v_lshl_add_u32 v{t}, v{g}, 2, v{r}
    v_lshl_add_u32 v{t}, v{t}, 8, v{t+1}
    s_lshl_b32 s{sT0}, s{sS}, 13
    s_add_u32 s{sT2}, s{sT0}, {vslot(0)}
    v_add_u32 v{vVR}, s{sT2}, v{t}""")
    for k in range(1, 16): A(f"v_xor_b32 v{vVR+k}, {32*(k & 7) + 8192*(k >> 3)}, v{vVR}")
    A(f"""v_lshrrev_b32 v{t}, 1, v{g}
    v_lshl_add_u32 v{t}, v{t+2}, 1, v{t}
    v_xor_b32 v{t}, v{t}, v{q}
    v_lshlrev_b32 v{t}, 4, v{t}
    v_xor_b32 v{t}, s{sT1}, v{t}
    v_lshl_add_u32 v{t}, v{q}, 8, v{t}
    v_add_u32 v{vKR}, s{sT0}, v{t}""")
    for k in range(1, 8): A(f"v_xor_b32 v{vKR+k}, {64*(k & 3) + 8192*(k >> 2)}, v{vKR}")
    A(f"""v_lshrrev_b32 v{t}, 1, v{q}
    v_xor_b32 v{t}, v{t}, v{g}
    v_lshlrev_b32 v{t}, 4, v{t}
    v_lshl_add_u32 v{t}, v{q}, 7, v{t}
    s_lshl_b32 s{sT0}, s{sS}, 1
    s_add_u32 s{sT0}, s{sT0}, s{sH}
    s_lshl_b32 s{sT0}, s{sT0}, 11
    s_xor_b32 s{sT1}, s{sT0}, 2048
    s_add_u32 s{sT0}, s{sT0}, {XR}
    s_add_u32 s{sT1}, s{sT1}, {XR}
    v_add_u32 v{vXR}, s{sT0}, v{t}
    v_add_u32 v{vXR+2}, s{sT1}, v{t}
    v_add_u32 v{vXR+4}, {XR + 8192}, v{t}""")
    for k in range(3): A(f"v_xor_b32 v{vXR+2*k+1}, 64, v{vXR+2*k}")
    A(f"""v_lshlrev_b32 v3, 4, v2
    v_mov_b32 v1, 0
    s_mov_b32 s{sQS}, {QSCALE}
    s_mov_b32 s{sQS+1}, {QSCALE}
    s_mov_b32 s{sSAFE}, 0
    v_mov_b32 v{vNEG+2}, 0
    v_mov_b32 v{t}, 0x3f803f80""")
    for i in range(4): A(f"v_accvgpr_write_b32 a{aONE+i}, v{t}")
    A(f"s_mul_i32 s{sT0}, s{sHG}, {1024*1152}")
    srd(A, SWO, 12, f"s{sT0}", 1024 * 1152)
    srd(A, SOUT, 14, None, 1280 * 1152)
    srd(A, SDBG, 16, None, 256)

def touches(A, C, vm):
    d = [vS]
    def dst():
        d[0] += 1; vm.add("touch"); return d[0] - 1
    srd(A, SOUT, 4, None, 1280 * 1152)
    srd(A, SWO, 10, None, 576 * 8192)
    for ch in C.touch:
        if ch in "Xxy":
            nsh = 2 if ch == "X" else 4
            A(f"""v_lshlrev_b32 v{vT}, 7, v0
            s_lshr_b32 s{sT0}, s{sJ}, {1 if ch == "X" else 0}
            s_mul_i32 s{sT0}, s{sT0}, {92160 // nsh}
            s_xor_b32 s{sT1}, s{sB}, {4 if ch == "y" else 0}
            s_mul_i32 s{sT1}, s{sT1}, 92160
            v_cmp_gt_u32 vcc, 180, v0
            v_mov_b32 v{vT+1}, {OOB}
            s_add_u32 s{sT0}, s{sT0}, s{sT1}
            v_cndmask_b32 v{vT}, v{vT+1}, v{vT}, vcc""")
            for i in range(4 // nsh):
                A(f"buffer_load_dword v{dst()}, v{vT}, s[{SOUT}:{SOUT+3}], s{sT0} offen\ns_add_u32 s{sT0}, s{sT0}, 23040")
        if ch in "oWw":
            nsh = 4 if ch == "w" else 8
            A(f"""v_lshrrev_b32 v{vT}, 2, v0
            v_and_b32 v{vT+1}, 3, v0
            s_and_b32 s{sT0}, s{sB}, {nsh-1}
            v_lshl_add_u32 v{vT}, v{vT}, {nsh.bit_length()-1}, s{sT0}
            v_lshlrev_b32 v{vT}, 13, v{vT}
            v_lshl_add_u32 v{vT}, v{vT+1}, 7, v{vT}
            s_xor_b32 s{sT0}, s{sHKV}, {1 if ch == 'o' else 0}
            s_lshl_b32 s{sT0}, s{sT0}, 9""")
            for i in range((576 // nsh + 63) // 64):
                A(f"buffer_load_dword v{dst()}, v{vT}, s[{SWO}:{SWO+3}], s{sT0} offen\ns_add_u32 s{sT0}, s{sT0}, {64*nsh*8192}")

def dma_kv(name, slot=None, so=None):
    i = int(name[1:])
    if name[0] == "V": sr, sl, va = SV, vslot(i), [vVD, vVD + 1, vVD, vVD + 1]
    else: sr, sl, va = SK, kslot(i), [vKD + a for a in range(4)]
    o = [f"s_add_u32 m0, s{sW4K}, {sl if slot is None else slot}", f"s_add_u32 s{sT1}, s{sW4K}, {i*16384 if so is None else so}"]
    return o + [f"buffer_load_dwordx4 v{va[a]}, s[{sr}:{sr+3}], s{sT1} offen offset:{a*1024} nt lds" for a in range(4)]
def dma_wq(j):
    o = [f"s_add_u32 m0, s{sW4K}, {WQR + (j % 3)*16384}", f"s_mov_b32 s{sT1}, {j*262144}"]
    return o + [f"buffer_load_dwordx4 v{vWD+a}, s[{SWQ}:{SWQ+3}], s{sT1} offen offset:{a*1024} lds" for a in range(4)]
def dma_x(t):
    o = [f"s_add_u32 m0, s{sX0}, {(t % 2)*10240}", f"s_mov_b32 s{sT0}, {t*128}"]
    o += [f"buffer_load_dwordx4 v{vXD+i}, s[{SX}:{SX+3}], s{sT0} offen offset:{i*1024} lds" for i in range(2)]
    o += [f"s_mov_b32 exec_hi, 0\nbuffer_load_dwordx4 v{vXD+2}, s[{SX}:{SX+3}], s{sT0} offen offset:2048 lds\ns_mov_b32 exec_hi, -1"]
    return o
def w_reads(j):
    p = j & 1
    o = [("D", f"ds_read_b128 {r4('a', aWB+12*p+4*k)}, v{vXR+2*k+p} offset:{((j >> 1) % 2)*10240}") for k in range(3)]
    for t in range(8):
        for u in range(2): o.append(("d", f"ds_read_b64_tr_b16 a[{aWA+32*p+4*t+2*u}:{aWA+32*p+4*t+2*u+1}], v{vWR+t} offset:{(j % 3)*16384 + u*1024}"))
    return o
def k_reads(i, buf=None, slot=None):
    b = aK + 64 * (i & 1 if buf is None else buf); sl = kslot(i) if slot is None else slot
    return [f"ds_read_b128 {r4('a', b+32*z+16*kt+4*p)}, v{vKR+4*z+p} offset:{sl + kt*4096}" for z in range(2) for kt in range(2) for p in range(4)]
def v_reads(i, slot=None):
    sl = (vslot(i) if slot is None else slot) - vslot(0)
    return [f"ds_read_b64_tr_b16 a[{aV+32*z+4*m+2*u}:{aV+32*z+4*m+2*u+1}], v{vVR+8*z+m} offset:{sl + u*4096}" for z in range(2) for m in range(8) for u in range(2)]

def qproj(A, C, vm, issued, grp):
    mf = []; ops = []; ch = Chain()
    for j in range(18):
        G = 20 * j; p = j & 1; nxt = j + 1
        for t in range(8):
            for k in range(3 if t < 4 else 2):
                d = vO + 32 * k + 4 * t
                mf.append(f"{MF} {r4('v', d)}, {r4('a', aWA+32*p+4*t)}, {r4('a', aWB+12*p+4*k)}, {'0' if j == 0 else r4('v', d)}")
        b0 = G + C.wg + 1
        bar = None
        if nxt < 18:
            wv = waitop([("wq", nxt)] + ([("x", nxt >> 1)] if p else []), "lgkmcnt(0)", lo=b0 - 1, dl=b0 - 1)
            bar = Op("s_barrier", "b", lo=b0, dl=b0, after=[wv]); ops += [wv, bar]
            last = bar
            need = [0, 1, 2] + [x for t in range(8) for x in [3 * t if t < 4 else 4 + 2 * t] * 2]
            for (kind, t), nd in zip(w_reads(nxt), need):
                last = Op(t, "d", dl=G + 20 + min(nd - 3, C.wg - 2), pri=G, same=[last]); ops.append(last)
        t = (nxt >> 1) + 1
        gaps = [b0 + 10, b0 + 13, b0 + 16, b0 + 19] if p and t < 9 else [b0 + 3, b0 + 8, b0 + 13, b0 + 18]
        if p and t < 9: ch.group(ops, dma_x(t), ("x", t), [b0 + 1, b0 + 4, b0 + 7], first=[bar])
        gaps = [min(g, 356 + k) for k, g in enumerate(gaps)]
        if j + 3 < 18: ch.group(ops, dma_wq(j + 3), ("wq", j + 3), gaps, first=[bar])
        elif issued < 5: ch.group(ops, dma_kv(ORDER[issued]), ORDER[issued], gaps); issued += 1
        if grp == "b" and C.NB and j == 16:
            for t in k_reads(0):
                last = Op(t, "D", lo=340, dl=359, same=[last]); ops.append(last)
    out, over, idle = schedule(mf, ops)
    print(f"qproj: overflow {over} idle {idle}", file=sys.stderr)
    emit(A, vm, out)
    return issued

def pack(A, x, y, d, scale, swap):
    if scale:
        for r in (x, x + 2, y, y + 2): A(f"v_pk_mul_f32 v[{r}:{r+1}], v[{r}:{r+1}], {scale}")
    A(f"""v_cvt_pk_bf16_f32 v{d}, v{x}, v{x+1}
    v_cvt_pk_bf16_f32 v{d+1}, v{x+2}, v{x+3}
    v_cvt_pk_bf16_f32 v{d+2}, v{y}, v{y+1}
    v_cvt_pk_bf16_f32 v{d+3}, v{y+2}, v{y+3}""")
    return [f"v_permlane16_swap_b32 v{d}, v{d+2}", f"v_permlane16_swap_b32 v{d+1}, v{d+3}"] if swap else []

def q_epilogue(A, C, vm, issued, grp):
    w = vT
    A(f"s_lshl_b32 s{sT0}, s{sW}, 11\ns_add_u32 s{sT0}, s{sT0}, {QX}\nv_add_u32 v{w}, s{sT0}, v3\nv_xor_b32 v{w+1}, 2048, v{w}")
    pend = []
    todo = [(2, 0), (2, 1)] + [(k, p) for k in range(2) for p in range(4)]
    for n, (k, p) in enumerate(todo):
        x = vO + 32 * k + 8 * p
        sw = pack(A, x, x + 4, vQ + 16 * k + 4 * p, f"s[{sQS}:{sQS+1}]", True)
        for t in pend: A(t)
        pend = sw
        if k == 2: pend = pend + [f"ds_write_b128 v{w}, {r4('v', vQ+32+4*p)} offset:{p*1024}"]
        if n >= 2 and issued < 5 and n % 3 == 2:
            for t in dma_kv(ORDER[issued]): A(t)
            vm.add(ORDER[issued], 4); issued += 1
    for t in pend: A(t)
    pre = grp == "b" and C.NB >= 3
    n = vm.wait("K0", *(("K1", "V0") if pre else ()))
    A((f"s_waitcnt vmcnt({n}) lgkmcnt(0)" if n is not None else "s_waitcnt lgkmcnt(0)") + "\ns_barrier")
    if not (grp == "b" and C.NB):
        for t in k_reads(0): A(t)
    for p in range(2): A(f"ds_read_b128 {r4('v', vQ+40+4*p)}, v{w+1} offset:{p*1024}")
    assert issued == 5
    return pre

def qk(i, jb, c0="0"):
    o = []
    for kt in range(2):
        for p in range(4):
            d = vS + 8 * jb + 4 * kt
            o.append(f"{MF} {r4('v', d)}, {r4('a', aK+64*(i&1)+32*JSET[jb]+16*kt+4*p)}, {r4('v', vQ+16*JSLOT[jb]+4*p)}, {c0 if p == 0 else r4('v', d)}")
    return o
def pv(jb, first):
    k = JSLOT[jb]; pp = r4("v", vS + 8 * jb)
    o = [f"{MF} {r4('v', vO+32*k+4*m)}, {r4('a', aV+32*JSET[jb]+4*m)}, {pp}, {'0' if first else r4('v', vO+32*k+4*m)}" for m in range(8)]
    return o + [f"{MF} {r4('a', aL+4*k)}, {r4('a', aONE)}, {pp}, {'0' if first else r4('a', aL+4*k)}"]

def attention(A, C, vm, pre, extra):
    mf = []; ops = []; ch = Chain(); issued = 5
    xg = 20 if pre else 9
    wx = waitop(["K1", "V0"], "lgkmcnt(0)", lo=xg, dl=xg)
    bx = Op("s_barrier", "b", lo=xg + 1, dl=xg + 1, after=[wx]); ops += [wx, bx]
    for n in range(2):
        ch.group(ops, dma_kv(ORDER[issued]), ORDER[issued], [xg + 4 + 24 * n + 6 * a for a in range(4)], first=[bx]); issued += 1
    gate = None if pre else bx
    for i in range(8):
        G = 85 * i
        for jb in range(5): mf += qk(i, jb)
        for jb in range(5): mf += pv(jb, i == 0 and jb < 3)
        for jb in range(5):
            s0 = vS + 8 * jb; dl = G + 38 + 9 * jb
            ex = [Op(f"v_exp_f32 v{s0+k}, v{s0+k}", "e", lo=G + 8 * jb + (7 if k < 4 else 11), dl=dl - 12 + k + k // 2) for k in range(8)]
            prev = None
            for k in range(4):
                prev = Op(f"v_cvt_pk_bf16_f32 v{s0+k}, v{s0+2*k}, v{s0+2*k+1}", "v", dl=dl - 9 + 3 * k, after=[ex[2*k], ex[2*k+1]], same=[prev]); ops.append(prev)
            ops += ex
        last = gate
        for k, t in enumerate(v_reads(i)):
            z, m = k >> 4, (k >> 1) & 7
            if z == 0: lo, dl = G - 27 + m, G + 28 + m
            else: lo, dl = max(G - 9 + m, G + 10 + 6 * m), G + 12 + 6 * m
            if i == 0 and not pre: lo, dl = (0, 14 + 3 * m) if z == 0 else (0, 40 + 3 * m)
            last = Op(t, "d", lo=lo, dl=dl, pri=dl if z or i == 0 else G - 60, same=[last]); ops.append(last)
        if i < 7:
            last = gate
            for t in k_reads(i + 1):
                last = Op(t, "D", lo=G + 9, dl=G + 70, pri=G - 50, same=[last]); ops.append(last)
            wv = waitop([f"K{i+2}", f"V{i+1}"], "lgkmcnt(0)", lo=G + 74, dl=G + 74, after=[last])
            gate = Op("s_barrier", "b", lo=G + 75, dl=G + 75, after=[wv]); ops += [wv, gate]
            for n in range(2):
                if issued < 16:
                    ch.group(ops, dma_kv(ORDER[issued]), ORDER[issued], [G + g for g in C.dg[4*n:4*n+4]], first=[gate]); issued += 1
        extra(ops, ch, i, G, gate)
        if i == 3 and C.stamps: ops.append(Op(stamp_txt(C, 4), "s", lo=G + 71, dl=G + 73))
    out, over, idle = schedule(mf, ops)
    print(f"attention: overflow {over} idle {idle}", file=sys.stderr)
    for o in out:
        if isinstance(o, str): continue
        if "B" in C.abl and o.txt == "s_barrier": o.txt = "s_nop 0"
        if "L" in C.abl and o.kind == "L": o.txt = "s_nop 0"
        if "d" in C.abl and o.kind in "dD": o.txt = "s_nop 0"
    emit(A, vm, out)

def safe_attention(A, name):
    t, u = vT + 4, vT + 5
    A(f"""{name}_safe:
    s_nop 7
    s_mov_b32 s{sCNT}, 0
    v_lshrrev_b32 v{t}, 5, v2
    v_bfe_u32 v{u}, v2, 4, 1
    v_lshl_add_u32 v{t}, v{u}, 1, v{t}
    v_and_b32 v{u}, 15, v2
    v_xor_b32 v{t}, v{t}, v{u}
    v_lshlrev_b32 v{t}, 4, v{t}
    s_lshl_b32 s{sT1}, s{sS}, 7
    v_xor_b32 v{t}, s{sT1}, v{t}
    v_lshl_add_u32 v{t}, v{u}, 8, v{t}
    s_lshl_b32 s{sT1}, s{sS}, 13
    s_add_u32 s{sT1}, s{sT1}, s{sT2}
    v_add_u32 v{vKR}, s{sT1}, v{t}""")
    for k in range(1, 8): A(f"v_xor_b32 v{vKR+k}, {64*(k & 3) + 8192*(k >> 2)}, v{vKR}")
    for k in range(3): A(f"v_mov_b32 v{vNEG+k}, 0x7f800000")
    for r in range(96): A(f"v_mov_b32 v{vO+r}, 0")
    for r in range(12): A(f"v_accvgpr_write_b32 a{aL+r}, 0")
    A(f"{name}_sl:\ns_barrier")
    for nm, slot in (("K0", f"s{sT2}"), ("V0", vslot(1))):
        x = dma_kv(nm, slot, f"s{sCNT}")
        A("\n".join([x[0], x[1]] + x[2:]))
    A("s_waitcnt vmcnt(0)\ns_barrier")
    for x in k_reads(0, 0, 0) + v_reads(0, vslot(1)): A(x)
    A("s_waitcnt lgkmcnt(0)")
    for jb in range(5):
        s0 = vS + 8 * jb; k = JSLOT[jb]
        for m in qk(0, jb): A(m)
        A(f"""s_nop 7
        v_max3_f32 v{t}, v{s0}, v{s0+1}, v{s0+2}
        v_max3_f32 v{t}, v{t}, v{s0+3}, v{s0+4}
        v_max3_f32 v{t}, v{t}, v{s0+5}, v{s0+6}
        v_max_f32 v{t}, v{t}, v{s0+7}
        v_mov_b32 v{u}, v{t}
        s_nop 1
        v_permlane32_swap_b32 v{t}, v{u}
        s_nop 1
        v_max_f32 v{t}, v{t}, v{u}
        v_mov_b32 v{u}, v{t}
        s_nop 1
        v_permlane16_swap_b32 v{t}, v{u}
        s_nop 1
        v_min3_f32 v{t}, -v{t}, -v{u}, v{vNEG+k}
        v_sub_f32 v{u}, v{t}, v{vNEG+k}
        v_exp_f32 v{u}, v{u}
        v_mov_b32 v{vNEG+k}, v{t}""")
        for r in range(8): A(f"v_add_f32 v{s0+r}, v{s0+r}, v{t}")
        for r in range(8): A(f"v_exp_f32 v{s0+r}, v{s0+r}")
        for r in range(32): A(f"v_mul_f32 v{vO+32*k+r}, v{vO+32*k+r}, v{u}")
        for r in range(4): A(f"v_accvgpr_read_b32 v{t}, a{aL+4*k+r}\nv_mul_f32 v{t}, v{t}, v{u}\nv_accvgpr_write_b32 a{aL+4*k+r}, v{t}")
        for r in range(4): A(f"v_cvt_pk_bf16_f32 v{s0+r}, v{s0+2*r}, v{s0+2*r+1}")
        A("s_nop 1")
        for m in pv(jb, False): A(m)
    A(f"s_nop 7\ns_add_u32 s{sCNT}, s{sCNT}, 16384\ns_cmp_lt_u32 s{sCNT}, 131072\ns_cbranch_scc1 {name}_sl\ns_barrier")
    for k in range(8): A(f"v_xor_b32 v{vKR+k}, 8192, v{vWR+k}")
    A(f"s_setpc_b64 s[{sRET}:{sRET+1}]")

EXB = 0
SAFEK = 0
def ob(k, p): return vO + 32 * k + 8 * p
def normalise(A, C, tag, name, store, prebar=lambda: "", checked=lambda: None):
    w, r, fa = vT, vT + 1, vT + 2
    l = vE
    A(f"""{tag}_x:
    s_mul_i32 s{sT0}, s{sW}, 5120
    s_add_u32 s{sT0}, s{sT0}, {EXB}
    v_add_u32 v{w}, s{sT0}, v3
    s_xor_b32 s{sT1}, s{sW}, 1
    s_mul_i32 s{sT1}, s{sT1}, 5120
    s_add_u32 s{sT1}, s{sT1}, {EXB}
    v_add_u32 v{r}, s{sT1}, v3""")
    for m in range(4): A(f"ds_write_b128 v{w}, {r4('v', vO+64+16+4*m)} offset:{m*1024}")
    A(f"""v_accvgpr_read_b32 v{l+2}, a{aL+8}
    v_accvgpr_read_b32 v{l}, a{aL}
    v_accvgpr_read_b32 v{l+1}, a{aL+4}
    v_mov_b32 v{l+3}, v{vNEG+2}
    s_lshl_b32 s{sT0}, s{sW}, 2
    s_add_u32 s{sT0}, s{sT0}, {EXB + 20480}
    v_mov_b32 v{fa}, s{sT0}
    ds_write_b64 v{w}, v[{l+2}:{l+3}] offset:4096
    v_subrev_u32 v{fa+1}, {LLO}, v{l}
    v_subrev_u32 v{fa+2}, {LLO}, v{l+1}
    v_subrev_u32 v{fa+3}, {LLO}, v{l+2}
    v_max3_u32 v{fa+1}, v{fa+1}, v{fa+2}, v{fa+3}
    v_cmp_lt_u32 vcc, {LHI - LLO}, v{fa+1}
    v_rcp_f32 v{l}, v{l}
    v_rcp_f32 v{fa+5}, v{l+1}
    s_cmp_lg_u64 vcc, 0
    s_cselect_b32 s{sT0}, 1, 0
    s_andn2_b32 s{sT0}, s{sT0}, s{sSAFE}
    v_mov_b32 v{fa+1}, s{sT0}
    ds_write_b32 v{fa}, v{fa+1}""")
    for p in range(4):
        pack(A, ob(0, p), ob(0, p) + 4, ob(0, p), f"v[{l}:{l+1}] op_sel_hi:[1,0]", False); store(0, p)
    A(f"""v_mov_b32 v{fa}, {EXB + 20480}
    s_waitcnt {prebar()}lgkmcnt(0)
    s_barrier
    ds_read_b128 {r4('v', vS+16)}, v{fa}
    ds_read_b64 v[{vS+20}:{vS+21}], v{r} offset:4096""")
    for m in range(4): A(f"ds_read_b128 {r4('v', vS+4*m)}, v{r} offset:{m*1024}")
    for p in range(4):
        pack(A, ob(1, p), ob(1, p) + 4, ob(1, p), f"v[{fa+5}:{fa+6}] op_sel_hi:[1,0]", False); store(1, p)
    lo, no, lp, np_, t = l + 2, l + 3, vS + 20, vS + 21, fa
    A(f"""s_waitcnt lgkmcnt(4)
    v_or3_b32 v{vS+16}, v{vS+16}, v{vS+17}, v{vS+18}
    v_or_b32 v{vS+16}, v{vS+16}, v{vS+19}
    v_cmp_ne_u32 vcc, 0, v{vS+16}
    v_min_f32 v{t}, v{no}, v{np_}
    v_sub_f32 v{no}, v{t}, v{no}
    v_sub_f32 v{np_}, v{t}, v{np_}
    s_cbranch_vccnz {tag}_fb
    v_exp_f32 v{no}, v{no}
    v_exp_f32 v{np_}, v{np_}
    s_nop 0
    v_mul_f32 v{lo}, v{lo}, v{no}
    v_fma_f32 v{lo}, v{lp}, v{np_}, v{lo}
    v_rcp_f32 v{t}, v{lo}
    s_nop 0
    v_mul_f32 v{lo}, v{no}, v{t}
    v_mul_f32 v{lp}, v{np_}, v{t}""")
    for k in range(0, 16, 2): A(f"v_pk_mul_f32 v[{vO+64+k}:{vO+65+k}], v[{vO+64+k}:{vO+65+k}], v[{lo}:{lo+1}] op_sel_hi:[1,0]")
    A("s_waitcnt lgkmcnt(0)")
    checked()
    for k in range(0, 16, 2): A(f"v_pk_fma_f32 v[{vO+64+k}:{vO+65+k}], v[{vS+k}:{vS+k+1}], v[{lp}:{lp+1}], v[{vO+64+k}:{vO+65+k}] op_sel_hi:[1,0,1]")
    for p in range(2):
        pack(A, ob(2, p), ob(2, p) + 4, ob(2, p), None, False); store(2, p)
    return f"{tag}_fb:\ns_waitcnt vmcnt(0) lgkmcnt(0)\ns_mov_b32 s{sSAFE}, 1\ns_mov_b32 s{sT2}, {SAFEK}\ns_call_b64 s[{sRET}:{sRET+1}], {name}_safe\ns_branch {tag}_x"

def dump_setup(A):
    A(f"""v_and_b32 v{vXR}, 15, v2
    v_lshrrev_b32 v{vXR+1}, 4, v2
    v_lshlrev_b32 v{vXR}, 13, v{vXR}
    v_lshl_add_u32 v{vXR}, v{vXR+1}, 3, v{vXR}
    s_lshl_b32 s{sT0}, s{sS}, 7
    v_add_u32 v{vXR}, s{sT0}, v{vXR}
    v_xor_b32 v{vXR+1}, 128, v{vXR}
    s_mul_i32 s{sU+2}, s{sB}, {80*8192}
    s_lshl_b32 s{sT1}, s{sHKV}, 9
    s_add_u32 s{sU+2}, s{sU+2}, s{sT1}
    s_lshl_b32 s{sT1}, s{sH}, 8
    s_add_u32 s{sU+2}, s{sU+2}, s{sT1}
    s_add_u32 s{sU+2}, s{sU+2}, {1280*8192}
    s_lshl_b32 s{sT0}, s{sS}, 1
    s_add_u32 s{sT0}, s{sT0}, s{sH}
    s_lshl_b32 s{sT0}, s{sT0}, 17
    s_xor_b32 s{sT1}, s{sT0}, {1 << 17}
    s_add_u32 s{sU}, s{sU+2}, s{sT0}
    s_add_u32 s{sU+1}, s{sU+2}, s{sT1}
    s_add_u32 s{sU+2}, s{sU+2}, {4 << 17}""")

def flush(A, C, name):
    if not C.stamps: return
    A(f"s_waitcnt lgkmcnt(0)\ns_lshl_b32 s{sT0}, s2, 6\ns_add_u32 s{sT0}, s{sT0}, {STAMP}\ns_cmp_lg_u32 s{sW}, 0\ns_cbranch_scc1 {name}_end\ns_mov_b64 exec, 1")
    for i in range(C.stamps): A(f"v_mov_b32 v4, s{sST+2*i}\nbuffer_store_dword v4, v1, s[{SWS}:{SWS+3}], s{sT0} offen offset:{4*i}")

def path(C, name, grp, stubs):
    A = Asm(); vm = VM(); tag = f"{name}_{grp}"
    T = None
    if C.tail == "h":
        import tail2
        T = tail2.Tail(C, name, grp, A, vm, stubs)
    issued = 0
    if T: T.start()
    if grp == "b":
        touches(A, C, vm)
        for n in range(C.NB):
            for t in dma_kv(ORDER[n]): A(t)
            vm.add(ORDER[n], 4)
        issued = C.NB
    for t in dma_x(0): A(t)
    vm.add(("x", 0), 3)
    for j in range(3):
        for t in dma_wq(j): A(t)
        vm.add(("wq", j), 4)
        if j == 0:
            for t in dma_x(1): A(t)
            vm.add(("x", 1), 3)
    late_addresses(A, C)
    A(f"s_waitcnt vmcnt({vm.wait(('x', 0), ('wq', 0))})\ns_barrier")
    stamp(A, C, 1)
    for _, t in w_reads(0): A(t)
    if T: T.ready()
    issued = qproj(A, C, vm, issued, grp)
    stamp(A, C, 2)
    pre = q_epilogue(A, C, vm, issued, grp)
    if T: T.before_attention()
    stamp(A, C, 3)
    attention(A, C, vm, pre, T.hook if T else lambda *a: None)
    stamp(A, C, 5)
    if T: T.run()
    else:
        dump_setup(A)
        def store(k, p):
            for e in range(2): A(f"buffer_store_dwordx2 v[{ob(k, p)+2*e}:{ob(k, p)+2*e+1}], v{vXR + (p >> 1)}, s[{SWS}:{SWS+3}], s{sU+k} offen offset:{(p & 1)*64 + e*32}")
        stubs.append(normalise(A, C, tag, name, store))
        stamp(A, C, 6)
        flush(A, C, name)
        A("s_endpgm")
    return A

def kernel(C, name):
    P = Asm(); prologue(P, C, name)
    stubs = []
    pa = path(C, name, "a", stubs); pb = path(C, name, "b", stubs)
    for p_ in (pa, pb):
        p_.L, paid = hazard.autowait(p_.L)
        p_.L, forced = hazard.fix(p_.L)
        print("forced pads:", forced, "paid waits:", paid, file=sys.stderr)
    R = Asm(); safe_attention(R, name)
    bad = hazard.check(P.L + pa.L, "a") + hazard.check(P.L + pb.L, "b") + hazard.check(R.L, "safe")
    S = Asm()
    for t in stubs: S(t)
    bad += hazard.check(S.L, "stubs")
    assert not bad, f"{bad} hazards"
    head = Asm()
    if "c" in C.touch:
        head(f"""s_getpc_b64 s[{sRET}:{sRET+1}]
        s_lshr_b32 s{sT0}, s2, 3
        v_lshlrev_b32 v1, 5, v0
        v_add_u32 v1, s{sT0}, v1
        v_lshlrev_b32 v1, 7, v1
        v_min_u32 v1, {name}_hot-{name}_kernel-8, v1
        v_cmp_gt_u32 vcc, ({name}_hot-{name}_kernel)/4096+1, v0
        s_and_saveexec_b64 s[{sQS}:{sQS+1}], vcc
        s_cbranch_execz {name}_nc
        global_load_dword v255, v1, s[{sRET}:{sRET+1}]
        {name}_nc:
        s_mov_b64 exec, -1""")
    mid = Asm(); mid({1: f"s_bitcmp1_b32 s2, 7\ns_cbranch_scc1 {name}_pb", 3: f"s_bitcmp1_b32 s{sJ}, 0\ns_cbranch_scc1 {name}_pb"}[C.split])
    return head.text() + P.text() + mid.text() + pa.text() + f"{name}_pb:\n" + pb.text() + S.text() + f"{name}_hot:\n" + R.text() + f"{name}_end:\n    s_endpgm\n"

def main():
    from gen_naive import naive_parts
    cfgs = json.loads(sys.argv[1]); names = []
    for c in cfgs:
        n = "j" + "".join(f"_{kk}{vv}" for kk, vv in c.items()); names.append(n)
        C = Cfg(**c)
        l, k = naive_parts()
        if C.tail == "dump": txt = build([("fa_kernel", 256, 256, 163840), l[2]], [("fa_kernel", kernel(C, "fa"), 256, 256), k[2]])
        else: txt = build([(KN + "_kernel", 256, 256, 163840)], [(KN + "_kernel", kernel(C, KN), 256, 256)])
        open(n + ".s", "w").write(txt)
    open("list.txt", "w").write(" ".join(x + ".s" for x in names))

if __name__ == "__main__":
    import gen2
    gen2.main()
```

```python
import re
REG = re.compile(r"\b([vas])(?:(\d+)|\[(\d+):(\d+)\])")
TRANS = ("v_exp_", "v_log_", "v_rcp_", "v_rsq_", "v_sqrt_", "v_sin_", "v_cos_")

def regs(tok):
    out = set()
    for m in REG.finditer(tok):
        lo = int(m.group(2) if m.group(2) is not None else m.group(3)); hi = int(m.group(2) if m.group(2) is not None else m.group(4))
        out |= {(m.group(1), i) for i in range(lo, hi + 1)}
    if re.search(r"\bvcc\b", tok): out |= {("s", "vcc")}
    if re.search(r"\bexec(_lo|_hi)?\b", tok): out |= {("s", "exec")}
    if re.search(r"\bm0\b", tok): out |= {("s", "m0")}
    return out

class I:
    def __init__(self, txt):
        self.txt = txt.strip(); t = self.txt.split(";")[0].strip()
        p = t.split(None, 1); self.op = p[0]; rest = p[1] if len(p) > 1 else ""
        ops = [x.strip() for x in re.split(r",(?![^\[]*\])", rest)] if rest else []
        self.ops = ops; op = self.op
        self.mfma = op.startswith("v_mfma"); self.valu = op.startswith("v_") and not self.mfma
        self.ds = op.startswith("ds_"); self.vmem = op.startswith(("buffer_", "global_")); self.salu = op.startswith("s_")
        self.trans = op.startswith(TRANS); self.lds_dma = self.vmem and (" lds" in t or "_lds_" in op)
        self.w = set(); self.r = set(); self.srcc = set(); self.sdata = set()
        if self.mfma:
            self.w = regs(ops[0]); self.r = regs(ops[1]) | regs(ops[2]); self.srcc = regs(ops[3]); self.passes = 8 if "32x32" in op else 4
        elif self.valu:
            self.w = regs(ops[0]); self.r = set().union(*[regs(o) for o in ops[1:]]) if len(ops) > 1 else set()
            if "permlane" in op and "swap" in op: self.w |= regs(ops[1]); self.r |= regs(ops[0])
            if op.startswith(("v_fmac", "v_pk_fmac")): self.r |= regs(ops[0])
            if "_co_" in op: self.w |= regs(ops[1])
        elif self.ds:
            if op.startswith("ds_read"): self.w = regs(ops[0]); self.r = regs(ops[1])
            else: self.r = set().union(*[regs(o) for o in ops])
        elif self.vmem:
            if op in ("buffer_wbl2", "buffer_inv"): pass
            elif self.lds_dma: self.r = set().union(*[regs(o) for o in ops]) | {("s", "m0")}
            elif "load" in op: self.w = regs(ops[0]); self.r = set().union(*[regs(o) for o in ops[1:]])
            else:
                self.r = set().union(*[regs(o) for o in ops])
                if "x4" in op or "x3" in op: self.sdata = regs(ops[0] if op.startswith("buffer") else ops[1])
        elif self.salu:
            if op.startswith(("s_cmp", "s_bitcmp", "s_cbranch", "s_branch", "s_waitcnt", "s_nop", "s_barrier", "s_sleep", "s_setprio", "s_endpgm")):
                self.r = set().union(*[regs(o) for o in ops]) if ops and not op.startswith(("s_cbranch", "s_branch", "s_waitcnt")) else set()
            else:
                self.w = regs(ops[0]); self.r = set().union(*[regs(o) for o in ops[1:]]) if len(ops) > 1 else set()
                if "saveexec" in op: self.w |= {("s", "exec")}
        self.states = int(ops[0]) + 1 if op == "s_nop" else 1

def need(p, c):
    n = 0
    vw = {x for x in p.w if x[0] in "va"}; sw = {x for x in p.w if x[0] == "s"}
    if p.mfma:
        k = p.passes
        if c.mfma:
            if vw & c.r: n = max(n, 8 if k == 4 else 12)
            if vw & c.srcc and not (c.srcc == p.w and c.passes == k): n = max(n, 6 if k == 4 else 10)
            if vw & c.w and c.srcc != p.w: n = max(n, 6 if k == 4 else 10)
        elif c.valu or c.ds or c.vmem:
            if vw & (c.r | c.w): n = max(n, 8 if k == 4 else 12)
            if (c.valu or c.ds or c.vmem) and p.srcc & c.w: n = max(n, 3 if k == 4 else 7)
    if p.valu:
        if c.mfma and vw & (c.r | c.srcc): n = max(n, 2)
        if c.mfma and ("s", "exec") in sw: n = max(n, 4)
        if p.trans and (c.valu or c.ds or c.vmem) and not c.trans and vw & c.r: n = max(n, 1)
        if p.trans and c.trans and vw & c.r: n = max(n, 1)
        if "permlane" in c.op and vw & c.r: n = max(n, 2)
        if "_dpp" in c.op and vw & c.r: n = max(n, 2)
        if c.op.startswith(("v_readlane", "v_readfirstlane")) and vw & c.r: n = max(n, 1)
        if c.vmem and sw & c.r: n = max(n, 5)
        if c.valu and sw & c.r: n = max(n, 2)
    if p.op.startswith("v_dot") and vw & (c.r | c.w) and not (c.op == p.op and not (vw & (regs(c.ops[1]) | regs(c.ops[2])))): n = max(n, 3)
    if p.salu and ("s", "m0") in p.w and c.lds_dma: n = max(n, 1)
    if p.sdata and p.sdata & c.w: n = max(n, 2)
    return n

def check(lines, name=""):
    ins = [I(l) for l in lines if l.strip() and not l.strip().endswith(":") and not l.strip().startswith((";", "."))]
    bad = 0
    for j, c in enumerate(ins):
        dist = 0
        for i in range(j - 1, max(-1, j - 24), -1):
            p = ins[i]; n = need(p, c)
            if n > dist:
                print(f"HAZARD {name}: need {n} have {dist}:\n   {p.txt}\n   {c.txt}"); bad += 1
            dist += p.states
    vm = []; lg = []
    for c in ins:
        if c.op == "s_waitcnt":
            m = re.search(r"vmcnt\((\d+)\)", c.txt)
            if m: n = int(m.group(1)); assert n <= 63, c.txt; vm = vm[len(vm) - n:] if n < len(vm) else vm; vm = vm if n else []
            m = re.search(r"lgkmcnt\((\d+)\)", c.txt)
            if m:
                n = int(m.group(1)); assert n <= 15, c.txt
                if n and any(x.salu for x in lg): pass
                else: lg = lg[len(lg) - n:] if n < len(lg) else lg; lg = lg if n else []
            continue
        for q in vm + lg:
            if q.w & (c.r | c.srcc | c.w) and not (q.ds and c.ds and not (q.w & c.r)) and not (q.vmem and c.vmem and not (q.w & c.r)):
                print(f"UNWAITED {name}:\n   {q.txt}\n   {c.txt}"); bad += 1
        if c.vmem: vm.append(c)
        if c.ds or c.op.startswith(("s_load", "s_memtime", "s_memrealtime")): lg.append(c)
    return bad

def fix(lines):
    L = list(lines); forced = 0
    def isins(l):
        t = l.strip(); return t and not t.endswith(":") and not t.startswith((";", "."))
    cache = {}
    def parse(l):
        if l not in cache: cache[l] = I(l)
        return cache[l]
    j = 0
    while j < len(L):
        if not isins(L[j]): j += 1; continue
        c = parse(L[j]); dist = 0; i = j - 1; seen = 0; idles = []; redo = False
        while i >= 0 and seen < 24:
            if L[i].strip() in (";idle", ";sfree"): idles.append(i)
            elif isins(L[i]):
                p = parse(L[i]); n = need(p, c)
                if n > dist:
                    k = n - dist
                    for x in idles[:k]: L[x] = "    s_nop 0"
                    k -= min(k, len(idles))
                    if k: L.insert(j, f"    s_nop {k-1}"); forced += k
                    redo = True; break
                dist += p.states; seen += 1
            i -= 1
        if not redo: j += 1
    return [l for l in L if l.strip() not in (";idle", ";sfree")], forced

def autowait(lines):
    L = list(lines); lg = []; paid = 0
    def isins(l):
        t = l.strip(); return t and not t.endswith(":") and not t.startswith((";", "."))
    j = 0
    while j < len(L):
        if not isins(L[j]): j += 1; continue
        c = I(L[j])
        if c.op == "s_waitcnt":
            m = re.search(r"lgkmcnt\((\d+)\)", c.txt)
            if m:
                n = int(m.group(1)); lg = lg[len(lg) - n:] if 0 < n < len(lg) else ([] if n == 0 else lg)
            j += 1; continue
        hit = [k for k, (q, pos) in enumerate(lg) if q.w & (c.r | c.srcc | c.w) and not (c.ds and not (q.w & c.r))]
        if hit:
            k = max(hit); i = j - 1; slot = None
            while i > lg[k][1]:
                if L[i].strip() == ";sfree": slot = i; break
                if isins(L[i]) and I(L[i]).mfma: break
                i -= 1
            smem = any(q.salu for q, _ in lg)
            if slot is not None:
                n = 0 if smem else min(12, sum(1 for q, pos in lg[k+1:] if pos < slot))
                before = [x for x in lg if x[1] < slot]; after = [x for x in lg if x[1] > slot]
                L[slot] = f"    s_waitcnt lgkmcnt({n})"
                lg = (before[len(before) - n:] if n else []) + after
            else:
                n = 0 if smem else min(12, len(lg) - 1 - k)
                L.insert(j, f"    s_waitcnt lgkmcnt({n})"); paid += 1
                lg = lg[len(lg) - n:] if n else []
                j += 1
            continue
        if c.ds or c.op.startswith(("s_load", "s_memtime", "s_memrealtime")): lg.append((c, j))
        j += 1
    return L, paid
```

```python
import sys
from gen2 import *
import gen2
OBASE, PART, FL = 0, 16 << 20, 48 << 20
W0, W1, XB = 98304, 0, 65536
vOR0, vOR1, vXO, vXDM = vWR, vKR, vXR, vXD
vRDY, vPOL, vPA = 29, 30, 10
sSRC, sOP, sOS, sF1, sDX, sOK, sRB, sW8K = 8, 12, 66, 15, 16, 17, 18, 19
sPS = 69
sSEL = 3
aF = 128
PRE = 6
vRW, vRR, vPSA, vF = vT, vT + 1, vT + 4, vVR
sF2 = sRET

class Tail:
    def __init__(self, C, name, grp, A, vm, stubs):
        self.C, self.name, self.grp, self.A, self.vm, self.stubs = C, name, grp, A, vm, stubs
        self.tag = f"{name}_{grp}"
        self.NT = 10 if grp == "a" else 8
        self.X = [0, 2, 1, 3] if grp == "a" else [0, 1, 3, 2]
        self.pre = 3 if grp == "a" else 4
        self.nl = 0

    def start(self):
        if self.grp != "b": return
        self.A(f"""s_cmp_eq_u32 s{sHKV}, 1
        s_cselect_b32 s{sT0}, 20, 0
        v_cmp_gt_u32 vcc, s{sT0}, v0
        v_lshlrev_b32 v{vT}, 9, v0
        v_mov_b32 v{vT+1}, {OOB}
        v_mov_b32 v{vQ}, 0
        v_mov_b32 v{vQ+1}, 0
        v_mov_b32 v{vQ+2}, 0
        v_mov_b32 v{vQ+3}, 0
        v_cndmask_b32 v{vT}, v{vT+1}, v{vT}, vcc
        v_cndmask_b32 v{vQ+4}, v{vT+1}, v{vQ}, vcc
        s_mul_i32 s{sT0}, s{sB}, 10240
        s_add_u32 s{sT0}, s{sT0}, {FL}
        buffer_store_dwordx4 {r4('v', vQ)}, v{vT}, s[{SWS}:{SWS+3}], s{sT0} offen sc1""")
        self.vm.add("clr")
    def ready(self):
        self.A(f"s_lshl_b32 s{sRB}, s{sB}, 2")
        if self.grp != "b": return
        self.A(f"v_mov_b32 v{vQ+5}, 1\nbuffer_store_dword v{vQ+5}, v{vQ+4}, s[{SDBG}:{SDBG+3}], s{sRB} offen sc1")
        self.vm.add("clr")

    def setup_ops(self):
        t = vT + 2
        a = self.grp == "a"
        o = f"""v_lshrrev_b32 v{t}, 4, v2
        v_mul_u32_u24 v{t}, {1152 - 256}, v{t}
        v_add_u32 v{vWD}, v{vVD}, v{t}
        v_add_u32 v{vWD+1}, v{vVD+1}, v{t}
        v_add_u32 v{vWD+2}, {2*(4608-1024)}, v{vWD}
        v_add_u32 v{vWD+3}, {3*(4608-1024)}, v{vWD+1}
        v_add_u32 v{vWD+1}, {4608-1024}, v{vWD+1}
        s_lshl_b32 s{sW8K}, s{sW}, 13
        s_lshr_b32 s{sT2}, s{sJ}, 1
        s_mul_i32 s{sT2}, s{sT2}, {384 if a else 256}
        s_add_u32 s{sPS+6}, s{sT2}, {512 if a else 0}
        s_mul_i32 s{sT2}, s{sW}, {64*1152}
        s_add_u32 s{sT2}, s{sT2}, s{sPS+6}"""
        for k, x in enumerate(self.X):
            o += f"\ns_xor_b32 s{sSRC+k}, s{sJ}, {x}\ns_mul_i32 s{sSRC+k}, s{sSRC+k}, {256*1152}\ns_add_u32 s{sSRC+k}, s{sSRC+k}, s{sT2}"
        o += f"""
        s_lshl_b32 s{sT2}, s{sB}, 4
        s_add_u32 s{sT2}, s{sT2}, s{sHKV}
        s_lshl_b32 s{sT2}, s{sT2}, 2
        s_add_u32 s{sT2}, s{sT2}, s{sW}
        s_mul_i32 s{sOP}, s{sT2}, 10240
        s_add_u32 s{sOP+1}, s{sOP}, 4096
        s_add_u32 s{sOP+2}, s{sOP}, 8192"""
        for k in range(1, 4):
            o += f"\ns_xor_b32 s{sOS+k-1}, s{sT2}, {4*self.X[k]}\ns_mul_i32 s{sOS+k-1}, s{sOS+k-1}, 10240"
        o += f"""
        s_lshl_b32 s{sF1}, s{sHG}, 2
        s_add_u32 s{sF1}, s{sF1}, s{sW}
        s_lshl_b32 s{sF1}, s{sF1}, 9
        s_mul_i32 s{sT2}, s{sB}, 10240
        s_add_u32 s{sF1}, s{sF1}, s{sT2}
        s_add_u32 s{sF1}, s{sF1}, {FL}
        v_and_b32 v{vPA}, 3, v2
        v_xor_b32 v{vPA}, s{sJ}, v{vPA}
        v_lshlrev_b32 v{vPA}, 2, v{vPA}
        s_lshl_b32 s{sT2}, s{sS}, 7
        s_lshl_b32 s{sDX}, s{sW}, 6
        s_xor_b32 s{sT2}, s{sT2}, s{sDX}
        v_xor_b32 v{vOR0}, s{sT2}, v{vVR}
        s_lshl_b32 s{sT2}, s{sH}, 14
        s_add_u32 s{sT2}, s{sT2}, {W0 - vslot(0)}
        v_add_u32 v{vOR0}, s{sT2}, v{vOR0}"""
        for k in range(1, 8): o += f"\nv_xor_b32 v{vOR0+k}, {32*k}, v{vOR0}"
        if a:
            o += f"""
            s_lshr_b32 s{sDX}, s{sJ}, 1
            s_mul_i32 s{sDX}, s{sDX}, -320
            s_add_u32 s{sDX}, s{sDX}, 256
            v_lshrrev_b32 v{t}, 2, v2
            v_mul_u32_u24 v{t}, 1152, v{t}
            v_bfe_u32 v{t+1}, v2, 4, 1
            v_lshlrev_b32 v{t+1}, 1, v{t+1}
            v_and_b32 v{t+2}, 3, v2
            v_xor_b32 v{t+2}, v{t+2}, v{t+1}
            v_lshl_add_u32 v{vXDM}, v{t+2}, 4, v{t}
            v_add_u32 v{vXDM+1}, {16*1152-1024}, v{vXDM}
            v_lshrrev_b32 v{t}, 2, v2
            v_lshlrev_b32 v{t}, 6, v{t}
            v_lshl_add_u32 v{t}, v{t+1}, 4, v{t}
            v_and_b32 v{t+2}, 3, v2
            v_lshl_add_u32 v{t}, v{t+2}, 3, v{t}
            s_lshl_b32 s{sT2}, s{sW}, 11
            s_add_u32 s{sT2}, s{sT2}, {XB}
            v_add_u32 v{vXO}, s{sT2}, v{t}
            v_xor_b32 v{vXO+1}, 32, v{vXO}
            v_xor_b32 v{vXO+2}, 2048, v{vXO}
            v_xor_b32 v{vXO+3}, {2048+32}, v{vXO}"""
        return [x.strip() for x in o.split("\n") if x.strip()]

    def before_attention(self):
        A, C = self.A, self.C
        if self.grp == "a" and C.wot == 2:
            t = vT + 2
            A(f"""v_lshrrev_b32 v{t}, 2, v0
            v_mul_u32_u24 v{t}, 1152, v{t}
            v_and_b32 v{t+1}, 3, v0
            v_lshl_add_u32 v{vE}, v{t+1}, 7, v{t}
            s_and_b32 s{sT0}, s{sB}, 7
            s_lshl_b32 s{sT0}, s{sT0}, 1
            s_lshr_b32 s{sT2}, s{sJ}, 1
            s_add_u32 s{sT0}, s{sT0}, s{sT2}
            s_mul_i32 s74, s{sT0}, 73728
            s_add_u32 s73, s74, 512
            v_add_u32 v{vE+1}, 1024, v{t}
            v_cmp_eq_u32 vcc, 0, v{t+1}
            v_mov_b32 v{t}, {OOB}
            s_nop 0
            v_cndmask_b32 v{vE+1}, v{t}, v{vE+1}, vcc""")
        if self.grp == "a" and C.wot == 1:
            t = vT + 2
            A(f"""v_lshlrev_b32 v{t}, 7, v0
            s_and_b32 s{sT0}, s{sB}, 7
            s_lshl_b32 s{sT0}, s{sT0}, 1
            s_lshr_b32 s{sT2}, s{sJ}, 1
            s_add_u32 s{sT0}, s{sT0}, s{sT2}
            s_mul_i32 s{sU+66-8+8}, s{sT0}, 73728
            v_cmp_gt_u32 vcc, 192, v0
            v_mov_b32 v{t+1}, {OOB}
            s_nop 0
            v_cndmask_b32 v{vE}, v{t+1}, v{t}, vcc""")

    def loc(self, c):
        k, u = c >> 1, c & 1
        if k & 1: return (u ^ 1) * 32768, W1, u * 8192
        return u * 32768, W0, 16384 + u * 8192
    def dma(self, c):
        k, u = c >> 1, c & 1; off, win, xo = self.loc(c); gs = []
        for g in range(2):
            gs.append([f"s_add_u32 m0, s{sW8K}, {win + off + g*4096}", f"s_add_u32 s{sT1}, s{sSRC+k}, {(u*32 + 16*g)*1152}"]
                      + [f"buffer_load_dwordx4 v{vWD+a}, s[{SWO}:{SWO+3}], s{sT1} offen offset:{a*1024} lds" for a in range(4)])
        if self.grp == "a":
            gs.append([f"s_lshl_b32 m0, s{sW}, 11\ns_add_u32 m0, m0, {XB + xo}", f"s_add_u32 s{sT1}, s{sSRC+k}, {u*32*1152}\ns_add_u32 s{sT1}, s{sT1}, s{sDX}"]
                      + [f"buffer_load_dwordx4 v{vXDM+a}, s[{SWO}:{SWO+3}], s{sT1} offen offset:{a*1024} lds" for a in range(2)])
        return gs
    def oloads(self, k, sreg):
        return [f"buffer_load_dwordx4 {r4('a', 40*(k-1)+4*n)}, v{(3, vKD, vKD+1)[n >> 2]}, s[{SWS}:{SWS+3}], s{sreg} offen offset:{(n & 3)*1024} {self.C.lf}"
                for n in (0, 4, 8, 2, 6, 1, 5, 9, 3, 7)]
    def poll_txt(self): return f"buffer_load_dword v{vPOL}, v{vPA}, s[{SWS}:{SWS+3}], s{sF1} offen sc1"
    def flag_txt(self): return f"s_mov_b64 exec, 1\nbuffer_store_dword v{vRDY}, v{vPA}, s[{SWS}:{SWS+3}], s{sF1} offen {self.C.of}\ns_mov_b64 exec, -1"
    def spin(self, lab, mask):
        return f"""s_mov_b32 s{sCNT}, 0
        {lab}_p:
        {self.poll_txt()}
        s_add_u32 s{sCNT}, s{sCNT}, 1
        s_waitcnt vmcnt(0)
        v_cmp_ne_u32 vcc, 1, v{vPOL}
        s_cmp_ge_u32 s{sCNT}, {SPIN}
        s_cbranch_scc1 {lab}_q
        s_and_b32 s{sT2}, vcc_lo, {mask}
        s_cbranch_scc1 {lab}_p
        {lab}_q:"""
    def acquire(self, ops, mask, gp, gc, first=()):
        self.nl += 1; lab = f"{self.tag}_aq{self.nl}"
        p = Op(self.poll_txt(), "L", lo=gp, dl=gp + 2, after=list(first)); p.tag = lab
        w = waitop([lab], lo=gc - 2, dl=gc - 2, after=[p])
        c = Op(f"v_cmp_ne_u32 vcc, 1, v{vPOL}", "v", lo=gc - 2, dl=gc - 2, same=[w])
        b = Op(f"s_and_b32 s{sT2}, vcc_lo, {mask}\ns_cbranch_scc1 {lab}\n{lab}_r:", "b", lo=gc, dl=gc, after=[c])
        ops += [p, w, c, b]
        self.stubs.append(f"{lab}:\n{self.spin(lab, mask)}\ns_branch {lab}_r")
        return b

    def hook(self, ops, ch, i, G, gate):
        C = self.C
        if i == 0:
            prev = None; su = self.setup_ops()
            for n, t in enumerate(su):
                prev = Op(t, "s" if t[0] == "s" else "v", lo=30, dl=400 - 3 * (len(su) - n), pri=10**5, after=[prev]); ops.append(prev)
        if self.grp == "a" and C.wot == 2 and i == 0:
            o = Op(f"buffer_load_dword v255, v{vE}, s[{SWO}:{SWO+3}], s74 offen", "L", lo=C.wb, dl=C.wb + 6); o.tag = "touch"; ops.append(o)
            if C.wa >= 0:
                o = Op(f"buffer_load_dword v255, v{vE}, s[{SWO}:{SWO+3}], s73 offen", "L", lo=C.wa, dl=C.wa + 6); o.tag = "touch"; ops.append(o)
                o = Op(f"buffer_load_dword v255, v{vE+1}, s[{SWO}:{SWO+3}], s74 offen", "L", lo=C.wa + 8, dl=C.wa + 14); o.tag = "touch"; ops.append(o)
        if self.grp == "a" and C.wot == 1 and i in (1, 2, 3):
            o = Op(f"buffer_load_dword v{vE+i}, v{vE}, s[{SWO}:{SWO+3}], s74 offen\ns_add_u32 s74, s74, 24576", "L", lo=G + 40, dl=G + 60); o.tag = "touch"; ops.append(o)
        if i == 4:
            o = Op(f"buffer_load_dword v{vRDY}, v1, s[{SDBG}:{SDBG+3}], s{sRB} offen sc1", "L", lo=G + 93, dl=G + 96); o.tag = "rdy"; ops.append(o)
            lab = f"{self.tag}_rdy"
            w = waitop(["rdy"], lo=G + 161, dl=G + 163, after=[o])
            c = Op(f"v_cmp_ne_u32 vcc, 1, v{vRDY}", "v", lo=G + 162, dl=G + 170, after=[w])
            b = Op(f"s_cbranch_vccnz {lab}\n{lab}_r:", "b", lo=G + 164, dl=G + 178, after=[c], dist=2)
            ops += [w, c, b]; self.rdyok = b
            self.stubs.append(f"""{lab}:
            s_mov_b32 s{sCNT}, 0
            {lab}_p:
            buffer_load_dword v{vRDY}, v1, s[{SDBG}:{SDBG+3}], s{sRB} offen sc1
            s_add_u32 s{sCNT}, s{sCNT}, 1
            s_waitcnt vmcnt(0)
            v_cmp_ne_u32 vcc, 1, v{vRDY}
            s_cmp_ge_u32 s{sCNT}, {SPIN}
            s_cbranch_scc1 {lab}_r
            s_cbranch_vccnz {lab}_p
            s_branch {lab}_r""")
            ch.group(ops, self.dma(0)[0], ("wo", 0), [G + g for g in C.dg[4:]], first=[gate])
        if i == 5:
            ch.group(ops, self.dma(0)[1], ("wo", 0), [G + g for g in C.dg[:4]], first=[gate])
            ch.group(ops, self.dma(1)[0], ("wo", 1), [G + g for g in C.dg[4:]], first=[gate])
        if i == 6:
            ch.group(ops, self.dma(1)[1], ("wo", 1), [G + g for g in C.dg[:4]], first=[gate])
            ch.group(ops, self.dma(2)[0], ("wo", 2), [G + g for g in C.dg[4:]], first=[gate])
            ch.group(ops, self.dma(2)[1], ("wo", 2), [G + 85 + g for g in (12, 18, 24, 30)], first=[gate])
            if self.grp == "a":
                ch.group(ops, self.dma(0)[2], ("wo", 0), [G + 85 + g for g in (38, 46)], first=[gate])
                ch.group(ops, self.dma(1)[2], ("wo", 1), [G + 85 + g for g in (54, 62)], first=[gate])
            else:
                ch.group(ops, self.dma(3)[0], ("wo", 3), [G + 85 + g for g in (38, 48, 58, 68)], first=[gate])
                ch.group(ops, self.dma(3)[1], ("wo", 3), [G + 85 + g for g in (76, 78, 80, 82)], first=[gate])
            prev = None
            for k in range(8):
                prev = Op(f"v_xor_b32 v{vOR1+k}, 8192, v{vOR0+k}", "v", lo=G + 76, dl=G + 165, after=[gate]); ops.append(prev)
        if i == 7 and self.grp == "b":
            p = Op(self.poll_txt(), "L", lo=G + 84, dl=G + 84, after=[self.rdyok]); p.tag = "pol1"; ops.append(p)
            w = Op("s_waitcnt lgkmcnt(0)", "s", lo=G + 62, dl=G + 64)
            ops += [w, Op("s_barrier", "b", lo=G + 63, dl=G + 75, after=[w])]

    def run(self):
        A, C, vm, NT, tag = self.A, self.C, self.vm, self.NT, self.tag
        a = self.grp == "a"
        gen2.EXB = 0 if a else 65536
        gen2.SAFEK = 0 if a else 81920
        def store(k, p):
            A(f"buffer_store_dwordx4 {r4('v', ob(k, p))}, v3, s[{SWS}:{SWS+3}], s{sOP+k} offen offset:{p*1024} {C.of}"); vm.add("ost")
        def prebar():
            n = vm.wait("pol1", *[("wo", c) for c in range(self.pre)])
            return f"vmcnt({n}) " if n is not None else ""
        def checked():
            for n in range(PRE):
                for uu in range(2): A(self.rd((0, 0, 0, n), n, uu))
        self.stubs.append(normalise(A, C, tag, self.name, store, prebar, checked))
        if not a:
            A(f"""v_cmp_ne_u32 vcc, 1, v{vPOL}
            s_nop 0
            s_and_b32 s{sOK}, vcc_lo, 10
            s_cselect_b32 s{sSEL}, {OOB}, s{sOS}""")
        A(f"v_add_u32 v{vKD}, 4096, v3\nv_add_u32 v{vKD+1}, 8192, v3")
        stamp(A, C, 6)
        kept = lambda k, t: (k == 0) if t >= 8 else (t < 4 if k < 2 else t < 2)
        pool = [vS + 4*i for i in range(10)] + [vO + 80 + 4*i for i in range(4)] + [vO + 8*i + 4 for i in range(4)]
        areg = {}
        for t in range(NT):
            for k in range(3):
                if kept(k, t): areg[(k, t)] = vQ + 40 + 4*(t-8) if t >= 8 else vQ + 16*k + 4*t
                else: areg[(k, t)] = pool.pop(0)
        acc = lambda k, t: r4("v", areg[(k, t)])
        def bfr(s_, k, p): return r4("v", ob(k, p)) if s_ == 0 else r4("a", 40*(s_-1) + 4*(4*k + p))
        frags = []
        NO = C.na if a else C.no
        for c in range(NO):
            for z in range(2):
                for t in range(NT): frags.append((c >> 1, c & 1, z, t))
        for t in reversed(range(NT)):
            for u in range(NO - 6, 2):
                for z in range(2): frags.append((3, u, z, t))
        NR = 32
        mf = []; first = []; lastuse = []; done = {}
        for n, (s_, u, z, t) in enumerate(frags):
            first.append(len(mf))
            for k in range(3 - z):
                d = acc(k, t)
                mf.append(f"{MF} {d}, {r4('a', aF + 4*(n % NR))}, {bfr(s_, k, 2*z + u)}, {'0' if n < NT else d}")
                done[(k, t)] = len(mf) - 1
            lastuse.append(len(mf) - 1)
        E = len(mf); CH = 5 * NT
        ops = []; ch = Chain(); bars = {}; vis = {}
        LEAD = C.lead
        b1 = Op("s_barrier", "b", lo=6, dl=8)
        if a: ops.append(b1)
        for c in (1, 2, 3, 4, 6):
            g = CH * c - 1
            need = [c + 1] if (a or c + 1 >= self.pre) and c + 1 < 6 else []
            w = waitop([("wo", x) for x in need], lo=g - 1, dl=g - 1)
            bars[c] = Op("s_barrier", "b", lo=g, dl=g, after=[w]); ops += [w, bars[c]]
            for x in need: vis[x] = bars[c]
        for c in sorted({6, NO}):
            g = CH * c - LEAD - 1; need = [6, 7] if NO == 6 else [c]
            w = waitop([("wo", x) for x in need], lo=g - 1, dl=g - 1)
            o = Op("s_barrier", "b", lo=g, dl=g, after=[w]); ops += [w, o]
            for x in need: vis[x] = o
        last = None; lastrd = {}
        for n in range(PRE, len(frags)):
            s_, u, z, t = frags[n]
            dep = []
            if t < 8 and s_ and lastrd[(z, t)][1] != s_:
                r = (vOR1 if z else vOR0) + t
                tg = Op(f"v_add_u32 v{r}, {(W1 - W0) & 0xffffffff if s_ & 1 else W0 - W1}, v{r}", "v", dl=first[n] - LEAD - 1, after=[lastrd[(z, t)][0]]); ops.append(tg); dep = [tg]
            ld = LEAD + (C.rush if s_ == 3 and first[n] >= NO * CH else 0) * (first[n] - NO * CH) // 10
            for uu in range(2):
                last = Op(self.rd(frags[n], n % NR, uu), "d", lo=max(lastuse[n - NR] if n >= NR else 0, first[n] - ld), dl=first[n] - 7, pri=first[n] - 30, same=[last, vis.get(2*s_ + u)], after=dep); ops.append(last)
            lastrd[(z, t)] = (last, s_)
        fg = C.fg
        wst = waitop(["ost"], lo=fg, dl=fg)
        fl = Op(self.flag_txt(), "L", lo=fg + 1, dl=fg + 1, after=[wst]); fl.tag = "flag"; ops += [wst, fl]
        pos = [1.0]
        def place(n, rate):
            g = []
            for _ in range(n): g.append(int(pos[0])); pos[0] += rate
            return g
        def chunk(c, after, lo, rate):
            pos[0] = max(pos[0], lo)
            for x in self.dma(c): ch.group(ops, x, ("wo", c), place(len(x) - 2, rate), first=after)
        def loads(k, after, lo, rate, sreg=None, part=slice(0, 10), waits=True):
            pos[0] = max(pos[0], lo); prev = after
            x = list(enumerate(self.oloads(k, sOS + k - 1 if sreg is None else sreg)))[part]
            for (n, t), g in zip(x, place(len(x), rate)):
                prev = Op(t, "L", lo=g, dl=g, after=[prev]); prev.tag = ("o", k, n); ops.append(prev)
                nd = {2: 0, 4: 3*NT, 7: CH, 9: CH + 3*NT}.get(n)
                if k == 3: nd = {9: 0}.get(n) if NO == 6 else {2: 0, 4: 3*NT, 9: CH}.get(n)
                if waits and nd is not None:
                    assert g < 2*k*CH + nd - 3, (k, n, g)
                    ops.append(waitop([prev.tag], lo=2*k*CH + nd - 3, dl=2*k*CH + nd - 3, after=[prev]))
            return prev
        R = C.lr
        if a:
            x = self.dma(2)[2]; pos[0] = 3; ch.group(ops, x, ("wo", 2), place(2, R))
            chunk(3, [b1], 10, R)
            q = self.acquire(ops, 4, C.aq - 22, C.aq, first=[fl])
            p = loads(1, q, C.aq + 2, R, part=slice(0, 5))
            chunk(4, [bars[1]], 0, R)
            loads(1, p, 0, R, part=slice(5, 10))
            chunk(5, [bars[2]], 0, R)
            q = self.acquire(ops, 2, 4*CH - C.a2 - 22, 4*CH - C.a2, first=[q])
            p = loads(2, q, 4*CH - C.a2 + 2, 3)
            chunk(6, [bars[3]], 0, R)
            g = int(pos[0])
            q = self.acquire(ops, 8, g - 24, g - 2, first=[q])
            p = loads(3, q, 0, R, part=slice(0, 5))
            chunk(7, [bars[4]], 0, R)
            loads(3, p, 0, R, part=slice(5, 10))
        else:
            lab = f"{tag}_late"
            l1 = loads(1, None, 2, R, sSEL, waits=False)
            lg = max(int(pos[0]) - 2, fg + 2)
            b = Op(f"s_cmp_lg_u32 s{sOK}, 0\ns_cbranch_scc1 {lab}\n{lab}_r:", "b", lo=lg, dl=lg, after=[fl, l1]); ops.append(b)
            self.stubs.append(f"{lab}:\n{self.spin(lab, 10)}\n" + "\n".join(self.oloads(1, sOS)) + f"\ns_branch {lab}_r")
            ops.append(waitop(["flag", l1.tag], lo=2*CH - 3, dl=2*CH - 3, after=[b]))
            chunk(4, [bars[1], b], lg + 2, R)
            chunk(5, [bars[2]], 2*CH + 1, R)
            p = loads(2, b, 0, R)
            q = self.acquire(ops, 4, C.pg, C.pg + 30, first=[b])
            chunk(6, [bars[3]], 0, R)
            p = loads(3, q, C.pg + 32, R, part=slice(0, 5))
            chunk(7, [bars[4]], 0, R)
            loads(3, p, 0, R, part=slice(5, 10))
        print(f"{self.grp} last load gap", pos[0], file=sys.stderr)
        if C.sg:
            for n, c in enumerate((2, 4, 6)): ops.append(Op(stamp_txt(C, 1 + n), "s", lo=c*CH - 30, dl=c*CH - 26))
            ops.append(Op(stamp_txt(C, 4), "s", lo=E - 14, dl=E - 12))
        prev = None
        for t in self.reduce_setup() + self.final_setup():
            prev = Op(t, "s" if t[0] == "s" else "v", lo=9, pri=10**4, after=[prev]); ops.append(prev)
        sent = ([(2, 4, 8), (1, 4, 7)] if a else []) + [(2, 3, 6), (0, 3, 1), (1, 3, 3), (2, 2, 5), (0, 2, 0), (1, 2, 2), (2, 1, 4)]
        wr = []
        for k, P, idx in sent:
            x, y = areg[(k, 2*P)], areg[(k, 2*P + 1)]; lo = done[(k, 2*P)] + 4
            p = prev
            for d, s0 in ((x, x), (x + 1, x + 2), (x + 2, y), (x + 3, y + 2)):
                p = Op(f"v_cvt_pk_bf16_f32 v{d}, v{s0}, v{s0+1}", "v", lo=lo, dl=lo + 3, same=[p]); ops.append(p)
            o = Op(f"ds_write_b128 v{vRW}, {r4('v', x)} offset:{idx*1024}", "L", lo=lo + 2, dl=lo + 5, after=[p, bars[6]]); ops.append(o); wr.append(o)
        ge = min(max(o.dl for o in wr) + 1, E - 2)
        ww = Op("s_waitcnt lgkmcnt(0)", "s", lo=ge, dl=ge, after=wr + [last])
        bw = Op("s_barrier", "b", lo=ge + 1, dl=ge + 1, after=[ww]); ops += [ww, bw]
        units = [(0, 1, sPS + 1, [(2, 3)]), (1, 1, sPS + 3, [(2, 1)])] + ([(0, 4, sOP, [(2, 7)])] if a else [])
        units += [(0, 0, sPS, [(2, 2)]), (1, 0, sPS + 2, [(2, 0)]), (2, 0, sPS + 4, [(1, 4), (2, 5), (3, 6)])]
        prev = bw; tmp = [vO + 8*i for i in range(10)]; src = []
        for k, P, so, fr in units:
            src.append([])
            for x, idx in fr:
                r = tmp.pop(0); src[-1].append(r)
                prev = Op(f"ds_read_b128 {r4('v', r)}, v{vRR + x - 1} offset:{idx*1024}", "d", dl=E - 1, same=[prev]); ops.append(prev)
        out, over, idle = schedule(mf, ops)
        print(f"outproj {self.grp}: overflow {over} idle {idle}", file=sys.stderr)
        for o in out:
            if isinstance(o, str): continue
            if "W" in C.abl2 and o.txt.startswith("ds_write"): o.txt = "s_nop 0"
            if "L" in C.abl2 and o.txt.startswith("buffer_load_dwordx4"): o.txt = "s_nop 0"; o.tag = None
        emit(A, vm, out)
        def dots(x, rs, zero=False):
            for j, r in enumerate(rs):
                for i in range(8): A(f"v_dot2_f32_bf16 v{x+i}, v{r+(i>>1)}, s{sQS+(i&1)}, {'0' if zero and j == 0 else f'v{x+i}'}")
        p1 = p2 = None
        def finish(x): return pack(A, x, x + 4, x, None, True)
        for n in range(len(units) + 2):
            if n < len(units): dots(areg[(units[n][0], 2*units[n][1])], src[n])
            sw = finish(p1[0]) if p1 else None
            if p2:
                for t in p2[0]: A(t)
                A(f"buffer_store_dwordx4 {r4('v', p2[1])}, v{vPSA}, s[{SWS}:{SWS+3}], s{p2[2]} offen sc1")
            p2 = (sw, p1[0], p1[1]) if p1 else None
            p1 = (areg[(units[n][0], 2*units[n][1])], units[n][2]) if n < len(units) else None
        if a:
            A(f"s_cmp_lg_u32 s{sW}, 3\ns_cbranch_scc1 {tag}_nx")
            for n, rg in enumerate((vRW, vRR, vRR + 1, vRR + 2)): A(f"ds_read_b128 {r4('v', vO + 8*n)}, v{rg} offset:8192")
            A("s_waitcnt lgkmcnt(0)")
            dots(vS, [vO + 8*n for n in range(4)], True)
            for t in finish(vS): A(t)
            A(f"buffer_store_dwordx4 {r4('v', vS)}, v{vPSA}, s[{SWS}:{SWS+3}], s{sOP+1} offen sc1\n{tag}_nx:")
        self.final()

    def rd(self, fr, slot, uu):
        s_, u, z, t = fr; off, win, xo = self.loc(2*s_ + u); r = aF + 4*slot + 2*uu
        if t >= 8: return f"ds_read_b64_tr_b16 a[{r}:{r+1}], v{vXO + 2*z + t - 8} offset:{xo + uu*1024}"
        return f"ds_read_b64_tr_b16 a[{r}:{r+1}], v{(vOR1 if z else vOR0) + t} offset:{off + uu*4096}"

    def reduce_setup(self):
        o = ""
        for x in range(4):
            o += f"s_xor_b32 s{sX0}, s{sW}, {x}\ns_lshl_b32 s{sX0}, s{sX0}, 14\ns_add_u32 s{sX0}, s{sX0}, {W0}\nv_add_u32 v{vRW+x}, s{sX0}, v3\n"
        o += f"""v_bfe_u32 v{vPSA+1}, v2, 4, 1
        v_lshrrev_b32 v{vPSA}, 5, v2
        v_lshl_add_u32 v{vPSA}, v{vPSA+1}, 1, v{vPSA}
        v_lshlrev_b32 v{vPSA}, 4, v{vPSA}
        v_and_b32 v{vPSA+1}, 15, v2
        v_lshl_add_u32 v{vPSA}, v{vPSA+1}, 6, v{vPSA}
        s_lshl_b32 s{sPS+5}, s{sB}, 4
        s_add_u32 s{sPS+5}, s{sPS+5}, s{sHKV}
        s_mul_i32 s{sPS+5}, s{sPS+5}, 25600
        s_add_u32 s{sPS+5}, s{sPS+5}, {PART}
        s_mul_i32 s{sPS+4}, s{sW}, 5120
        s_add_u32 s{sPS+4}, s{sPS+4}, s{sPS+5}
        s_xor_b32 s{sPS+2}, s{sW}, 1
        s_mul_i32 s{sPS+2}, s{sPS+2}, 5120
        s_add_u32 s{sPS+2}, s{sPS+2}, s{sPS+5}
        s_lshl_b32 s{sX0}, s{sS}, 1
        s_add_u32 s{sX0}, s{sX0}, s{sH}
        s_lshl_b32 s{sX0}, s{sX0}, 10
        s_add_u32 s{sPS}, s{sPS+4}, s{sX0}
        s_add_u32 s{sPS+1}, s{sPS+2}, s{sX0}
        s_add_u32 s{sOP}, s{sPS+5}, s{sX0}
        s_add_u32 s{sOP}, s{sOP}, 20480
        s_xor_b32 s{sX0}, s{sX0}, 1024
        s_add_u32 s{sPS+3}, s{sPS+2}, s{sX0}
        s_add_u32 s{sPS+2}, s{sPS+4}, s{sX0}
        s_add_u32 s{sPS+4}, s{sPS+4}, 4096
        s_add_u32 s{sOP+1}, s{sPS+5}, {20480 + 4096}
        s_mov_b32 s{sQS}, 0x00003f80
        s_mov_b32 s{sQS+1}, 0x3f800000"""
        return [x.strip() for x in o.split("\n") if x.strip()]

    def final_setup(self):
        a = self.grp == "a"; NP = 400 if a else 320
        t = vF + 5
        o = f"""s_mul_i32 s{sX0}, s{sHG}, {NP}
        v_add_u32 v{vF}, s{sX0}, v0
        v_add_u32 v{vF+1}, 256, v{vF}
        s_mov_b32 s{sX0}, 52429
        """
        for r in range(2):
            o += f"""v_mul_u32_u24 v{t}, s{sX0}, v{vF+r}
            v_lshrrev_b32 v{t}, 24, v{t}
            v_mul_u32_u24 v{t+1}, 320, v{t}
            v_sub_u32 v{t+1}, v{vF+r}, v{t+1}
            v_lshrrev_b32 v{t+1}, 2, v{t+1}
            v_mul_u32_u24 v{t+1}, 1152, v{t+1}
            v_lshl_add_u32 v{t+1}, v{t}, 6, v{t+1}
            v_add_u32 v{t+1}, s{sPS+6}, v{t+1}
            """
            if a: o += f"""v_lshrrev_b32 v{t}, 2, v{t}
            v_mul_u32_u24 v{t}, s{sJ}, v{t}
            v_mul_u32_u24 v{t}, 160, v{t}
            v_sub_u32 v{t+1}, v{t+1}, v{t}
            """
            o += f"""v_and_b32 v{t}, 3, v{vF+r}
            v_lshl_add_u32 v{vF+2+r}, v{t}, 4, v{t+1}
            v_lshlrev_b32 v{vF+r}, 4, v{vF+r}
            """
        o += f"""v_sub_u32 v{t}, {NP - 257}, v0
        v_and_b32 v{t}, 0x40000000, v{t}
        v_or_b32 v{vF+1}, v{vF+1}, v{t}
        v_or_b32 v{vF+3}, v{vF+3}, v{t}
        s_mul_i32 s{sF2}, s{sB}, 10240
        s_lshl_b32 s{sX0}, s{sJ}, 9
        s_add_u32 s{sF2}, s{sF2}, s{sX0}
        s_add_u32 s{sF2}, s{sF2}, {FL + 16*512}
        v_and_b32 v{vF+4}, 3, v2
        v_xor_b32 v{vF+4}, s{sHG}, v{vF+4}
        v_lshlrev_b32 v{vF+4}, 2, v{vF+4}
        s_lshl_b32 s{sF2+1}, s{sB}, 4
        s_add_u32 s{sF2+1}, s{sF2+1}, s{sJ}
        s_mul_i32 s{sF2+1}, s{sF2+1}, 25600
        s_add_u32 s{sF2+1}, s{sF2+1}, {PART}
        s_mul_i32 s{sOP+2}, s{sB}, 92160"""
        return [x.strip() for x in o.split("\n") if x.strip()]

    def final(self):
        A, C, tag = self.A, self.C, self.tag
        ld = 160
        A(f"v_mov_b32 v{vPA}, v{vF+4}\ns_mov_b32 s{sF1}, s{sF2}")
        stamp(A, C, 7)
        A("s_waitcnt vmcnt(0)\ns_barrier")
        stamp(A, C, 8)
        A(f"""s_cmp_lg_u32 s{sW}, 0
        s_cbranch_scc1 {tag}_sy
        s_mov_b64 exec, 1
        buffer_store_dword v{vRDY}, v{vPA}, s[{SWS}:{SWS+3}], s{sF1} offen sc1
        s_mov_b64 exec, -1
        {self.spin(tag + '_f', 15)}
        {tag}_sy:
        s_barrier""")
        stamp(A, C, 9)
        for p in range(4):
            for r in range(2): A(f"buffer_load_dwordx4 {r4('v', ld+16*r+4*p)}, v{vF+r}, s[{SWS}:{SWS+3}], s{sF2+1} offen sc1")
            if p < 3: A(f"s_add_u32 s{sF2+1}, s{sF2+1}, {4*25600}")
        for p in range(4):
            A(f"s_waitcnt vmcnt({(3-p)*2})")
            for r in range(2):
                for k in range(8):
                    d = 112 + 8 * r + k
                    A(f"v_dot2_f32_bf16 v{d}, v{ld+16*r+4*p+(k>>1)}, s{sQS+(k&1)}, {'0' if p == 0 else f'v{d}'}")
        for r in range(2):
            for k in range(4): A(f"v_cvt_pk_bf16_f32 v{112+8*r+k}, v{112+8*r+2*k}, v{112+8*r+2*k+1}")
            A(f"buffer_store_dwordx4 {r4('v', 112+8*r)}, v{vF+2+r}, s[{SOUT}:{SOUT+3}], s{sOP+2} offen")
        if C.stamps: A("s_waitcnt vmcnt(0)")
        stamp(A, C, 10)
        flush(A, C, self.name)
        A("s_endpgm")
```

```python
import sys, math, struct, json
from asmlib import *
from sched import Op, schedule, ORDER as ORD
import hazard
QSCALE = struct.unpack("<I", struct.pack("<f", math.log2(math.e) / math.sqrt(128.0)))[0]
STAMP = 64 << 20
OOB = 0x7fff0000
SPIN = 200000
MF = "v_mfma_f32_16x16x32_bf16"
LLO, LHI = (127 - 60) << 23, (127 + 60) << 23

SDBG, SX, SK, SV, SWQ, SWO, SWS, SOUT = 4, 20, 24, 28, 32, 36, 40, 44
sW, sH, sS, sJ, sHG, sB, sHKV, sW4K, sX0, sT0, sT1, sT2, sQS, sRET, sSAFE, sCNT = 48, 49, 50, 51, 52, 53, 54, 55, 56, 57, 58, 59, 60, 62, 64, 65
sU = 8
sST = 76
vWD, vXD, vKD, vVD, vWR, vXR, vKR, vVR, vT = 4, 8, 11, 15, 17, 25, 31, 39, 55
vQ, vO, vS, vE = 64, 112, 208, 248
vNEG = 252
aK, aV, aL, aONE = 0, 128, 192, 204
aWA, aWB = 64, 208
XR, WQR, QX = 94208, 114688, 81920
def kslot(i): return (i % 3) * 16384
def vslot(i): return 49152 + (i % 3) * 16384
ORDER = ["K0"] + [x for i in range(7) for x in (f"K{i+1}", f"V{i}")] + ["V7"]
JSLOT, JSET = [0, 1, 2, 0, 1], [0, 0, 0, 1, 1]

class Cfg:
    nact = 256; abl = ""; abl0 = ""; abl2 = ""; wg = 7; cyc = 0; NB = 4; lagb = 0; laga = 0; latev = 0; tlb = 1; wpre = ""; tsh = 16; stamps = 0; tail = "h"; split = 3; touch = "XoWm"; outf = ""; wsp = 0; wp = 0; vz = 0; v0 = 10; v1 = 6; kd = 70; sr = 0; fga = 28; pc = 0; am = 0; a3 = 25; v2 = 0; l0 = 2.6; p1 = 45; afirst = 1
    dg = (76, 78, 80, 82, 85, 87, 89, 91); of = "sc1"; taa = "a540"; tba = "a548"; tab = "b460"; tbb = "b466"; wbb = 460; rn = 1; tf = ""; apre = 2; wa = 540; wb = -1; lf = "sc1"; fg = 28; lr = 4.2; la = 3.4; pd = 1; ps = 4; na = 6; rush = 3; pg = 140; aq = 62; lead = 12; no = 7; sg = 0
    def __init__(self, **kw):
        for k, val in kw.items(): setattr(self, k, val)
        if isinstance(self.dg, str): self.dg = tuple(int(x) for x in self.dg.split('-'))

class VM:
    def __init__(self): self.q = []
    def add(self, tag, n=1): self.q += [tag] * n
    def wait(self, *tags):
        idx = [i for i, t in enumerate(self.q) if t in tags]
        if not idx: return None
        n = len(self.q) - 1 - max(idx)
        self.q = self.q[max(idx) + 1:]
        assert n <= 63
        return n

def srd(A, d, base, off, size):
    if off is None: A(f"s_mov_b32 s{d}, s{base}\ns_mov_b32 s{d+1}, s{base+1}")
    else: A(f"s_add_u32 s{d}, s{base}, {off}\ns_addc_u32 s{d+1}, s{base+1}, 0")
    A(f"s_mov_b32 s{d+2}, {size}\ns_mov_b32 s{d+3}, 0x20000")
def stamp_txt(C, i): return f"{'s_memtime' if C.cyc else 's_memrealtime'} s[{sST+2*i}:{sST+2*i+1}]"
def stamp(A, C, i):
    if C.stamps: A(stamp_txt(C, i))
def r4(p, i): return f"{p}[{i}:{i+3}]"

def emit(A, vm, out):
    for o in out:
        if isinstance(o, str): A(o); continue
        if getattr(o, "want", None) is not None:
            n = vm.wait(*o.want)
            if n is None: A(f"s_waitcnt {o.txt}" if o.txt else ";sfree")
            else: A(f"s_waitcnt vmcnt({n}) {o.txt}")
        else: A(o.txt)
        if getattr(o, "tag", None) is not None: vm.add(o.tag)
def waitop(tags, extra="", **kw):
    o = Op(extra, "s", **kw); o.want = tags; return o
class Chain:
    def __init__(self): self.last = None
    def group(self, ops, x, tag, gaps, first=(), nscal=2):
        prev = self.last
        for t in reversed(x[:nscal]):
            o = Op(t, "s", lo=gaps[0] - 2, dl=gaps[0], pri=gaps[0] - 2, after=[prev] if prev and prev.kind == "L" else [], same=[prev] if prev and prev.kind == "s" else [])
            ops.append(o); prev = o
        for t, gp in zip(x[len(x) - len(gaps):] if nscal == 1 else x[2:], gaps):
            o = Op(t, "L", lo=gp, dl=gp, after=[prev] + list(first))
            o.tag = tag; ops.append(o); prev = o
        self.last = prev
        return prev

def prologue(A, C, name):
    A(f"""s_load_dwordx16 s[4:19], s[0:1], 0
    s_cmp_ge_u32 s2, {C.nact}
    s_cbranch_scc1 {name}_end""")
    stamp(A, C, 0)
    A(f"""v_lshrrev_b32 v1, 6, v0
    v_and_b32 v2, 63, v0
    v_readfirstlane_b32 s{sW}, v1
    s_and_b32 s{sHG}, s2, 3
    s_bfe_u32 s{sJ}, s2, 0x20003
    s_lshr_b32 s{sB}, s2, 5
    s_bfe_u32 s{sT0}, s2, 0x10002
    s_lshl_b32 s{sT0}, s{sT0}, 3
    s_add_u32 s{sB}, s{sB}, s{sT0}
    s_lshl_b32 s{sHKV}, s{sHG}, 2
    s_add_u32 s{sHKV}, s{sHKV}, s{sJ}
    s_lshr_b32 s{sH}, s{sW}, 1
    s_and_b32 s{sS}, s{sW}, 1
    s_lshl_b32 s{sW4K}, s{sW}, 12""")

def code_touch(A, name):
    A(f"""s_getpc_b64 s[{sRET}:{sRET+1}]
    {name}_pc:
    s_sub_u32 s{sRET}, s{sRET}, {name}_pc-{name}_kernel
    s_subb_u32 s{sRET+1}, s{sRET+1}, 0
    s_lshr_b32 s{sT0}, s2, 4
    v_lshl_add_u32 v1, v0, 4, s{sT0}
    v_lshlrev_b32 v1, 7, v1
    v_min_u32 v1, {name}_hot-{name}_kernel-4, v1
    s_cmp_lg_u32 s{sW}, 0
    s_cbranch_scc1 {name}_nc
    global_load_dword v255, v1, s[{sRET}:{sRET+1}]
    {name}_nc:""")

def w_addresses(A):
    t = vT
    A(f"""s_mul_i32 s{sX0}, s{sW}, 2560
    s_add_u32 s{sX0}, s{sX0}, {XR}
    v_lshrrev_b32 v{t}, 4, v2
    v_and_b32 v{t+1}, 15, v2
    v_lshlrev_b32 v{t+2}, 1, v{t}
    v_xor_b32 v{t+2}, v{t+1}, v{t+2}
    v_lshlrev_b32 v{t+2}, 4, v{t+2}
    v_lshl_add_u32 v{vWD}, v{t}, 13, v{t+2}
    v_xor_b32 v{vWD+2}, 128, v{vWD}
    v_add_u32 v{vWD+1}, {4*8192-1024}, v{vWD}
    v_add_u32 v{vWD+3}, {12*8192-3072}, v{vWD+2}
    v_add_u32 v{vWD+2}, {8*8192-2048}, v{vWD+2}
    v_lshrrev_b32 v{t}, 3, v2
    v_and_b32 v{t+1}, 7, v2
    s_mul_i32 s{sT0}, s{sW}, 20
    v_add_u32 v{t+2}, s{sT0}, v{t}
    v_bfe_u32 v{t+3}, v{t+2}, 1, 3
    v_xor_b32 v{t+3}, v{t+1}, v{t+3}
    v_mul_u32_u24 v{t+2}, 1152, v{t+2}
    v_lshl_add_u32 v{vXD}, v{t+3}, 4, v{t+2}
    v_xor_b32 v{vXD+1}, 64, v{vXD}
    v_add_u32 v{vXD+1}, {8*1152-1024}, v{vXD+1}
    v_add_u32 v{vXD+2}, {16*1152-2048}, v{vXD}""")
def w_srds(A):
    A(f"s_mul_i32 s{sT0}, s{sB}, 92160")
    srd(A, SX, 4, f"s{sT0}", 92160)
    A(f"""s_lshl_b32 s{sT0}, s{sHKV}, 9
    s_lshl_b32 s{sT2}, s{sH}, 8
    s_add_u32 s{sT0}, s{sT0}, s{sT2}
    s_lshl_b32 s{sT2}, s{sS}, 17
    s_add_u32 s{sT0}, s{sT0}, s{sT2}
    s_sub_u32 s{sT2}, {576*8192}, s{sT0}""")
    srd(A, SWQ, 10, f"s{sT0}", f"s{sT2}")
def kv_setup(A):
    t = vT
    A(f"""v_lshrrev_b32 v{t}, 4, v2
    v_and_b32 v{t+1}, 15, v2
    v_lshlrev_b32 v{t+2}, 1, v{t}
    v_xor_b32 v{t+2}, v{t+1}, v{t+2}
    v_lshlrev_b32 v{t+2}, 4, v{t+2}
    v_lshl_add_u32 v{vVD}, v{t}, 8, v{t+2}
    v_xor_b32 v{vVD+1}, 128, v{vVD}
    v_xor_b32 v{t+2}, v{t+1}, v{t}
    v_lshlrev_b32 v{t+2}, 4, v{t+2}
    v_lshl_add_u32 v{vKD}, v{t}, 8, v{t+2}
    v_xor_b32 v{vKD+1}, 64, v{vKD}
    v_xor_b32 v{vKD+2}, 128, v{vKD}
    v_xor_b32 v{vKD+3}, 192, v{vKD}
    s_lshl_b32 s{sT1}, s{sB}, 4
    s_add_u32 s{sT1}, s{sT1}, s{sHKV}
    s_lshl_b32 s{sT1}, s{sT1}, 17""")
    srd(A, SK, 6, f"s{sT1}", 131072)
    srd(A, SV, 8, f"s{sT1}", 131072)

def late_addresses(A, C):
    g, q, r, cc, t = vT, vT + 1, vT + 2, vT + 3, vT + 4
    A(f"""v_lshrrev_b32 v{g}, 4, v2
    v_and_b32 v{q}, 15, v2
    v_bfe_u32 v{r}, v2, 2, 2
    v_and_b32 v{cc}, 3, v2
    v_and_b32 v{t+2}, 1, v{g}
    v_lshl_add_u32 v{t+1}, v{t+2}, 2, v{r}
    v_lshlrev_b32 v{t+1}, 5, v{t+1}
    v_lshl_add_u32 v{t+1}, v{cc}, 3, v{t+1}
    s_lshl_b32 s{sT1}, s{sS}, 7
    v_xor_b32 v{t+1}, s{sT1}, v{t+1}
    v_lshl_add_u32 v{t}, v{g}, 3, v{r}
    v_lshl_add_u32 v{t}, v{t}, 8, v{t+1}
    s_lshl_b32 s{sT0}, s{sH}, 13
    s_add_u32 s{sT0}, s{sT0}, {WQR}
    v_add_u32 v{vWR}, s{sT0}, v{t}""")
    for k in range(1, 8): A(f"v_xor_b32 v{vWR+k}, {32*k}, v{vWR}")
    A(f"""v_lshl_add_u32 v{t}, v{g}, 2, v{r}
    v_lshl_add_u32 v{t}, v{t}, 8, v{t+1}
    s_lshl_b32 s{sT0}, s{sS}, 13
    s_add_u32 s{sT2}, s{sT0}, {vslot(0)}
    v_add_u32 v{vVR}, s{sT2}, v{t}""")
    for k in range(1, 16): A(f"v_xor_b32 v{vVR+k}, {32*(k & 7) + 8192*(k >> 3)}, v{vVR}")
    A(f"""v_lshrrev_b32 v{t}, 1, v{g}
    v_lshl_add_u32 v{t}, v{t+2}, 1, v{t}
    v_xor_b32 v{t}, v{t}, v{q}
    v_lshlrev_b32 v{t}, 4, v{t}
    v_xor_b32 v{t}, s{sT1}, v{t}
    v_lshl_add_u32 v{t}, v{q}, 8, v{t}
    v_add_u32 v{vKR}, s{sT0}, v{t}""")
    for k in range(1, 8): A(f"v_xor_b32 v{vKR+k}, {64*(k & 3) + 8192*(k >> 2)}, v{vKR}")
    A(f"""v_lshrrev_b32 v{t}, 1, v{q}
    v_xor_b32 v{t}, v{t}, v{g}
    v_lshlrev_b32 v{t}, 4, v{t}
    v_lshl_add_u32 v{t}, v{q}, 7, v{t}
    s_lshl_b32 s{sT0}, s{sS}, 1
    s_add_u32 s{sT0}, s{sT0}, s{sH}
    s_lshl_b32 s{sT0}, s{sT0}, 11
    s_xor_b32 s{sT1}, s{sT0}, 2048
    s_add_u32 s{sT0}, s{sT0}, {XR}
    s_add_u32 s{sT1}, s{sT1}, {XR}
    v_add_u32 v{vXR}, s{sT0}, v{t}
    v_add_u32 v{vXR+2}, s{sT1}, v{t}
    v_add_u32 v{vXR+4}, {XR + 8192}, v{t}""")
    for k in range(3): A(f"v_xor_b32 v{vXR+2*k+1}, 64, v{vXR+2*k}")
    A(f"""v_lshlrev_b32 v3, 4, v2
    v_mov_b32 v1, 0
    s_mov_b32 s{sQS}, {QSCALE}
    s_mov_b32 s{sQS+1}, {QSCALE}
    s_mov_b32 s{sSAFE}, 1
    v_mov_b32 v{vNEG+2}, 0
    v_mov_b32 v{t}, 0x3f803f80""")
    for i in range(4): A(f"v_accvgpr_write_b32 a{aONE+i}, v{t}")
    A(f"s_mul_i32 s{sT0}, s{sHG}, {1024*1152}")
    srd(A, SWO, 12, f"s{sT0}", 1024 * 1152)
    srd(A, SOUT, 14, None, 1280 * 1152)
    srd(A, SDBG, 16, None, 256)

def touches(A, C, vm, first, mid):
    x, w = vQ + 8, vQ + 9
    A(f"""v_lshlrev_b32 v{x}, 7, v0
    v_cmp_gt_u32 vcc, 180, v0
    v_mov_b32 v{vT+1}, {OOB}
    s_lshr_b32 s{sT0}, s{sJ}, 1
    s_mul_i32 s{sT0}, s{sT0}, 46080
    v_cndmask_b32 v{x}, v{vT+1}, v{x}, vcc
    s_mul_i32 s{sT1}, s{sB}, 92160
    s_add_u32 s{sT0}, s{sT0}, s{sT1}
    v_lshrrev_b32 v{w}, 2, v0
    v_and_b32 v{vT+1}, 3, v0
    s_and_b32 s{sT1}, s{sB}, 7
    v_lshl_add_u32 v{w}, v{w}, 3, s{sT1}
    v_lshlrev_b32 v{w}, 13, v{w}
    v_lshl_add_u32 v{w}, v{vT+1}, 7, v{w}
    s_waitcnt lgkmcnt(0)""")
    first()
    srd(A, SOUT, 4, f"s{sT0}", 46080)
    srd(A, SWO, 10, None, 576 * 8192)
    for ch in C.touch:
        if ch == "X":
            A(f"buffer_load_dword v255, v{x}, s[{SOUT}:{SOUT+3}], 0 offen\ns_mov_b32 s{sT0}, 23040\nbuffer_load_dword v255, v{x}, s[{SOUT}:{SOUT+3}], s{sT0} offen"); vm.add("touch", 2)
        if ch in "oW":
            A(f"""s_xor_b32 s{sT0}, s{sHKV}, {1 if ch == 'o' else 0}
            s_lshl_b32 s{sT0}, s{sT0}, 9
            buffer_load_dword v255, v{w}, s[{SWO}:{SWO+3}], s{sT0} offen
            s_add_u32 s{sT0}, s{sT0}, {512*8192}
            buffer_load_dword v255, v{w}, s[{SWO}:{SWO+3}], s{sT0} offen"""); vm.add("touch", 2)
        if ch == "m": mid()

def wo_touches(A, C, vm):
    if not C.wpre: return
    t = vT
    A(f"s_mul_i32 s{sT0}, s{sHG}, {1024*1152}")
    srd(A, SWO, 12, f"s{sT0}", 1024 * 1152)
    A(f"""v_lshrrev_b32 v{t}, 2, v0
    v_mul_u32_u24 v{t}, 1152, v{t}
    v_and_b32 v{t+1}, 3, v0
    v_lshl_add_u32 v{t+2}, v{t+1}, 7, v{t}
    s_and_b32 s{sT0}, s{sB}, 7
    s_lshl_b32 s{sT0}, s{sT0}, 1
    s_lshr_b32 s{sT2}, s{sJ}, 1
    s_add_u32 s{sT0}, s{sT0}, s{sT2}
    s_mul_i32 s{sT0}, s{sT0}, 73728
    v_cmp_eq_u32 vcc, 0, v{t+1}
    v_mov_b32 v{t+1}, {OOB}
    s_nop 0
    v_cndmask_b32 v{t}, v{t+1}, v{t}, vcc""")
    if "b" in C.wpre: A(f"buffer_load_dword v255, v{t+2}, s[{SWO}:{SWO+3}], s{sT0} offen"); vm.add("touch")
    if "a" in C.wpre:
        A(f"buffer_load_dword v255, v{t+2}, s[{SWO}:{SWO+3}], s{sT0} offen offset:512\nbuffer_load_dword v255, v{t}, s[{SWO}:{SWO+3}], s{sT0} offen offset:1024"); vm.add("touch", 2)

def dma_kv(name, slot=None, so=None):
    i = int(name[1:])
    if name[0] == "V": sr, sl, va = SV, vslot(i), [vVD, vVD + 1, vVD, vVD + 1]
    else: sr, sl, va = SK, kslot(i), [vKD + a for a in range(4)]
    o = [f"s_add_u32 m0, s{sW4K}, {sl if slot is None else slot}", f"s_add_u32 s{sT1}, s{sW4K}, {i*16384 if so is None else so}"]
    return o + [f"buffer_load_dwordx4 v{va[a]}, s[{sr}:{sr+3}], s{sT1} offen offset:{a*1024} nt lds" for a in range(4)]
def dma_wq(j):
    o = [f"s_add_u32 m0, s{sW4K}, {WQR + (j % 3)*16384}", f"s_mov_b32 s{sT1}, {j*262144}"]
    return o + [f"buffer_load_dwordx4 v{vWD+a}, s[{SWQ}:{SWQ+3}], s{sT1} offen offset:{a*1024} lds" for a in range(4)]
def dma_x(t):
    o = [f"s_add_u32 m0, s{sX0}, {(t % 2)*10240}", f"s_mov_b32 s{sT0}, {t*128}"]
    o += [f"buffer_load_dwordx4 v{vXD+i}, s[{SX}:{SX+3}], s{sT0} offen offset:{i*1024} lds" for i in range(2)]
    o += [f"s_mov_b32 exec_hi, 0\nbuffer_load_dwordx4 v{vXD+2}, s[{SX}:{SX+3}], s{sT0} offen offset:2048 lds\ns_mov_b32 exec_hi, -1"]
    return o
def w_reads(j):
    p = j & 1
    o = [("D", f"ds_read_b128 {r4('a', aWB+12*p+4*k)}, v{vXR+2*k+p} offset:{((j >> 1) % 2)*10240}") for k in range(3)]
    for t in range(8):
        for u in range(2): o.append(("d", f"ds_read_b64_tr_b16 a[{aWA+32*p+4*t+2*u}:{aWA+32*p+4*t+2*u+1}], v{vWR+t} offset:{(j % 3)*16384 + u*1024}"))
    return o
def k_reads(i, buf=None, slot=None):
    b = aK + 64 * (i & 1 if buf is None else buf); sl = kslot(i) if slot is None else slot
    return [f"ds_read_b128 {r4('a', b+32*z+16*kt+4*p)}, v{vKR+4*z+p} offset:{sl + kt*4096}" for z in range(2) for kt in range(2) for p in range(4)]
def v_reads(i, slot=None):
    sl = (vslot(i) if slot is None else slot) - vslot(0)
    return [f"ds_read_b64_tr_b16 a[{aV+32*z+4*m+2*u}:{aV+32*z+4*m+2*u+1}], v{vVR+8*z+m} offset:{sl + u*4096}" for z in range(2) for m in range(8) for u in range(2)]

def qproj(A, C, vm, issued, grp):
    mf = []; ops = []; ch = Chain()
    for j in range(18):
        G = 20 * j; p = j & 1; nxt = j + 1
        for t in range(8):
            for k in range(3 if t < 4 else 2):
                d = vO + 32 * k + 4 * t
                mf.append(f"{MF} {r4('v', d)}, {r4('a', aWA+32*p+4*t)}, {r4('a', aWB+12*p+4*k)}, {'0' if j == 0 else r4('v', d)}")
        b0 = G + C.wg + 1
        bar = None
        if nxt < 18:
            wv = waitop([("wq", nxt)] + ([("x", nxt >> 1)] if p else []), "lgkmcnt(0)", lo=b0 - 1, dl=b0 - 1)
            bar = Op("s_barrier", "b", lo=b0, dl=b0, after=[wv]); ops += [wv, bar]
            last = bar
            need = [0, 1, 2] + [x for t in range(8) for x in [3 * t if t < 4 else 4 + 2 * t] * 2]
            rds = sorted(zip(need, range(19), w_reads(nxt)), key=lambda x: (x[0] + (0.5 if x[1] in (3, 4) else 0), x[1])) if C.wp else zip(need, range(19), w_reads(nxt))
            for n, (nd, _, (kind, t)) in enumerate(rds):
                last = Op(t, kind if C.wp else "d", lo=b0 + int(n * C.wp), dl=G + 20 + min(nd - 3, C.wg - 2), pri=G, same=[last]); ops.append(last)
        t = (nxt >> 1) + 1
        gaps = [b0 + 10, b0 + 13, b0 + 16, b0 + 19] if p and t < 9 else [b0 + 3, b0 + 8, b0 + 13, b0 + 18]
        if p and t < 9: ch.group(ops, dma_x(t), ("x", t), [b0 + 1, b0 + 4, b0 + 7], first=[bar])
        gaps = [min(g, 356 + k) for k, g in enumerate(gaps)]
        if j + 3 < 18: ch.group(ops, dma_wq(j + 3), ("wq", j + 3), gaps, first=[bar])
        elif issued < 5: ch.group(ops, dma_kv(ORDER[issued]), ORDER[issued], gaps); issued += 1
        if grp == "b" and C.NB and j == 16:
            for t in k_reads(0):
                last = Op(t, "D", lo=340, dl=359, same=[last]); ops.append(last)
    out, over, idle = schedule(mf, ops)
    print(f"qproj: overflow {over} idle {idle}", file=sys.stderr)
    for o in out:
        if isinstance(o, str): continue
        if "x" in C.abl0 and o.txt.startswith("s_mov_b32 exec_hi"): o.txt = "s_nop 0"; o.tag = None
        if "B" in C.abl0 and o.txt == "s_barrier": o.txt = "s_nop 0"
        if "L" in C.abl0 and o.kind == "L" and not isinstance(o.tag, str): o.txt = "s_nop 0"; o.tag = None
        if "d" in C.abl0 and o.kind == "d": o.txt = "s_nop 0"
    emit(A, vm, out)
    return issued

def pack(A, x, y, d, scale, swap):
    if scale:
        for r in (x, x + 2, y, y + 2): A(f"v_pk_mul_f32 v[{r}:{r+1}], v[{r}:{r+1}], {scale}")
    A(f"""v_cvt_pk_bf16_f32 v{d}, v{x}, v{x+1}
    v_cvt_pk_bf16_f32 v{d+1}, v{x+2}, v{x+3}
    v_cvt_pk_bf16_f32 v{d+2}, v{y}, v{y+1}
    v_cvt_pk_bf16_f32 v{d+3}, v{y+2}, v{y+3}""")
    return [f"v_permlane16_swap_b32 v{d}, v{d+2}", f"v_permlane16_swap_b32 v{d+1}, v{d+3}"] if swap else []

def q_epilogue(A, C, vm, issued, grp):
    w = vT
    A(f"s_lshl_b32 s{sT0}, s{sW}, 11\ns_add_u32 s{sT0}, s{sT0}, {QX}\nv_add_u32 v{w}, s{sT0}, v3\nv_xor_b32 v{w+1}, 2048, v{w}")
    pend = []
    todo = [(2, 0), (2, 1)] + [(k, p) for k in range(2) for p in range(4)]
    for n, (k, p) in enumerate(todo):
        x = vO + 32 * k + 8 * p
        sw = pack(A, x, x + 4, vQ + 16 * k + 4 * p, f"s[{sQS}:{sQS+1}]", True)
        for t in pend: A(t)
        pend = sw
        if k == 2: pend = pend + [f"ds_write_b128 v{w}, {r4('v', vQ+32+4*p)} offset:{p*1024}"]
        if n >= 2 and issued < 5 and n % 3 == 2:
            for t in dma_kv(ORDER[issued]): A(t)
            vm.add(ORDER[issued], 4); issued += 1
    for t in pend: A(t)
    pre = grp == "b" and C.NB >= 3
    n = vm.wait("K0", *(("K1", "V0") if pre else ()))
    A((f"s_waitcnt vmcnt({n}) lgkmcnt(0)" if n is not None else "s_waitcnt lgkmcnt(0)") + "\ns_barrier")
    if not (grp == "b" and C.NB):
        for t in k_reads(0): A(t)
    for p in range(2): A(f"ds_read_b128 {r4('v', vQ+40+4*p)}, v{w+1} offset:{p*1024}")
    assert issued == 5
    return pre

def qk(i, jb, c0="0"):
    o = []
    for kt in range(2):
        for p in range(4):
            d = vS + 8 * jb + 4 * kt
            o.append(f"{MF} {r4('v', d)}, {r4('a', aK+64*(i&1)+32*JSET[jb]+16*kt+4*p)}, {r4('v', vQ+16*JSLOT[jb]+4*p)}, {c0 if p == 0 else r4('v', d)}")
    return o
def pv(jb, first, lead=False):
    k = JSLOT[jb]; pp = r4("v", vS + 8 * jb)
    o = [f"{MF} {r4('v', vO+32*k+4*m)}, {r4('a', aV+32*JSET[jb]+4*m)}, {pp}, {'0' if first else r4('v', vO+32*k+4*m)}" for m in range(8)]
    l = [f"{MF} {r4('a', aL+4*k)}, {r4('a', aONE)}, {pp}, {'0' if first else r4('a', aL+4*k)}"]
    return l + o if lead else o + l

def attention(A, C, vm, pre, extra, lag):
    mf = []; ops = []; ch = Chain(); issued = 5
    xg = 20 if pre else 9
    wx = waitop(["K1", "V0"], "lgkmcnt(0)", lo=xg, dl=xg)
    bx = Op("s_barrier", "b", lo=xg + 1, dl=xg + 1, after=[wx]); ops += [wx, bx]
    for n in range(0 if lag else 2):
        ch.group(ops, dma_kv(ORDER[issued]), ORDER[issued], [xg + 4 + 24 * n + 6 * a for a in range(4)], first=[bx]); issued += 1
    gate = None if pre else bx
    for i in range(8):
        G = 85 * i
        for jb in range(5): mf += qk(i, jb)
        for jb in range(5): mf += pv(jb, i == 0 and jb < 3, i == 7)
        for jb in range(5):
            s0 = vS + 8 * jb; dl = G + 38 + 9 * jb
            ex = [Op(f"v_exp_f32 v{s0+k}, v{s0+k}", "e", lo=G + 8 * jb + (7 if k < 4 else 11), dl=dl - 12 + k + k // 2) for k in range(8)]
            prev = None
            for k in range(4):
                prev = Op(f"v_cvt_pk_bf16_f32 v{s0+k}, v{s0+2*k}, v{s0+2*k+1}", "v", dl=dl - 9 + 3 * k, after=[ex[2*k], ex[2*k+1]], same=[prev]); ops.append(prev)
            ops += ex
        last = gate
        if i == 7 and C.latev:
            wv = waitop(["V7"], lo=G + C.latev, dl=G + C.latev)
            last = Op("s_barrier", "b", lo=G + C.latev + 1, dl=G + C.latev + 1, after=[wv]); ops += [wv, last]
        for k, t in enumerate(v_reads(i)):
            z, m = k >> 4, (k >> 1) & 7
            if z == 0: lo, dl = G - 27 + m, G + 28 + m
            elif m < C.vz: lo, dl = G - 9 + m, G + 30 + m
            else: lo, dl = G + C.v0 + C.v1 * (m - C.vz), G + C.v0 + 2 + C.v1 * (m - C.vz)
            if i == 0 and not pre: lo, dl = (0, 14 + 3 * m) if z == 0 else (0, 40 + 3 * m)
            if i == 7 and C.latev: lo, dl = (G + C.latev + 1 + 2 * m, G + 33 + m) if z == 0 else (G + 40 + 2 * m, G + 42 + 2 * m)
            last = Op(t, "d", lo=lo, dl=dl, pri=dl if (z and m >= C.vz) or i == 0 else G - 60, same=[last]); ops.append(last)
        if i < 7:
            last = gate
            for t in k_reads(i + 1):
                last = Op(t, "D", lo=G + 9, dl=G + C.kd, pri=G - 50, same=[last]); ops.append(last)
            wv = waitop([f"K{i+2}", f"V{i+1}"] if i < 6 or not C.latev else [], "lgkmcnt(0)", lo=G + 74, dl=G + 74, after=[last])
            gate = Op("s_barrier", "b", lo=G + 75, dl=G + 75, after=[wv]); ops += [wv, gate]
            for n in range(2):
                if issued < 16:
                    ch.group(ops, dma_kv(ORDER[issued]), ORDER[issued], [G + g for g in C.dg[4*n:4*n+4]], first=[gate]); issued += 1
            if lag and i == lag - 1:
                for n in range(2):
                    ch.group(ops, dma_kv(ORDER[issued]), ORDER[issued], [G + 105 + 24 * n + 6 * a for a in range(4)], first=[gate]); issued += 1
        extra(ops, ch, i, G, gate)
        if i == 7:
            w = Op("s_waitcnt lgkmcnt(0)", "s", lo=G + 62, dl=G + 64, after=[last])
            sb = Op("s_barrier", "b", lo=G + 63, dl=G + 68, after=[w]); ops += [w, sb]
            prev = None
            for lo, t in norm_pre():
                kind = "L" if t.startswith("ds_") else "e" if t.startswith("v_rcp") else t[0]
                prev = Op(t, kind, lo=G + lo, dl=G + min(84, lo + (25 if lo < 40 else 2)), same=[prev] + ([sb] if kind == "L" else []), after=[prev] if prev and ORD[prev.kind] > ORD[kind] else [])
                ops.append(prev)
        if C.sg == 2 and i in (4, 5, 6): ops.append(Op(stamp_txt(C, i - 3), "s", lo=G + 71, dl=G + 73))
        if i == 3 and C.stamps: ops.append(Op(stamp_txt(C, 4), "s", lo=G + 71, dl=G + 73))
    out, over, idle = schedule(mf, ops, 6)
    print(f"attention: overflow {over} idle {idle}", file=sys.stderr)
    for o in out:
        if isinstance(o, str): continue
        if "B" in C.abl and o.txt == "s_barrier": o.txt = "s_nop 0"
        if "L" in C.abl and o.kind == "L": o.txt = "s_nop 0"
        if "d" in C.abl and o.kind in "dD": o.txt = "s_nop 0"
    emit(A, vm, out)

def safe_attention(A, name):
    t, u = vT + 4, vT + 5
    A(f"""{name}_safe:
    s_nop 7
    s_mov_b32 s{sCNT}, 0
    v_lshrrev_b32 v{t}, 5, v2
    v_bfe_u32 v{u}, v2, 4, 1
    v_lshl_add_u32 v{t}, v{u}, 1, v{t}
    v_and_b32 v{u}, 15, v2
    v_xor_b32 v{t}, v{t}, v{u}
    v_lshlrev_b32 v{t}, 4, v{t}
    s_lshl_b32 s{sT1}, s{sS}, 7
    v_xor_b32 v{t}, s{sT1}, v{t}
    v_lshl_add_u32 v{t}, v{u}, 8, v{t}
    s_lshl_b32 s{sT1}, s{sS}, 13
    s_add_u32 s{sT1}, s{sT1}, s{sT2}
    v_add_u32 v{vKR}, s{sT1}, v{t}""")
    for k in range(1, 8): A(f"v_xor_b32 v{vKR+k}, {64*(k & 3) + 8192*(k >> 2)}, v{vKR}")
    for k in range(3): A(f"v_mov_b32 v{vNEG+k}, 0x7f800000")
    for r in range(96): A(f"v_mov_b32 v{vO+r}, 0")
    for r in range(12): A(f"v_accvgpr_write_b32 a{aL+r}, 0")
    A(f"{name}_sl:\ns_barrier")
    for nm, slot in (("K0", f"s{sT2}"), ("V0", vslot(1))):
        x = dma_kv(nm, slot, f"s{sCNT}")
        A("\n".join([x[0], x[1]] + x[2:]))
    A("s_waitcnt vmcnt(0)\ns_barrier")
    for x in k_reads(0, 0, 0) + v_reads(0, vslot(1)): A(x)
    A("s_waitcnt lgkmcnt(0)")
    for jb in range(5):
        s0 = vS + 8 * jb; k = JSLOT[jb]
        for m in qk(0, jb): A(m)
        A(f"""s_nop 7
        v_max3_f32 v{t}, v{s0}, v{s0+1}, v{s0+2}
        v_max3_f32 v{t}, v{t}, v{s0+3}, v{s0+4}
        v_max3_f32 v{t}, v{t}, v{s0+5}, v{s0+6}
        v_max_f32 v{t}, v{t}, v{s0+7}
        v_mov_b32 v{u}, v{t}
        s_nop 1
        v_permlane32_swap_b32 v{t}, v{u}
        s_nop 1
        v_max_f32 v{t}, v{t}, v{u}
        v_mov_b32 v{u}, v{t}
        s_nop 1
        v_permlane16_swap_b32 v{t}, v{u}
        s_nop 1
        v_min3_f32 v{t}, -v{t}, -v{u}, v{vNEG+k}
        v_sub_f32 v{u}, v{t}, v{vNEG+k}
        v_exp_f32 v{u}, v{u}
        v_mov_b32 v{vNEG+k}, v{t}""")
        for r in range(8): A(f"v_add_f32 v{s0+r}, v{s0+r}, v{t}")
        for r in range(8): A(f"v_exp_f32 v{s0+r}, v{s0+r}")
        for r in range(32): A(f"v_mul_f32 v{vO+32*k+r}, v{vO+32*k+r}, v{u}")
        for r in range(4): A(f"v_accvgpr_read_b32 v{t}, a{aL+4*k+r}\nv_mul_f32 v{t}, v{t}, v{u}\nv_accvgpr_write_b32 a{aL+4*k+r}, v{t}")
        for r in range(4): A(f"v_cvt_pk_bf16_f32 v{s0+r}, v{s0+2*r}, v{s0+2*r+1}")
        A("s_nop 1")
        for m in pv(jb, False): A(m)
    A(f"s_nop 7\ns_add_u32 s{sCNT}, s{sCNT}, 16384\ns_cmp_lt_u32 s{sCNT}, 131072\ns_cbranch_scc1 {name}_sl\ns_barrier")
    for k in range(8): A(f"v_xor_b32 v{vKR+k}, 8192, v{vWR+k}")
    A(f"s_setpc_b64 s[{sRET}:{sRET+1}]")

EXB = 0
SAFEK = 0
def ob(k, p): return vO + 32 * k + 8 * p
def norm_pre():
    w, r, fa, l = vT, vT + 1, vT + 2, vE
    o = [(30, t.strip()) for t in f"""s_mul_i32 s{sT0}, s{sW}, 5120
    s_add_u32 s{sT0}, s{sT0}, {EXB}
    v_add_u32 v{w}, s{sT0}, v3
    s_xor_b32 s{sT0}, s{sW}, 1
    s_mul_i32 s{sT0}, s{sT0}, 5120
    s_add_u32 s{sT0}, s{sT0}, {EXB}
    v_add_u32 v{r}, s{sT0}, v3
    s_lshl_b32 s{sT0}, s{sW}, 2
    s_add_u32 s{sT0}, s{sT0}, {EXB + 20480}
    v_mov_b32 v{fa}, s{sT0}
    v_mov_b32 v{l+3}, v{vNEG+2}""".split("\n")]
    o += [(63, f"v_accvgpr_read_b32 v{l+2}, a{aL+8}"), (63, f"v_subrev_u32 v{fa+3}, {LLO}, v{l+2}"), (66, f"ds_write_b64 v{w}, v[{l+2}:{l+3}] offset:4096")]
    o += [(70, f"ds_write_b128 v{w}, {r4('v', vO+80)} offset:0"), (72, f"v_accvgpr_read_b32 v{l}, a{aL}"), (72, f"v_subrev_u32 v{fa+1}, {LLO}, v{l}")]
    o += [(72 + 2 * m, f"ds_write_b128 v{w}, {r4('v', vO+80+4*m)} offset:{m*1024}") for m in range(1, 4)]
    o += [(79, f"v_rcp_f32 v{l}, v{l}"), (80, f"v_accvgpr_read_b32 v{l+1}, a{aL+4}"), (80, f"v_subrev_u32 v{fa+2}, {LLO}, v{l+1}"),
          (81, f"v_max3_u32 v{fa+1}, v{fa+1}, v{fa+2}, v{fa+3}"), (81, f"v_cmp_lt_u32 vcc, {LHI - LLO}, v{fa+1}"), (82, f"v_rcp_f32 v{fa+5}, v{l+1}"),
          (83, f"s_cmp_lg_u64 vcc, 0\ns_cselect_b32 s{sT0}, s{sSAFE}, 0"), (83, f"v_mov_b32 v{fa+1}, s{sT0}"), (84, f"ds_write_b32 v{fa}, v{fa+1}")]
    return o

def normalise(A, C, tag, name, store, prebar=lambda: "", checked=lambda: None):
    w, r, fa = vT, vT + 1, vT + 2
    l = vE
    A(f"{tag}_x:")
    for p in range(2):
        pack(A, ob(0, p), ob(0, p) + 4, ob(0, p), f"v[{l}:{l+1}] op_sel_hi:[1,0]", False); store(0, p)
    A(f"""v_mov_b32 v{fa}, {EXB + 20480}
    s_waitcnt {prebar()}lgkmcnt(0)
    s_barrier
    ds_read_b128 {r4('v', vS+16)}, v{fa}
    ds_read_b64 v[{vS+20}:{vS+21}], v{r} offset:4096""")
    for m in range(4): A(f"ds_read_b128 {r4('v', vS+4*m)}, v{r} offset:{m*1024}")
    for p in range(2, 4):
        pack(A, ob(0, p), ob(0, p) + 4, ob(0, p), f"v[{l}:{l+1}] op_sel_hi:[1,0]", False); store(0, p)
    checked()
    lo, no, lp, np_, t = l + 2, l + 3, vS + 20, vS + 21, fa
    sc = f"v[{fa+5}:{fa+6}] op_sel_hi:[1,0]"
    A(f"""v_or3_b32 v{vS+16}, v{vS+16}, v{vS+17}, v{vS+18}
    v_or_b32 v{vS+16}, v{vS+16}, v{vS+19}
    v_cmp_ne_u32 vcc, 0, v{vS+16}
    v_min_f32 v{t}, v{no}, v{np_}
    v_sub_f32 v{no}, v{t}, v{no}
    v_sub_f32 v{np_}, v{t}, v{np_}
    v_exp_f32 v{no}, v{no}
    v_exp_f32 v{np_}, v{np_}
    s_cbranch_vccnz {tag}_fb""")
    pack(A, ob(1, 0), ob(1, 0) + 4, ob(1, 0), sc, False); store(1, 0)
    A(f"v_mul_f32 v{lo}, v{lo}, v{no}\nv_fma_f32 v{lo}, v{lp}, v{np_}, v{lo}\nv_rcp_f32 v{t}, v{lo}")
    pack(A, ob(1, 1), ob(1, 1) + 4, ob(1, 1), sc, False); store(1, 1)
    A(f"v_mul_f32 v{lo}, v{no}, v{t}\nv_mul_f32 v{lp}, v{np_}, v{t}")
    for p in range(2):
        for k in range(8 * p, 8 * p + 8, 2): A(f"v_pk_mul_f32 v[{vO+64+k}:{vO+65+k}], v[{vO+64+k}:{vO+65+k}], v[{lo}:{lo+1}] op_sel_hi:[1,0]")
        for k in range(8 * p, 8 * p + 8, 2): A(f"v_pk_fma_f32 v[{vO+64+k}:{vO+65+k}], v[{vS+k}:{vS+k+1}], v[{lp}:{lp+1}], v[{vO+64+k}:{vO+65+k}] op_sel_hi:[1,0,1]")
        pack(A, ob(2, p), ob(2, p) + 4, ob(2, p), None, False); store(2, p)
        pack(A, ob(1, 2 + p), ob(1, 2 + p) + 4, ob(1, 2 + p), sc, False); store(1, 2 + p)
    redo = "\ns_nop 1\n".join(t for _, t in norm_pre())
    return f"{tag}_fb:\ns_waitcnt vmcnt(0) lgkmcnt(0)\ns_mov_b32 s{sSAFE}, 0\ns_mov_b32 s{sT2}, {SAFEK}\ns_call_b64 s[{sRET}:{sRET+1}], {name}_safe\n{redo}\ns_nop 1\ns_branch {tag}_x"

def dump_setup(A):
    A(f"""v_and_b32 v{vXR}, 15, v2
    v_lshrrev_b32 v{vXR+1}, 4, v2
    v_lshlrev_b32 v{vXR}, 13, v{vXR}
    v_lshl_add_u32 v{vXR}, v{vXR+1}, 3, v{vXR}
    s_lshl_b32 s{sT0}, s{sS}, 7
    v_add_u32 v{vXR}, s{sT0}, v{vXR}
    v_xor_b32 v{vXR+1}, 128, v{vXR}
    s_mul_i32 s{sU+2}, s{sB}, {80*8192}
    s_lshl_b32 s{sT1}, s{sHKV}, 9
    s_add_u32 s{sU+2}, s{sU+2}, s{sT1}
    s_lshl_b32 s{sT1}, s{sH}, 8
    s_add_u32 s{sU+2}, s{sU+2}, s{sT1}
    s_add_u32 s{sU+2}, s{sU+2}, {1280*8192}
    s_lshl_b32 s{sT0}, s{sS}, 1
    s_add_u32 s{sT0}, s{sT0}, s{sH}
    s_lshl_b32 s{sT0}, s{sT0}, 17
    s_xor_b32 s{sT1}, s{sT0}, {1 << 17}
    s_add_u32 s{sU}, s{sU+2}, s{sT0}
    s_add_u32 s{sU+1}, s{sU+2}, s{sT1}
    s_add_u32 s{sU+2}, s{sU+2}, {4 << 17}""")

def flush(A, C, name):
    if not C.stamps: return
    A(f"s_waitcnt lgkmcnt(0)\ns_lshl_b32 s{sT0}, s2, 6\ns_add_u32 s{sT0}, s{sT0}, {STAMP}\ns_cmp_lg_u32 s{sW}, 0\ns_cbranch_scc1 {name}_end\ns_mov_b64 exec, 1")
    for i in range(C.stamps): A(f"v_mov_b32 v4, s{sST+2*i}\nbuffer_store_dword v4, v1, s[{SWS}:{SWS+3}], s{sT0} offen offset:{4*i}")

def path(C, name, grp, stubs):
    A = Asm(); vm = VM(); tag = f"{name}_{grp}"
    T = None
    if C.tail == "h":
        import tail2
        T = tail2.Tail(C, name, grp, A, vm, stubs)
    issued = 0
    if grp == "b":
        code_touch(A, name)
        def mid():
            kv_setup(A)
            if T: T.start()
        def first():
            srd(A, SWS, 18, None, 128 << 20)
            if T: T.clear()
        if T: T.clear_prepare()
        touches(A, C, vm, first, mid)
        wo_touches(A, C, vm)
        w_srds(A)
        for n in range(C.NB):
            for t in dma_kv(ORDER[n]): A(t)
            vm.add(ORDER[n], 4)
            if n == min(C.NB - 1, C.rn) and T: T.ready()
        issued = C.NB
        w_addresses(A)
    else:
        w_addresses(A)
        A("s_waitcnt lgkmcnt(0)")
        w_srds(A)
    for t in dma_x(0): A(t)
    vm.add(("x", 0), 3)
    for j in range(3):
        for t in dma_wq(j): A(t)
        vm.add(("wq", j), 4)
        if j == 0:
            for t in dma_x(1): A(t)
            vm.add(("x", 1), 3)
    if grp == "a":
        kv_setup(A)
        srd(A, SWS, 18, None, 128 << 20)
    late_addresses(A, C)
    A(f"s_waitcnt vmcnt({vm.wait(('x', 0), ('wq', 0))})\ns_barrier")
    stamp(A, C, 1)
    for _, t in w_reads(0): A(t)
    issued = qproj(A, C, vm, issued, grp)
    stamp(A, C, 2)
    pre = q_epilogue(A, C, vm, issued, grp)
    if T: T.before_attention()
    stamp(A, C, 3)
    attention(A, C, vm, pre, T.hook if T else lambda *a: None, C.lagb if grp == "b" else C.laga)
    stamp(A, C, 5)
    if T: T.run()
    else:
        dump_setup(A)
        def store(k, p):
            for e in range(2): A(f"buffer_store_dwordx2 v[{ob(k, p)+2*e}:{ob(k, p)+2*e+1}], v{vXR + (p >> 1)}, s[{SWS}:{SWS+3}], s{sU+k} offen offset:{(p & 1)*64 + e*32}")
        stubs.append(normalise(A, C, tag, name, store))
        stamp(A, C, 6)
        flush(A, C, name)
        A("s_endpgm")
    return A

def kernel(C, name):
    P = Asm(); prologue(P, C, name)
    stubs = []
    pa = path(C, name, "a", stubs); pb = path(C, name, "b", stubs)
    for p_ in (pa, pb):
        p_.L, paid = hazard.autowait(p_.L)
        p_.L, forced = hazard.fix(p_.L)
        print("forced pads:", forced, "paid waits:", paid, file=sys.stderr)
    R = Asm(); safe_attention(R, name)
    bad = hazard.check(P.L + pa.L, "a") + hazard.check(P.L + pb.L, "b") + hazard.check(R.L, "safe")
    S = Asm()
    for t in stubs: S(t)
    bad += hazard.check(S.L, "stubs")
    assert not bad, f"{bad} hazards"
    if C.afirst:
        mid = Asm(); mid(f"s_bitcmp1_b32 s{sJ}, 0\ns_cbranch_scc1 {name}_pb")
        n = max(i for i, l in enumerate(pa.L[:120]) if " lds" in l) + 1
        a0 = "\n".join(pa.L[:n]) + f"\n    s_branch {name}_pa\n"; a1 = "\n".join(pa.L[n:]) + "\n"
        return P.text() + mid.text() + a0 + f"{name}_pb:\n" + pb.text() + f"{name}_pa:\n" + a1 + S.text() + f"{name}_hot:\n" + R.text() + f"{name}_end:\n    s_endpgm\n"
    mid = Asm(); mid(f"s_bitcmp0_b32 s{sJ}, 0\ns_cbranch_scc1 {name}_pa")
    n = next(i for i, l in enumerate(pb.L) if "s_barrier" in l)
    b0 = "\n".join(pb.L[:n]) + f"\n    s_branch {name}_pb\n"; b1 = "\n".join(pb.L[n:]) + "\n"
    return P.text() + mid.text() + b0 + f"{name}_pa:\n" + pa.text() + f"{name}_pb:\n" + b1 + S.text() + f"{name}_hot:\n" + R.text() + f"{name}_end:\n    s_endpgm\n"

def main():
    from gen_naive import naive_parts
    cfgs = json.loads(sys.argv[1]); names = []
    for c in cfgs:
        n = "j" + "".join(f"_{kk}{vv}" for kk, vv in c.items()); names.append(n)
        C = Cfg(**c)
        l, k = naive_parts()
        if C.tail == "dump": txt = build([("fa_kernel", 256, 256, 163840), l[2]], [("fa_kernel", kernel(C, "fa"), 256, 256), k[2]])
        elif C.stamps == 11:
            from emu3 import after
            txt = build([("fa_kernel", 256, 256, 163840), ("af_kernel", 256, 64, 0)], [("fa_kernel", kernel(C, "fa"), 256, 256), ("af_kernel", after("af", 11), 32, 0)])
        else: txt = build([(KN + "_kernel", 256, 256, 163840)], [(KN + "_kernel", kernel(C, KN), 256, 256)])
        open(n + ".s", "w").write(txt)
    open("list.txt", "w").write(" ".join(x + ".s" for x in names))

if __name__ == "__main__":
    import gen2
    gen2.main()
```

```python
import re
REG = re.compile(r"\b([vas])(?:(\d+)|\[(\d+):(\d+)\])")
TRANS = ("v_exp_", "v_log_", "v_rcp_", "v_rsq_", "v_sqrt_", "v_sin_", "v_cos_")

def regs(tok):
    out = set()
    for m in REG.finditer(tok):
        lo = int(m.group(2) if m.group(2) is not None else m.group(3)); hi = int(m.group(2) if m.group(2) is not None else m.group(4))
        out |= {(m.group(1), i) for i in range(lo, hi + 1)}
    if re.search(r"\bvcc\b", tok): out |= {("s", "vcc")}
    if re.search(r"\bexec(_lo|_hi)?\b", tok): out |= {("s", "exec")}
    if re.search(r"\bm0\b", tok): out |= {("s", "m0")}
    return out

class I:
    def __init__(self, txt):
        self.txt = txt.strip(); t = self.txt.split(";")[0].strip()
        p = t.split(None, 1); self.op = p[0]; rest = p[1] if len(p) > 1 else ""
        ops = [x.strip() for x in re.split(r",(?![^\[]*\])", rest)] if rest else []
        self.ops = ops; op = self.op
        self.mfma = op.startswith("v_mfma"); self.valu = op.startswith("v_") and not self.mfma
        self.ds = op.startswith("ds_"); self.vmem = op.startswith(("buffer_", "global_")); self.salu = op.startswith("s_")
        self.trans = op.startswith(TRANS); self.lds_dma = self.vmem and (" lds" in t or "_lds_" in op)
        self.w = set(); self.r = set(); self.srcc = set(); self.sdata = set()
        if self.mfma:
            self.w = regs(ops[0]); self.r = regs(ops[1]) | regs(ops[2]); self.srcc = regs(ops[3]); self.passes = 8 if "32x32" in op else 4
        elif self.valu:
            self.w = regs(ops[0]); self.r = set().union(*[regs(o) for o in ops[1:]]) if len(ops) > 1 else set()
            if "permlane" in op and "swap" in op: self.w |= regs(ops[1]); self.r |= regs(ops[0])
            if op.startswith(("v_fmac", "v_pk_fmac")): self.r |= regs(ops[0])
            if "_co_" in op: self.w |= regs(ops[1])
        elif self.ds:
            if op.startswith("ds_read"): self.w = regs(ops[0]); self.r = regs(ops[1])
            else: self.r = set().union(*[regs(o) for o in ops])
        elif self.vmem:
            if op in ("buffer_wbl2", "buffer_inv"): pass
            elif self.lds_dma: self.r = set().union(*[regs(o) for o in ops]) | {("s", "m0")}
            elif "load" in op: self.w = regs(ops[0]); self.r = set().union(*[regs(o) for o in ops[1:]])
            else:
                self.r = set().union(*[regs(o) for o in ops])
                if "x4" in op or "x3" in op: self.sdata = regs(ops[0] if op.startswith("buffer") else ops[1])
        elif self.salu:
            if op.startswith(("s_cmp", "s_bitcmp", "s_cbranch", "s_branch", "s_waitcnt", "s_nop", "s_barrier", "s_sleep", "s_setprio", "s_endpgm")):
                self.r = set().union(*[regs(o) for o in ops]) if ops and not op.startswith(("s_cbranch", "s_branch", "s_waitcnt")) else set()
            else:
                self.w = regs(ops[0]); self.r = set().union(*[regs(o) for o in ops[1:]]) if len(ops) > 1 else set()
                if "saveexec" in op: self.w |= {("s", "exec")}
        self.states = int(ops[0]) + 1 if op == "s_nop" else 1

def need(p, c):
    n = 0
    vw = {x for x in p.w if x[0] in "va"}; sw = {x for x in p.w if x[0] == "s"}
    if p.mfma:
        k = p.passes
        if c.mfma:
            if vw & c.r: n = max(n, 8 if k == 4 else 12)
            if vw & c.srcc and not (c.srcc == p.w and c.passes == k): n = max(n, 6 if k == 4 else 10)
            if vw & c.w and c.srcc != p.w: n = max(n, 6 if k == 4 else 10)
        elif c.valu or c.ds or c.vmem:
            if vw & (c.r | c.w): n = max(n, 8 if k == 4 else 12)
            if (c.valu or c.ds or c.vmem) and p.srcc & c.w: n = max(n, 3 if k == 4 else 7)
    if p.valu:
        if c.mfma and vw & (c.r | c.srcc): n = max(n, 2)
        if c.mfma and ("s", "exec") in sw: n = max(n, 4)
        if p.trans and (c.valu or c.ds or c.vmem) and not c.trans and vw & c.r: n = max(n, 1)
        if p.trans and c.trans and vw & c.r: n = max(n, 1)
        if "permlane" in c.op and vw & c.r: n = max(n, 2)
        if "_dpp" in c.op and vw & c.r: n = max(n, 2)
        if c.op.startswith(("v_readlane", "v_readfirstlane")) and vw & c.r: n = max(n, 1)
        if c.vmem and sw & c.r: n = max(n, 5)
        if c.valu and sw & c.r: n = max(n, 2)
    if p.op.startswith("v_dot") and vw & (c.r | c.w) and not (c.op == p.op and not (vw & (regs(c.ops[1]) | regs(c.ops[2])))): n = max(n, 3)
    if p.salu and ("s", "m0") in p.w and c.lds_dma: n = max(n, 1)
    if p.sdata and p.sdata & c.w: n = max(n, 2)
    return n

def check(lines, name=""):
    ins = [I(l) for l in lines if l.strip() and not l.strip().endswith(":") and not l.strip().startswith((";", "."))]
    bad = 0
    for j, c in enumerate(ins):
        dist = 0
        for i in range(j - 1, max(-1, j - 24), -1):
            p = ins[i]; n = need(p, c)
            if n > dist:
                print(f"HAZARD {name}: need {n} have {dist}:\n   {p.txt}\n   {c.txt}"); bad += 1
            dist += p.states
    vm = []; lg = []
    for c in ins:
        if c.op == "s_waitcnt":
            m = re.search(r"vmcnt\((\d+)\)", c.txt)
            if m: n = int(m.group(1)); assert n <= 63, c.txt; vm = vm[len(vm) - n:] if n < len(vm) else vm; vm = vm if n else []
            m = re.search(r"lgkmcnt\((\d+)\)", c.txt)
            if m:
                n = int(m.group(1)); assert n <= 15, c.txt
                if n and any(x.salu for x in lg): pass
                else: lg = lg[len(lg) - n:] if n < len(lg) else lg; lg = lg if n else []
            continue
        for q in vm + lg:
            if q.w & (c.r | c.srcc | c.w) and not (q.ds and c.ds and not (q.w & c.r)) and not (q.vmem and c.vmem and not (q.w & c.r)):
                print(f"UNWAITED {name}:\n   {q.txt}\n   {c.txt}"); bad += 1
        if c.vmem: vm.append(c)
        if c.ds or c.op.startswith(("s_load", "s_memtime", "s_memrealtime")): lg.append(c)
    return bad

def fix(lines):
    L = list(lines); forced = 0
    def isins(l):
        t = l.strip(); return t and not t.endswith(":") and not t.startswith((";", "."))
    cache = {}
    def parse(l):
        if l not in cache: cache[l] = I(l)
        return cache[l]
    j = 0
    while j < len(L):
        if not isins(L[j]): j += 1; continue
        c = parse(L[j]); dist = 0; i = j - 1; seen = 0; idles = []; redo = False
        while i >= 0 and seen < 24:
            if L[i].strip() in (";idle", ";sfree"): idles.append(i)
            elif isins(L[i]):
                p = parse(L[i]); n = need(p, c)
                if n > dist:
                    k = n - dist
                    for x in idles[:k]: L[x] = "    s_nop 0"
                    k -= min(k, len(idles))
                    if k: L.insert(j, f"    s_nop {k-1}"); forced += k
                    redo = True; break
                dist += p.states; seen += 1
            i -= 1
        if not redo: j += 1
    return [l for l in L if l.strip() not in (";idle", ";sfree")], forced

def autowait(lines):
    L = list(lines); lg = []; paid = 0
    def isins(l):
        t = l.strip(); return t and not t.endswith(":") and not t.startswith((";", "."))
    j = 0
    while j < len(L):
        if not isins(L[j]): j += 1; continue
        c = I(L[j])
        if c.op == "s_waitcnt":
            m = re.search(r"lgkmcnt\((\d+)\)", c.txt)
            if m:
                n = int(m.group(1)); lg = lg[len(lg) - n:] if 0 < n < len(lg) else ([] if n == 0 else lg)
            j += 1; continue
        hit = [k for k, (q, pos) in enumerate(lg) if q.w & (c.r | c.srcc | c.w) and not (c.ds and not (q.w & c.r))]
        if hit:
            k = max(hit); i = j - 1; slot = None
            lead = sum(1 for x in range(lg[k][1], j) if "v_mfma" in L[x]); back = 0
            while i > lg[k][1]:
                if L[i].strip() == ";sfree" and (lead >= 5 or not any(pos > i for _, pos in lg)): slot = i; break
                if "v_mfma" in L[i]:
                    back += 1
                    if back > 3 or lead - back < 8: break
                i -= 1
            smem = any(q.salu for q, _ in lg)
            if slot is not None:
                n = 0 if smem else min(12, sum(1 for q, pos in lg[k+1:] if pos < slot))
                before = [x for x in lg if x[1] < slot]; after = [x for x in lg if x[1] > slot]
                L[slot] = f"    s_waitcnt lgkmcnt({n})"
                lg = (before[len(before) - n:] if n else []) + after
            else:
                n = 0 if smem else min(12, len(lg) - 1 - k)
                L.insert(j, f"    s_waitcnt lgkmcnt({n})"); paid += 1
                lg = lg[len(lg) - n:] if n else []
                j += 1
            continue
        if c.ds or c.op.startswith(("s_load", "s_memtime", "s_memrealtime")): lg.append((c, j))
        j += 1
    return L, paid
```

```python
COST = {"s": 1, "D": 1, "d": 1, "L": 2, "v": 1, "e": 2, "b": 1}
ORDER = {"s": 0, "b": 0, "D": 1, "d": 1, "L": 2, "v": 3, "e": 3}
class Op:
    n = 0
    def __init__(self, txt, kind, lo=0, dl=10**6, after=(), same=(), dist=1, pri=None, cb=None):
        self.txt = txt; self.kind = kind; self.lo = lo; self.dl = dl; self.dist = dist
        self.after = [a for a in after if a]; self.same = [a for a in same if a]; self.gap = None
        self.pri = dl if pri is None else pri; self.cb = cb
        Op.n += 1; self.id = Op.n

def schedule(mfmas, ops, spill=0):
    out = []; left = sorted(ops, key=lambda o: (o.pri, o.id)); over = idle = 0
    for g, m in enumerate(mfmas):
        out.append(m)
        free = 2; sfree = 1; placed = []
        def ready(o):
            if o.lo > g: return False
            if any(a.gap is None or a.gap + o.dist > g for a in o.after): return False
            for a in o.same:
                if a.gap is None: return False
                if a.gap == g and ORDER[a.kind] > ORDER[o.kind]: return False
            return True
        def take(o):
            nonlocal free, sfree
            o.gap = g; left.remove(o); placed.append(o)
            if o.kind == "s" and sfree: sfree = 0
            elif o.kind == "b": free -= 1 if sfree else 2; sfree = 0
            else: free -= COST[o.kind]
        while True:
            r = [o for o in left if o.lo <= g and ready(o)]
            must = [o for o in r if o.dl <= g]
            if must: take(must[0]); continue
            sc = [o for o in r if o.kind == "s"]
            hasD = any(p.kind == "D" for p in placed); hasd = any(p.kind in "Dd" for p in placed)
            r2 = [o for o in r if o.kind != "s" and not (o.kind == "b" and not sfree) and not (o.kind == "D" and hasd) and not (o.kind == "d" and hasD)]
            if sfree and sc and not (r2 and r2[0].kind == "b" and free): take(sc[0]); continue
            pick = None
            ones = [o for o in r2 if COST[o.kind] == 1]; twos = [o for o in r2 if COST[o.kind] == 2]
            if free >= 2:
                if r2 and COST[r2[0].kind] == 2: pick = r2[0]
                elif ones:
                    o = ones[0]; o.gap = g
                    follow = [x for x in left if x is not o and x.kind in ("v" if o.kind == "D" else "dv" if o.kind == "d" else "Ddv") and ready(x)]
                    o.gap = None
                    pick = o if (follow or not twos) else twos[0]
                elif twos: pick = twos[0]
            elif free == 1 and ones: pick = ones[0]
            if pick is None: break
            take(pick)
        placed.sort(key=lambda o: ORDER[o.kind])
        if sfree: out.append(";sfree")
        for o in placed: out.append(o)
        if free < 0: over -= free
        else: idle += free; out.extend([";idle"] * free)
    if len(left) <= spill:
        out.extend(sorted(left, key=lambda o: o.id)); left = []
    assert not left, [(o.txt, o.lo, o.dl) for o in left[:5]]
    return out, over, idle
```

```python
import sys
from gen2 import *
import gen2
BLK, PART, FL, BAT = 66816, 41088, 16 * 66816, 1310720
W0, W1, XB = 98304, 0, 65536
vOR0, vOR1, vXO, vXDM = vWR, vKR, vXR, vXD
vRDY, vPOL, vPA, vFA = 29, 30, 10, 61
sSRC, sOP, sOS, sF1, sDX, sOK, sRB, sW8K = 8, 12, 66, 15, 16, 17, 18, 19
sPS = 69
sSEL = 3
sTA = 60
aF = 128
PRE = 6
vRW, vRR, vPSA, vF = vT, vT + 1, vT + 4, vVR
sF2 = sRET
vSEL = 48

class Tail:
    def __init__(self, C, name, grp, A, vm, stubs):
        self.C, self.name, self.grp, self.A, self.vm, self.stubs = C, name, grp, A, vm, stubs
        self.tag = f"{name}_{grp}"
        self.NT = 10 if grp == "a" else 8
        self.X = [0, 2, 1, 3] if grp == "a" else [0, 1, 3, 2]
        self.pre = 3 if grp == "a" else 4
        self.nl = 0
        gen2.EXB = 0 if grp == "a" else 65536
        gen2.SAFEK = 0 if grp == "a" else 81920

    def clear_prepare(self):
        self.A(f"""s_cmp_eq_u32 s{sHKV}, 1
        s_cselect_b32 s{sCNT}, 0, {OOB}
        v_add_u32 v{vQ+5}, 12, v0
        v_lshrrev_b32 v{vQ+5}, 5, v{vQ+5}
        v_lshlrev_b32 v{vQ+5}, 27, v{vQ+5}
        v_lshl_add_u32 v{vQ+5}, v0, 11, v{vQ+5}
        v_or_b32 v{vQ+5}, s{sCNT}, v{vQ+5}
        v_mov_b32 v{vQ}, 0
        v_mov_b32 v{vQ+1}, 0
        v_mov_b32 v{vQ+2}, 0
        v_mov_b32 v{vQ+3}, 0
        s_mul_i32 s{sT2}, s{sB}, {BAT}
        s_add_u32 s{sT2}, s{sT2}, {FL}""")
    def clear(self):
        self.A(f"buffer_store_dwordx4 {r4('v', vQ)}, v{vQ+5}, s[{SWS}:{SWS+3}], s{sT2} offen sc1")
        self.vm.add("clr0")
    def start(self):
        self.A(f"""v_mov_b32 v{vT+1}, {OOB}
        s_mul_i32 s{sT1}, s{sB}, {BAT}
        v_lshlrev_b32 v{vQ+4}, 20, v0
        v_or_b32 v{vQ+4}, s{sCNT}, v{vQ+4}""")
        if self.C.tlb:
            self.A(f"""v_lshrrev_b32 v{vT}, 1, v0
            v_mul_u32_u24 v{vT}, {BLK}, v{vT}
            v_and_b32 v{vT+2}, 1, v0
            v_mul_u32_u24 v{vT+2}, {BLK - 128 - 40960}, v{vT+2}
            v_cmp_gt_u32 vcc, 33, v0
            v_add_u32 v{vT}, v{vT}, v{vT+2}
            v_add_u32 v{vT}, 40960, v{vT}
            v_cndmask_b32 v{vT}, v{vT+1}, v{vT}, vcc
            buffer_load_dword v255, v{vT}, s[{SWS}:{SWS+3}], s{sT1} offen""")
            self.vm.add("clr")
        if self.C.tlb > 1:
            self.A(f"s_mul_i32 s{sT0}, s{sHG}, {1024*1152}")
            srd(self.A, SWO, 12, f"s{sT0}", 1024 * 1152)
            self.A(f"s_mul_i32 s{sT0}, s{sB}, 92160")
            srd(self.A, SOUT, 14, f"s{sT0}", 92160)
            self.A(f"""v_lshlrev_b32 v{vT}, {self.C.tsh}, v0
            buffer_load_dword v255, v{vT}, s[{SWO}:{SWO+3}], 0 offen
            buffer_load_dword v255, v{vT}, s[{SOUT}:{SOUT+3}], 0 offen""")
            self.vm.add("clr", 2)
    def ready(self):
        A = self.A
        srd(A, SDBG, 16, None, 256)
        A(f"""s_lshl_b32 s{sT0}, s{sB}, 4
        v_mov_b32 v{vQ+5}, 1
        s_waitcnt vmcnt({self.vm.wait("clr0")})
        buffer_store_dword v{vQ+5}, v{vQ+4}, s[{SDBG}:{SDBG+3}], s{sT0} offen sc1""")
        self.vm.add("clr")

    def setup_ops(self):
        t = vT + 2
        a = self.grp == "a"
        o = f"""v_lshrrev_b32 v{t}, 4, v2
        v_mul_u32_u24 v{t}, {1152 - 256}, v{t}
        v_add_u32 v{vWD}, v{vVD}, v{t}
        v_add_u32 v{vWD+1}, v{vVD+1}, v{t}
        v_add_u32 v{vWD+2}, {2*(4608-1024)}, v{vWD}
        v_add_u32 v{vWD+3}, {3*(4608-1024)}, v{vWD+1}
        v_add_u32 v{vWD+1}, {4608-1024}, v{vWD+1}
        s_lshl_b32 s{sW8K}, s{sW}, 13
        s_lshl_b32 s{sRB}, s{sB}, 4
        s_lshr_b32 s{sT2}, s{sJ}, 1
        s_mul_i32 s{sT2}, s{sT2}, {384 if a else 256}
        s_add_u32 s{sPS+6}, s{sT2}, {512 if a else 0}
        s_mul_i32 s{sT2}, s{sW}, {64*1152}
        s_add_u32 s{sT2}, s{sT2}, s{sPS+6}"""
        for k, x in enumerate(self.X):
            o += f"\ns_xor_b32 s{sSRC+k}, s{sJ}, {x}\ns_mul_i32 s{sSRC+k}, s{sSRC+k}, {256*1152}\ns_add_u32 s{sSRC+k}, s{sSRC+k}, s{sT2}"
        o += f"""
        s_mul_i32 s{sT2}, s{sB}, {BAT}
        s_mul_i32 s{sOP}, s{sW}, 10240
        s_add_u32 s{sT2}, s{sT2}, s{sOP}
        s_mul_i32 s{sOP}, s{sHKV}, {BLK}
        s_add_u32 s{sOP}, s{sOP}, s{sT2}
        s_add_u32 s{sOP+1}, s{sOP}, 4096
        s_add_u32 s{sOP+2}, s{sOP}, 8192"""
        for k in range(1, 4):
            o += f"\ns_xor_b32 s{sOS+k-1}, s{sHKV}, {self.X[k]}\ns_mul_i32 s{sOS+k-1}, s{sOS+k-1}, {BLK}\ns_add_u32 s{sOS+k-1}, s{sOS+k-1}, s{sT2}"
        o += f"""
        s_lshl_b32 s{sF1}, s{sHG}, 2
        s_add_u32 s{sF1}, s{sF1}, s{sW}
        s_lshl_b32 s{sF1}, s{sF1}, 11
        s_mul_i32 s{sT2}, s{sB}, {BAT}
        s_add_u32 s{sF1}, s{sF1}, s{sT2}
        s_add_u32 s{sF1}, s{sF1}, {FL}
        v_and_b32 v{vPA}, 3, v2
        v_xor_b32 v{vPA}, s{sJ}, v{vPA}
        v_lshlrev_b32 v{vPA}, 2, v{vPA}
        s_lshl_b32 s{sT2}, s{sS}, 7
        s_lshl_b32 s{sDX}, s{sW}, 6
        s_xor_b32 s{sT2}, s{sT2}, s{sDX}
        v_xor_b32 v{vOR0}, s{sT2}, v{vVR}
        s_lshl_b32 s{sT2}, s{sH}, 14
        s_add_u32 s{sT2}, s{sT2}, {W0 - vslot(0)}
        v_add_u32 v{vOR0}, s{sT2}, v{vOR0}"""
        for k in range(1, 8): o += f"\nv_xor_b32 v{vOR0+k}, {32*k}, v{vOR0}"
        if a:
            o += f"""
            s_lshr_b32 s{sDX}, s{sJ}, 1
            s_mul_i32 s{sDX}, s{sDX}, -320
            s_add_u32 s{sDX}, s{sDX}, 256
            v_lshrrev_b32 v{t}, 2, v2
            v_mul_u32_u24 v{t}, 1152, v{t}
            v_bfe_u32 v{t+1}, v2, 4, 1
            v_lshlrev_b32 v{t+1}, 1, v{t+1}
            v_and_b32 v{t+2}, 3, v2
            v_xor_b32 v{t+2}, v{t+2}, v{t+1}
            v_lshl_add_u32 v{vXDM}, v{t+2}, 4, v{t}
            v_add_u32 v{vXDM+1}, {16*1152-1024}, v{vXDM}
            v_lshrrev_b32 v{t}, 2, v2
            v_lshlrev_b32 v{t}, 6, v{t}
            v_lshl_add_u32 v{t}, v{t+1}, 4, v{t}
            v_and_b32 v{t+2}, 3, v2
            v_lshl_add_u32 v{t}, v{t+2}, 3, v{t}
            s_lshl_b32 s{sT2}, s{sW}, 11
            s_add_u32 s{sT2}, s{sT2}, {XB}
            v_add_u32 v{vXO}, s{sT2}, v{t}
            v_xor_b32 v{vXO+1}, 32, v{vXO}
            v_xor_b32 v{vXO+2}, 2048, v{vXO}
            v_xor_b32 v{vXO+3}, {2048+32}, v{vXO}"""
        return [x.strip() for x in o.split("\n") if x.strip()]

    def touch_setup(self):
        t = vT + 2
        o = f"""v_lshrrev_b32 v{t}, 3, v0
        v_mul_u32_u24 v{t}, 1152, v{t}
        v_and_b32 v{t+1}, 7, v0
        v_lshl_add_u32 v{t}, v{t+1}, 7, v{t}
        v_lshrrev_b32 v{vNEG}, 2, v{t+1}
        v_lshl_add_u32 v{vNEG}, v{vNEG}, 30, v{t}
        v_add_u32 v{t+1}, 3, v{t+1}
        v_lshrrev_b32 v{t+1}, 3, v{t+1}
        v_lshl_add_u32 v{vNEG+1}, v{t+1}, 30, v{t}
        s_bfe_u32 s74, s{sB}, 0x10002
        s_lshl_b32 s74, s74, 4
        s_and_b32 s73, s{sB}, 3
        s_lshl_b32 s73, s73, 1
        s_add_u32 s74, s74, s73
        s_lshr_b32 s73, s{sJ}, 1
        s_add_u32 s74, s74, s73
        s_mul_i32 s{sTA}, s74, {32*1152}
        s_add_u32 s{sTA+1}, s{sTA}, {256*1152}"""
        return [x.strip() for x in o.split("\n")]
    def touch_ops(self, ops, lo, hi, shift):
        for key in ("aa", "ab", "ba", "bb"):
            val = getattr(self.C, "t" + key)
            if val and val[0] == self.grp and lo <= int(val[1:]) < hi:
                g = int(val[1:]) - shift
                o = Op(f"buffer_load_dword v255, v{vNEG + (key[1] == 'a')}, s[{SWO}:{SWO+3}], s{sTA + (key[0] == 'b')} offen offset:{512 if key[1] == 'a' else 0}", "L", lo=g, dl=g + 4)
                o.tag = "touch"; ops.append(o)
    def before_attention(self): pass

    def loc(self, c):
        k, u = c >> 1, c & 1
        if k & 1: return (u ^ 1) * 32768, W1, u * 8192
        return u * 32768, W0, 16384 + u * 8192
    def dma(self, c):
        k, u = c >> 1, c & 1; off, win, xo = self.loc(c); gs = []
        for g in range(2):
            gs.append([f"s_add_u32 m0, s{sW8K}, {win + off + g*4096}", f"s_add_u32 s{sT1}, s{sSRC+k}, {(u*32 + 16*g)*1152}"]
                      + [f"buffer_load_dwordx4 v{vWD+a}, s[{SWO}:{SWO+3}], s{sT1} offen offset:{a*1024} lds" for a in range(4)])
        if self.grp == "a":
            gs.append([f"s_lshl_b32 m0, s{sW}, 11\ns_add_u32 m0, m0, {XB + xo}", f"s_add_u32 s{sT1}, s{sSRC+k}, {u*32*1152}\ns_add_u32 s{sT1}, s{sT1}, s{sDX}"]
                      + [f"buffer_load_dwordx4 v{vXDM+a}, s[{SWO}:{SWO+3}], s{sT1} offen offset:{a*1024} lds" for a in range(2)])
        return gs
    def oloads(self, k, sreg):
        return [f"buffer_load_dwordx4 {r4('a', 40*(k-1)+4*n)}, v{(3, vKD, vKD+1)[n >> 2]}, s[{SWS}:{SWS+3}], s{sreg} offen offset:{(n & 3)*1024} {self.C.lf}"
                for n in (0, 4, 8, 2, 6, 1, 5, 9, 3, 7)]
    def poll_txt(self): return f"buffer_load_dword v{vPOL}, v{vPA}, s[{SWS}:{SWS+3}], s{sF1} offen sc1"
    def flag_txt(self): return f"s_mov_b64 exec, 1\nbuffer_store_dword v{vRDY}, v{vPA}, s[{SWS}:{SWS+3}], s{sF1} offen {self.C.of}\ns_mov_b64 exec, -1"
    def spin(self, lab, mask):
        return f"""s_mov_b32 s{sCNT}, 0
        {lab}_p:
        {self.poll_txt()}
        s_add_u32 s{sCNT}, s{sCNT}, 1
        s_waitcnt vmcnt(0)
        v_cmp_ne_u32 vcc, 1, v{vPOL}
        s_cmp_ge_u32 s{sCNT}, {SPIN}
        s_cbranch_scc1 {lab}_q
        s_and_b32 s{sT2}, vcc_lo, {mask}
        s_cbranch_scc1 {lab}_p
        {lab}_q:"""
    def acquire(self, ops, mask, gp, gc, first=()):
        self.nl += 1; lab = f"{self.tag}_aq{self.nl}"
        p = Op(self.poll_txt(), "L", lo=gp, dl=gp + 2, after=list(first)); p.tag = lab
        w = waitop([lab], lo=gc - 2, dl=gc - 2, after=[p])
        c = Op(f"v_cmp_ne_u32 vcc, 1, v{vPOL}", "v", lo=gc - 2, dl=gc - 2, same=[w])
        b = Op(f"s_and_b32 s{sT2}, vcc_lo, {mask}\ns_cbranch_scc1 {lab}\n{lab}_r:", "b", lo=gc, dl=gc, after=[c])
        ops += [p, w, c, b]
        self.stubs.append(f"{lab}:\n{self.spin(lab, mask)}\ns_branch {lab}_r")
        return b

    def hook(self, ops, ch, i, G, gate):
        C = self.C
        if i == 0:
            prev = None; su = self.touch_setup() + self.setup_ops()
            for n, t in enumerate(su):
                prev = Op(t, "s" if t[0] == "s" else "v", lo=30, dl=400 - 3 * (len(su) - n), pri=10**5, after=[prev]); ops.append(prev)
        if i == 0: self.touch_ops(ops, 0, 680, 0)
        if i == 4:
            o = Op(f"buffer_load_dword v{vRDY}, v1, s[{SDBG}:{SDBG+3}], s{sRB} offen sc1", "L", lo=G + 93, dl=G + 96); o.tag = "rdy"; ops.append(o)
            lab = f"{self.tag}_rdy"
            w = waitop(["rdy"], lo=G + 161, dl=G + 163, after=[o])
            c = Op(f"v_cmp_ne_u32 vcc, 1, v{vRDY}", "v", lo=G + 162, dl=G + 170, after=[w])
            b = Op(f"s_cbranch_vccnz {lab}\n{lab}_r:", "b", lo=G + 164, dl=G + 178, after=[c], dist=2)
            ops += [w, c, b]; self.rdyok = b
            self.stubs.append(f"""{lab}:
            s_mov_b32 s{sCNT}, 0
            {lab}_p:
            buffer_load_dword v{vRDY}, v1, s[{SDBG}:{SDBG+3}], s{sRB} offen sc1
            s_add_u32 s{sCNT}, s{sCNT}, 1
            s_waitcnt vmcnt(0)
            v_cmp_ne_u32 vcc, 1, v{vRDY}
            s_cmp_ge_u32 s{sCNT}, {SPIN}
            s_cbranch_scc1 {lab}_r
            s_cbranch_vccnz {lab}_p
            s_branch {lab}_r""")
            ch.group(ops, self.dma(0)[0], ("wo", 0), [G + g for g in C.dg[4:]], first=[gate])
        if i == 5:
            ch.group(ops, self.dma(0)[1], ("wo", 0), [G + g for g in C.dg[:4]], first=[gate])
            ch.group(ops, self.dma(1)[0], ("wo", 1), [G + g for g in C.dg[4:]], first=[gate])
        if i == 6:
            ch.group(ops, self.dma(1)[1], ("wo", 1), [G + g for g in C.dg[:4]], first=[gate])
            if self.grp == "b" or C.apre > 2:
                ch.group(ops, self.dma(2)[0], ("wo", 2), [G + g for g in C.dg[4:]], first=[gate])
                ch.group(ops, self.dma(2)[1], ("wo", 2), [G + 85 + g for g in (12, 18, 24, 30)], first=[gate])
            if self.grp == "a":
                ch.group(ops, self.dma(0)[2], ("wo", 0), [G + 85 + g for g in (38, 46)], first=[gate])
                ch.group(ops, self.dma(1)[2], ("wo", 1), [G + 85 + g for g in (54, 62)], first=[gate])
            else:
                ch.group(ops, self.dma(3)[0], ("wo", 3), [G + 85 + g for g in (36, 42, 48, 54)], first=[gate])
                ch.group(ops, self.dma(3)[1], ("wo", 3), [G + 85 + g for g in (60, 65, 69, 75)], first=[gate])
            prev = None
            for k in range(8):
                prev = Op(f"v_xor_b32 v{vOR1+k}, 8192, v{vOR0+k}", "v", lo=G + 76, dl=G + 165, after=[gate]); ops.append(prev)
        if i == 7 and self.grp == "b":
            p = Op(self.poll_txt(), "L", lo=G + C.p1, dl=G + C.p1, after=[self.rdyok]); p.tag = "pol1"; ops.append(p)

    def run(self):
        A, C, vm, NT, tag = self.A, self.C, self.vm, self.NT, self.tag
        a = self.grp == "a"
        def store(k, p):
            if a and C.sr: return
            A(f"buffer_store_dwordx4 {r4('v', ob(k, p))}, v3, s[{SWS}:{SWS+3}], s{sOP+k} offen offset:{p*1024} {C.of}"); vm.add("ost")
        def prebar():
            n = vm.wait(("wo", 0), ("wo", 1))
            return f"vmcnt({n}) " if n is not None else ""
        def checked():
            for n in range(PRE):
                for uu in range(2): A(self.rd((0, 0, 0, n), n, uu))
        self.stubs.append(normalise(A, C, tag, self.name, store, prebar, checked))
        A(f"v_add_u32 v{vKD}, 4096, v3\nv_add_u32 v{vKD+1}, 8192, v3\ns_mov_b32 s{sSAFE}, s{sOP}")
        stamp(A, C, 6)
        kept = lambda k, t: (k == 0) if t >= 8 else (t < 4 if k < 2 else t < 2)
        pool = [vS + 4*i for i in range(10)] + [vO + 80 + 4*i for i in range(4)] + [vO + 8*i + 4 for i in range(4)]
        areg = {}
        for t in range(NT):
            for k in range(3):
                if kept(k, t): areg[(k, t)] = vQ + 40 + 4*(t-8) if t >= 8 else vQ + 16*k + 4*t
                else: areg[(k, t)] = pool.pop(0)
        acc = lambda k, t: r4("v", areg[(k, t)])
        def bfr(s_, k, p): return r4("v", ob(k, p)) if s_ == 0 else r4("a", 40*(s_-1) + 4*(4*k + p))
        frags = []
        NO = C.na if a else C.no
        for c in range(NO):
            for z in range(2):
                for t in range(NT): frags.append((c >> 1, c & 1, z, t))
        us = range(NO - 6, 2)
        frags += [(3, u, 0, t) for t in (3, 2) for u in us]
        frags += [(3, u, z, t) for t in reversed(range(4, NT)) for u in us for z in range(2)]
        frags += [(3, u, 1, t) for t in (3, 2) for u in us]
        frags += [(3, u, z, t) for t in (1, 0) for u in us for z in range(2)]
        NR = 32
        mf = []; first = []; lastuse = []; done = {}
        for n, (s_, u, z, t) in enumerate(frags):
            first.append(len(mf))
            for k in range(3 - z):
                d = acc(k, t)
                mf.append(f"{MF} {d}, {r4('a', aF + 4*(n % NR))}, {bfr(s_, k, 2*z + u)}, {'0' if n < NT else d}")
                done[(k, t)] = len(mf) - 1
            lastuse.append(len(mf) - 1)
        E = len(mf); CH = 5 * NT
        ops = []; ch = Chain(); bars = {}; vis = {}
        LEAD = C.lead
        b1 = Op("s_barrier", "b", lo=6, dl=8)
        if a: ops.append(b1)
        for c in (1, 2, 3, 4, 6):
            g = CH * c - 1
            need = [c + 1] if c + 1 < 6 and not (a and C.v2 and c == 1) else []
            w = waitop([("wo", x) for x in need], lo=g - 1, dl=g - 1)
            bars[c] = Op("s_barrier", "b", lo=g, dl=g, after=[w]); ops += [w, bars[c]]
            for x in need: vis[x] = bars[c]
        for c in sorted({6, NO} | ({2} if a and C.v2 else set())):
            g = CH * c - LEAD - 1; need = [6, 7] if NO == 6 and c == 6 else [c]
            w = waitop([("wo", x) for x in need], lo=g - 1, dl=g - 1)
            o = Op("s_barrier", "b", lo=g, dl=g, after=[w]); ops += [w, o]
            for x in need: vis[x] = o
        last = None; lastrd = {}
        for n in range(PRE, len(frags)):
            s_, u, z, t = frags[n]
            dep = []
            if t < 8 and s_ and lastrd[(z, t)][1] != s_:
                r = (vOR1 if z else vOR0) + t
                tg = Op(f"v_add_u32 v{r}, {(W1 - W0) & 0xffffffff if s_ & 1 else W0 - W1}, v{r}", "v", dl=first[n] - LEAD - 1, after=[lastrd[(z, t)][0]]); ops.append(tg); dep = [tg]
            ld = LEAD + (C.rush if s_ == 3 and first[n] >= NO * CH else 0) * (first[n] - NO * CH) // 10
            for uu in range(2):
                last = Op(self.rd(frags[n], n % NR, uu), "d", lo=max(lastuse[n - NR] if n >= NR else 0, first[n] - ld), dl=first[n] - 7, pri=first[n] - 30, same=[last, vis.get(2*s_ + u)], after=dep); ops.append(last)
            lastrd[(z, t)] = (last, s_)
        fg = C.fga if a else C.fg
        if a and C.sr:
            for n in range(10):
                g = int(1 + C.sr * n)
                o = Op(f"buffer_store_dwordx4 {r4('v', ob(n >> 2, n & 3))}, v{(3, vKD, vKD+1)[n >> 2]}, s[{SWS}:{SWS+3}], s{sSAFE} offen offset:{(n & 3)*1024} {C.of}", "L", lo=g, dl=g + 1); o.tag = "ost"; ops.append(o)
            assert g + 2 < fg
        wst = waitop(["ost"], lo=fg, dl=fg)
        fl = Op(self.flag_txt(), "L", lo=fg + 1, dl=fg + 1, after=[wst]); fl.tag = "flag"; ops += [wst, fl]
        pos = [1.0]
        def place(n, rate):
            g = []
            for _ in range(n): g.append(int(pos[0])); pos[0] += rate
            return g
        def chunk(c, after, lo, rate):
            pos[0] = max(pos[0], lo)
            for x in self.dma(c): ch.group(ops, x, ("wo", c), place(len(x) - 2, rate), first=after)
        def loads(k, after, lo, rate, sreg=None, part=slice(0, 10), waits=True):
            pos[0] = max(pos[0], lo); prev = after
            x = list(enumerate(self.oloads(k, sOS + k - 1 if sreg is None else sreg)))[part]
            for (n, t), g in zip(x, place(len(x), rate)):
                prev = Op(t, "L", lo=g, dl=g, after=[prev]); prev.tag = ("o", k, n); ops.append(prev)
                nd = {2: 0, 4: 3*NT, 7: CH, 9: CH + 3*NT}.get(n)
                if k == 3: nd = {9: 0}.get(n) if NO == 6 else {2: 0, 4: 3*NT, 9: CH}.get(n)
                if waits and nd is not None:
                    assert g < 2*k*CH + nd - 3, (k, n, g)
                    ops.append(waitop([prev.tag], lo=2*k*CH + nd - 3, dl=2*k*CH + nd - 3, after=[prev]))
            return prev
        R = C.lr
        if a:
            if C.apre > 2:
                x = self.dma(2)[2]; pos[0] = 3; ch.group(ops, x, ("wo", 2), place(2, R))
                chunk(3, [b1], 10, R)
            else:
                chunk(2, [], 2, C.l0); chunk(3, [b1], 10, C.l0)
            q = self.acquire(ops, 4, max(C.aq - 22, fg + 2), C.aq, first=[fl])
            p = loads(1, q, C.aq + 2, min(R, (2*CH - 6 - C.aq) / 2), part=slice(0, 5))
            chunk(4, [bars[1]], 0, C.la)
            loads(1, p, 0, C.la, part=slice(5, 10))
            chunk(5, [bars[2]], 0, C.la)
            def soft(k, mask, gp, gc, gate_gap, n1, after):
                lab = f"{tag}_s{k}"
                p = Op(self.poll_txt(), "L", lo=gp, dl=gp + 1, after=after); p.tag = lab
                w = waitop([lab], lo=gc, dl=gc, after=[p])
                c = Op(f"v_cmp_ne_u32 vcc, 1, v{vPOL}", "v", lo=gc, dl=gc, same=[w])
                sl = Op(f"s_and_b32 s{sOK}, vcc_lo, {mask}\ns_cselect_b32 s{sSEL}, {OOB}, s{sOS+k-1}", "b", lo=gc + 2, dl=gc + 2, after=[c])
                l = loads(k, sl, gc + 3, min(R, (gate_gap - gc - 5) / n1), sSEL, part=slice(0, n1), waits=False)
                g = Op(f"s_cmp_lg_u32 s{sOK}, 0\ns_cbranch_scc1 {lab}\n{lab}_r:", "b", lo=gate_gap, dl=gate_gap, after=[l])
                x = self.oloads(k, sOS + k - 1)[:n1]
                self.stubs.append(f"{lab}:\n{self.spin(lab, mask)}\n" + "\n".join(x) + f"\ns_branch {lab}_r")
                ops.extend([p, w, c, sl, g])
                return l, g
            if C.am:
                g0 = max(int(pos[0]), 4*CH - C.am)
                l, g = soft(2, 2, g0 - C.a3, g0, 4*CH - 4, 5, [q])
                ops.append(waitop([l.tag], lo=4*CH - 3, dl=4*CH - 3, after=[g]))
                pos[0] = 4*CH
                loads(2, g, 0, 3, part=slice(5, 10))
                chunk(6, [bars[3]], 0, C.la)
                g1 = int(pos[0])
                l, g = soft(3, 8, g1 - C.a3, g1, g1 + 24, 5, [g])
                ops.append(waitop([l.tag], lo=6*CH - 4, dl=6*CH - 4, after=[g]))
                pos[0] = g1 + 26
                chunk(7, [bars[4], g], 0, C.la)
                loads(3, g, 0, C.la, part=slice(5, 10))
            else:
                chunk(6, [bars[3]], 0, min(R, (4*CH - 4 - max(pos[0], 3*CH + 1)) / 10))
                assert pos[0] < 4*CH
                lab = f"{tag}_late"
                pos[0] = 4*CH
                loads(2, None, 0, 3, part=slice(5, 10))
                ops.append(waitop([("o", 2, 4)], lo=4*CH + 3*NT - 3, dl=4*CH + 3*NT - 3))
                l3 = loads(3, None, 0, R, sSEL, waits=False)
                lg = int(pos[0])
                b = Op(f"s_cmp_lg_u32 s{sOK}, 0\ns_cbranch_scc1 {lab}\n{lab}_r:", "b", lo=lg, dl=lg, after=[l3]); ops.append(b)
                self.stubs.append(f"{lab}:\n{self.spin(lab, 8)}\n" + "\n".join(self.oloads(3, sOS + 2)) + f"\ns_branch {lab}_r")
                ops.append(Op("s_waitcnt vmcnt(0)", "s", lo=6*CH - 4, dl=6*CH - 4, after=[b]))
        else:
            lab = f"{tag}_late"
            w = waitop(["pol1"], lo=C.pc, dl=C.pc)
            c = Op(f"v_cmp_ne_u32 vcc, 1, v{vPOL}", "v", lo=C.pc, dl=C.pc, same=[w])
            sl = Op(f"s_and_b32 s{sOK}, vcc_lo, 10\ns_cselect_b32 s{sSEL}, {OOB}, s{sOS}", "b", lo=C.pc + 2, dl=C.pc + 2, after=[c]); ops += [w, c, sl]
            l1 = loads(1, sl, C.pc + 3, min(R, (44 - C.pc - 3) / 10), sSEL, waits=False)
            lg = max(int(pos[0]) - 2, fg + 2)
            b = Op(f"s_cmp_lg_u32 s{sOK}, 0\ns_cbranch_scc1 {lab}\n{lab}_r:", "b", lo=lg, dl=lg, after=[fl, l1]); ops.append(b)
            self.stubs.append(f"{lab}:\n{self.spin(lab, 10)}\n" + "\n".join(self.oloads(1, sOS)) + f"\ns_branch {lab}_r")
            ops.append(waitop(["flag", l1.tag], lo=2*CH - 3, dl=2*CH - 3, after=[b]))
            chunk(4, [bars[1], b], lg + 2, R)
            chunk(5, [bars[2]], 2*CH + 1, R)
            p = loads(2, b, 0, R)
            q = self.acquire(ops, 4, C.pg, C.pg + 30, first=[b])
            chunk(6, [bars[3]], 0, R)
            p = loads(3, q, C.pg + 32, R, part=slice(0, 5))
            chunk(7, [bars[4]], 0, R)
            loads(3, p, 0, R, part=slice(5, 10))
        print(f"{self.grp} last load gap", pos[0], file=sys.stderr)
        self.touch_ops(ops, 680, 2000, 680)
        if C.sg == 1:
            for n, c in enumerate((2, 4, 6)): ops.append(Op(stamp_txt(C, 1 + n), "s", lo=c*CH - 30, dl=c*CH - 26))
            ops.append(Op(stamp_txt(C, 4), "s", lo=E - 14, dl=E - 12))
        prev = None
        for t in self.reduce_setup() + self.final_setup():
            prev = Op(t, "s" if t[0] == "s" else "v", lo=9, pri=10**4, after=[prev]); ops.append(prev)
        sent = [(2, 1, 4)] + ([(2, 4, 8), (1, 4, 7)] if a else []) + [(2, 3, 6), (0, 3, 1), (1, 3, 3), (2, 2, 5), (0, 2, 0), (1, 2, 2)]
        wr = []
        for k, P, idx in sent:
            x, y = areg[(k, 2*P)], areg[(k, 2*P + 1)]
            p = prev
            for d, s0, tt in ((y + 3, y + 2, 1), (y + 2, y, 1), (y, x, 0), (y + 1, x + 2, 0)):
                lo = done[(k, 2*P + tt)] + 4
                p = Op(f"v_cvt_pk_bf16_f32 v{d}, v{s0}, v{s0+1}", "v", lo=lo, dl=lo + 2, pri=lo - 40, same=[p]); ops.append(p)
            o = Op(f"ds_write_b128 v{vRW}, {r4('v', y)} offset:{idx*1024}", "L", lo=lo + 1, dl=lo + 4, pri=lo - 40, after=[p, bars[6]]); ops.append(o); wr.append(o)
        ww = Op("s_waitcnt lgkmcnt(0)", "s", dl=E - 2, pri=0, after=wr + [last], dist=2)
        bw = Op("s_barrier", "b", dl=E - 1, pri=0, after=[ww]); ops += [ww, bw]
        units = [(0, 1, sPS + 1, [(2, 3)]), (1, 1, sPS + 3, [(2, 1)])] + ([(0, 4, sOP, [(2, 7)])] if a else [])
        units += [(0, 0, sPS, [(2, 2)]), (1, 0, sPS + 2, [(2, 0)]), (2, 0, sPS + 4, [(1, 4), (2, 5), (3, 6)])]
        if a: units.insert(0, (2, 4, sOP + 1, [(1, 8), (2, 8), (3, 8)]))
        prev = bw; n = 0
        for k, P, so, fr in units:
            x, y = areg[(k, 2*P)], areg[(k, 2*P + 1)]
            if (k, P) == (2, 4): x, y = vO, vO + 8; fr = [(0, 8)] + fr
            for j, (xw, idx) in enumerate(fr):
                prev = Op(f"ds_read_b128 {r4('a', 4*n)}, v{vRW + xw} offset:{idx*1024}", "d", dl=E - 1, same=[prev]); ops.append(prev)
                for e, d in enumerate((x, y)):
                    mf.append(f"{MF} {r4('v', d)}, {r4('v', vSEL + 2 - 2*e)}, {r4('a', 4*n)}, {'0' if (k, P, j) == (2, 4, 0) else r4('v', d)}")
                n += 1
            lo = len(mf) + 3; p = None
            for d, s0 in ((x, x), (x + 1, x + 2), (x + 2, y), (x + 3, y + 2)):
                p = Op(f"v_cvt_pk_bf16_f32 v{d}, v{s0}, v{s0+1}", "v", lo=lo, same=[p]); ops.append(p)
            for d in (x, x + 1):
                p = Op(f"v_permlane16_swap_b32 v{d}, v{d+2}", "e", after=[p]); ops.append(p)
            p = Op(f"buffer_store_dwordx4 {r4('v', x)}, v{vPSA}, s[{SWS}:{SWS+3}], s{so} offen sc1", "L", after=[p]); ops.append(p)
        out, over, idle = schedule(mf, ops, 60)
        print(f"outproj {self.grp}: overflow {over} idle {idle}", file=sys.stderr)
        for o in out:
            if isinstance(o, str): continue
            if "W" in C.abl2 and o.txt.startswith("ds_write"): o.txt = "s_nop 0"
            if "X" in C.abl2 and o.txt.startswith((f"buffer_load_dwordx4 v{vXDM},", f"buffer_load_dwordx4 v{vXDM+1},")): o.txt = "s_nop 0"; o.tag = None
            if "L" in C.abl2 and o.txt.startswith("buffer_load_dwordx4"): o.txt = "s_nop 0"; o.tag = None
        k0 = max(i for i, o in enumerate(out) if isinstance(o, str) and o.startswith(MF)) + 1
        rest = [o for o in out[k0:] if not isinstance(o, str)]
        out = out[:k0] + sorted(rest, key=lambda o: ({"v": 0, "e": 1, "L": 1}[o.kind], o.id))
        if a and not C.am:
            class Raw:
                def __init__(s, txt, tag=None, want=None): s.txt = txt; s.tag = tag; s.want = want
            lab = f"{tag}_w2"
            ins = [Raw(self.poll_txt(), lab)]
            for x in self.dma(7): ins += [Raw(x[0]), Raw(x[1])] + [Raw(y, ("wo", 7)) for y in x[2:]]
            ins += [Raw("", None, [lab]), Raw(f"v_cmp_ne_u32 vcc, 1, v{vPOL}\ns_nop 0\ns_and_b32 s{sT2}, vcc_lo, 2\ns_cbranch_scc1 {lab}\n{lab}_r:")]
            self.stubs.append(f"{lab}:\n{self.spin(lab, 2)}\ns_branch {lab}_r")
            ins += [Raw(f"s_and_b32 s{sOK}, vcc_lo, 8\ns_cselect_b32 s{sSEL}, {OOB}, s{sOS+2}")]
            ins += [Raw(t, ("o", 2, n)) for n, t in enumerate(self.oloads(2, sOS + 1)[:5])]
            ins += [Raw("", None, [("o", 2, 2)])]
            i1 = [i for i, o in enumerate(out) if isinstance(o, str) and o.startswith(MF)][4*CH]
            out = out[:i1] + ins + out[i1:]
        emit(A, vm, out)
        self.final()

    def rd(self, fr, slot, uu):
        s_, u, z, t = fr; off, win, xo = self.loc(2*s_ + u); r = aF + 4*slot + 2*uu
        if t >= 8: return f"ds_read_b64_tr_b16 a[{r}:{r+1}], v{vXO + 2*z + t - 8} offset:{xo + uu*1024}"
        return f"ds_read_b64_tr_b16 a[{r}:{r+1}], v{(vOR1 if z else vOR0) + t} offset:{off + uu*4096}"

    def reduce_setup(self):
        o = ""
        for x in range(4):
            o += f"s_xor_b32 s{sX0}, s{sW}, {x}\ns_lshl_b32 s{sX0}, s{sX0}, 14\ns_add_u32 s{sX0}, s{sX0}, {W0}\nv_add_u32 v{vRW+x}, s{sX0}, v3\n"
        o += f"""v_bfe_u32 v{vPSA+1}, v2, 4, 1
        v_lshrrev_b32 v{vPSA}, 5, v2
        v_lshl_add_u32 v{vPSA}, v{vPSA+1}, 1, v{vPSA}
        v_lshlrev_b32 v{vPSA}, 4, v{vPSA}
        v_and_b32 v{vPSA+1}, 15, v2
        v_lshl_add_u32 v{vPSA}, v{vPSA+1}, 6, v{vPSA}
        s_mul_i32 s{sPS+5}, s{sB}, {BAT}
        s_mul_i32 s{sX0}, s{sHKV}, {BLK}
        s_add_u32 s{sPS+5}, s{sPS+5}, s{sX0}
        s_add_u32 s{sPS+5}, s{sPS+5}, {PART}
        s_mul_i32 s{sPS+4}, s{sW}, 5120
        s_add_u32 s{sPS+4}, s{sPS+4}, s{sPS+5}
        s_xor_b32 s{sPS+2}, s{sW}, 1
        s_mul_i32 s{sPS+2}, s{sPS+2}, 5120
        s_add_u32 s{sPS+2}, s{sPS+2}, s{sPS+5}
        s_lshl_b32 s{sX0}, s{sS}, 1
        s_add_u32 s{sX0}, s{sX0}, s{sH}
        s_lshl_b32 s{sX0}, s{sX0}, 10
        s_add_u32 s{sPS}, s{sPS+4}, s{sX0}
        s_add_u32 s{sPS+1}, s{sPS+2}, s{sX0}
        s_add_u32 s{sOP}, s{sPS+5}, s{sX0}
        s_add_u32 s{sOP}, s{sOP}, 20480
        s_xor_b32 s{sX0}, s{sX0}, 1024
        s_add_u32 s{sPS+3}, s{sPS+2}, s{sX0}
        s_add_u32 s{sPS+2}, s{sPS+4}, s{sX0}
        s_add_u32 s{sPS+4}, s{sPS+4}, 4096
        s_add_u32 s{sOP+1}, s{sPS+5}, {20480 + 4096}
        s_xor_b32 s{sX0}, s{sW}, 3
        s_min_u32 s{sX0}, s{sX0}, 1
        s_lshl_b32 s{sX0}, s{sX0}, 30
        s_or_b32 s{sOP+1}, s{sOP+1}, s{sX0}
        v_lshrrev_b32 v{vSEL}, 4, v2
        v_bfe_u32 v{vSEL+1}, v2, 2, 2
        v_xor_b32 v{vSEL}, v{vSEL}, v{vSEL+1}
        v_min_u32 v{vSEL}, 1, v{vSEL}
        v_sub_u32 v{vSEL}, 1, v{vSEL}
        v_mul_u32_u24 v{vSEL}, 0x3f80, v{vSEL}
        v_and_b32 v{vSEL+1}, 1, v2
        v_lshlrev_b32 v{vSEL+1}, 4, v{vSEL+1}
        v_lshlrev_b32 v{vSEL}, v{vSEL+1}, v{vSEL}
        v_bfe_u32 v{vSEL+1}, v2, 1, 1
        v_sub_u32 v{vSEL+1}, 0, v{vSEL+1}
        v_and_b32 v{vSEL+3}, v{vSEL}, v{vSEL+1}
        v_xor_b32 v{vSEL+2}, v{vSEL}, v{vSEL+3}
        v_mov_b32 v{vSEL}, 0
        v_mov_b32 v{vSEL+1}, 0
        v_mov_b32 v{vSEL+4}, 0
        v_mov_b32 v{vSEL+5}, 0"""
        return [x.strip() for x in o.split("\n") if x.strip()]

    def final_setup(self):
        a = self.grp == "a"; NP = 400 if a else 320
        t = vF + 5
        o = f"""s_mul_i32 s{sX0}, s{sHG}, {NP}
        v_add_u32 v{vF}, s{sX0}, v0
        v_add_u32 v{vF+1}, 256, v{vF}
        s_mov_b32 s{sX0}, 52429
        """
        for r in range(2):
            o += f"""v_mul_u32_u24 v{t}, s{sX0}, v{vF+r}
            v_lshrrev_b32 v{t}, 24, v{t}
            v_mul_u32_u24 v{t+1}, 320, v{t}
            v_sub_u32 v{t+1}, v{vF+r}, v{t+1}
            v_lshrrev_b32 v{t+1}, 2, v{t+1}
            v_mul_u32_u24 v{t+1}, 1152, v{t+1}
            v_lshl_add_u32 v{t+1}, v{t}, 6, v{t+1}
            v_add_u32 v{t+1}, s{sPS+6}, v{t+1}
            """
            if a: o += f"""v_lshrrev_b32 v{t}, 2, v{t}
            v_mul_u32_u24 v{t}, s{sJ}, v{t}
            v_mul_u32_u24 v{t}, 160, v{t}
            v_sub_u32 v{t+1}, v{t+1}, v{t}
            """
            o += f"""v_and_b32 v{t}, 3, v{vF+r}
            v_lshl_add_u32 v{vF+2+r}, v{t}, 4, v{t+1}
            v_lshlrev_b32 v{vF+r}, 4, v{vF+r}
            """
        o += f"""v_sub_u32 v{t}, {NP - 257}, v0
        v_and_b32 v{t}, 0x40000000, v{t}
        v_or_b32 v{vF+1}, v{vF+1}, v{t}
        v_or_b32 v{vF+3}, v{vF+3}, v{t}
        s_mul_i32 s{sF2}, s{sB}, {BAT}
        s_lshl_b32 s{sX0}, s{sJ}, 11
        s_add_u32 s{sF2}, s{sF2}, s{sX0}
        s_add_u32 s{sF2}, s{sF2}, {FL + 32768}
        v_and_b32 v{vF+4}, 3, v2
        v_xor_b32 v{vF+4}, s{sHG}, v{vF+4}
        v_lshlrev_b32 v{vF+4}, 2, v{vF+4}
        s_mul_i32 s{sF2+1}, s{sB}, {BAT}
        s_mul_i32 s{sX0}, s{sJ}, {BLK}
        s_add_u32 s{sF2+1}, s{sF2+1}, s{sX0}
        s_add_u32 s{sF2+1}, s{sF2+1}, {PART}
        s_mul_i32 s{sOP+2}, s{sB}, 92160"""
        return [x.strip() for x in o.split("\n") if x.strip()]

    def final(self):
        A, C, tag = self.A, self.C, self.tag
        stamp(A, C, 7)
        A(f"""s_mov_b32 s{sCNT}, 0
        s_waitcnt vmcnt(0)
        s_barrier""")
        stamp(A, C, 8)
        A(f"""s_cmp_lg_u32 s{sW}, 0
        s_cbranch_scc1 {tag}_fq
        s_mov_b64 exec, 1
        buffer_store_dword v{vRDY}, v{vF+4}, s[{SWS}:{SWS+3}], s{sF2} offen sc1
        s_mov_b64 exec, 14""")
        pl = lambda k: f"buffer_load_dword v{vS+k}, v{vF+4}, s[{SWS}:{SWS+3}], s{sF2} offen sc1"
        D = C.pd
        for k in range(D - 1): A(pl(k) + f"\ns_sleep {C.ps}")
        A(f"{tag}_fp:")
        for k in range(D):
            A(f"""{pl((k + D - 1) % D)}
            s_waitcnt vmcnt({D - 1})
            v_cmp_ne_u32 vcc, 1, v{vS+k}
            s_add_u32 s{sCNT}, s{sCNT}, 1
            s_and_b32 s{sT2}, vcc_lo, 14
            s_cbranch_scc0 {tag}_fq""")
        A(f"s_cmp_lt_u32 s{sCNT}, {SPIN}\ns_cbranch_scc1 {tag}_fp\n{tag}_fq:\ns_mov_b64 exec, -1\ns_barrier")
        stamp(A, C, 9)
        for p in range(4):
            for r in range(2): A(f"buffer_load_dwordx4 {r4('a', 16*r+4*p)}, v{vF+r}, s[{SWS}:{SWS+3}], s{sF2+1} offen sc1")
            if p < 3: A(f"s_add_u32 s{sF2+1}, s{sF2+1}, {4*BLK}")
        for p in range(4):
            A(f"s_waitcnt vmcnt({(3-p)*2})")
            for r in range(2):
                for e in range(2):
                    d = r4("v", vO + 8*r + 4*e)
                    A(f"{MF} {d}, {r4('v', vSEL + 2 - 2*e)}, {r4('a', 16*r+4*p)}, {'0' if p == 0 else d}")
        for r in range(2):
            pack(A, vO + 8*r, vO + 8*r + 4, vO + 8*r, None, False)
            A(f"buffer_store_dwordx4 {r4('v', vO+8*r)}, v{vF+2+r}, s[{SOUT}:{SOUT+3}], s{sOP+2} offen {C.outf}")
        if C.stamps: A("s_waitcnt vmcnt(0)\ns_barrier")
        stamp(A, C, 10)
        flush(A, C, self.name)
        A("s_endpgm")
```

```python
import sys, math, struct, json
from asmlib import *
from sched import Op, schedule, ORDER as ORD
import hazard
QSCALE = struct.unpack("<I", struct.pack("<f", math.log2(math.e) / math.sqrt(128.0)))[0]
STAMP = 64 << 20
OOB = 0x7fff0000
SPIN = 200000
MF = "v_mfma_f32_16x16x32_bf16"
LLO, LHI = (127 - 60) << 23, (127 + 60) << 23

SDBG, SX, SK, SV, SWQ, SWO, SWS, SOUT = 4, 20, 24, 28, 32, 36, 40, 44
sW, sH, sS, sJ, sHG, sB, sHKV, sW4K, sX0, sT0, sT1, sT2, sQS, sRET, sSAFE, sCNT = 48, 49, 50, 51, 52, 53, 54, 55, 56, 57, 58, 59, 60, 62, 64, 65
sU = 8
sST = 76
vWD, vXD, vKD, vVD, vWR, vXR, vKR, vVR, vT = 4, 8, 11, 15, 17, 25, 31, 39, 55
vQ, vO, vS, vE = 64, 112, 208, 248
vNEG = 252
aK, aV, aL, aONE = 0, 128, 192, 204
aWA, aWB = 64, 208
XR, WQR, QX = 94208, 114688, 81920
def kslot(i): return (i % 3) * 16384
def vslot(i): return 49152 + (i % 3) * 16384
ORDER = ["K0"] + [x for i in range(7) for x in (f"K{i+1}", f"V{i}")] + ["V7"]
JSLOT, JSET = [0, 1, 2, 0, 1], [0, 0, 0, 1, 1]

class Cfg:
    nact = 256; abl = ""; abl0 = ""; fine = ""; abl2 = ""; wg = 7; cyc = 0; NB = 4; lagb = 0; laga = 0; latev = 0; tlb = 1; wpre = ""; tsh = 16; stamps = 0; tail = "h"; split = 3; touch = "XoWm"; outf = ""; wsp = 0; wp = 0; vz = 0; v0 = 10; v1 = 6; kd = 70; sr = 0; fga = 40; pc = 0; am = 0; a3 = 25; v2 = 0; l0 = 2.6; p1 = 45; hop = 2; da = "500-5"; db = "520-4.2"
    dg = (76, 78, 80, 82, 85, 87, 89, 91); of = "sc1"; dual = 1; taa = "a425"; tba = "a620"; tab = "b428"; tbb = "b425"; wbb = 460; rn = 1; tf = ""; apre = 2; wa = 540; wb = -1; lf = "sc1"; fg = 50; lr = 4.2; la = 3.4; pd = 1; ps = 4; na = 6; rush = 3; pg = 140; aq = 62; lead = 12; no = 7; sg = 0
    def __init__(self, **kw):
        for k, val in kw.items(): setattr(self, k, val)
        if isinstance(self.dg, str): self.dg = tuple(int(x) for x in self.dg.split('-'))

class VM:
    def __init__(self): self.q = []
    def add(self, tag, n=1): self.q += [tag] * n
    def wait(self, *tags):
        idx = [i for i, t in enumerate(self.q) if t in tags]
        if not idx: return None
        n = len(self.q) - 1 - max(idx)
        self.q = self.q[max(idx) + 1:]
        assert n <= 63
        return n

def srd(A, d, base, off, size):
    if off is None: A(f"s_mov_b32 s{d}, s{base}\ns_mov_b32 s{d+1}, s{base+1}")
    else: A(f"s_add_u32 s{d}, s{base}, {off}\ns_addc_u32 s{d+1}, s{base+1}, 0")
    A(f"s_mov_b32 s{d+2}, {size}\ns_mov_b32 s{d+3}, 0x20000")
def stamp_txt(C, i): return f"{'s_memtime' if C.cyc else 's_memrealtime'} s[{sST+2*i}:{sST+2*i+1}]"
def stamp(A, C, i):
    if C.stamps and not C.fine: A(stamp_txt(C, i))
def fine(C, phase, out):
    if not C.fine or C.fine[0] != phase: return out
    g0, dg = (int(x) for x in C.fine[1:].split("-")); res = []; n = 0
    for i, o in enumerate(out):
        res.append(o)
        if isinstance(o, str) and o.startswith(MF):
            if n >= g0 and (n - g0) % dg == 0 and (n - g0) // dg < 13:
                res.append(stamp_txt(C, (n - g0) // dg))
                if out[i + 1] == ";sfree": out[i + 1] = ";"
            n += 1
    return res
def r4(p, i): return f"{p}[{i}:{i+3}]"

def emit(A, vm, out):
    for o in out:
        if isinstance(o, str): A(o); continue
        if getattr(o, "want", None) is not None:
            n = vm.wait(*o.want)
            if n is None: A(f"s_waitcnt {o.txt}" if o.txt else ";sfree")
            else: A(f"s_waitcnt vmcnt({n}) {o.txt}")
        else: A(o.txt)
        if getattr(o, "tag", None) is not None: vm.add(o.tag, getattr(o, "cnt", 1))
def waitop(tags, extra="", **kw):
    o = Op(extra, "s", **kw); o.want = tags; return o
class Chain:
    def __init__(self): self.last = None
    def group(self, ops, x, tag, gaps, first=(), nscal=2):
        prev = self.last
        for t in reversed(x[:nscal]):
            o = Op(t, "s", lo=gaps[0] - 2, dl=gaps[0], pri=gaps[0] - 2, after=[prev] if prev and prev.kind == "L" else [], same=[prev] if prev and prev.kind == "s" else [])
            ops.append(o); prev = o
        for t, gp in zip(x[len(x) - len(gaps):] if nscal == 1 else x[2:], gaps):
            o = Op(t, "L", lo=gp, dl=gp, after=[prev] + list(first))
            o.tag = tag; ops.append(o); prev = o
        self.last = prev
        return prev

def prologue(A, C, name):
    A(f"""s_load_dwordx16 s[4:19], s[0:1], 0
    s_cmp_ge_u32 s2, {C.nact}
    s_cbranch_scc1 {name}_end""")
    stamp(A, C, 0)
    A(f"""v_lshrrev_b32 v1, 6, v0
    v_and_b32 v2, 63, v0
    v_readfirstlane_b32 s{sW}, v1
    s_and_b32 s{sHG}, s2, 3
    s_bfe_u32 s{sJ}, s2, 0x20003
    s_lshr_b32 s{sB}, s2, 5
    s_bfe_u32 s{sT0}, s2, 0x10002
    s_lshl_b32 s{sT0}, s{sT0}, 3
    s_add_u32 s{sB}, s{sB}, s{sT0}
    s_lshl_b32 s{sHKV}, s{sHG}, 2
    s_add_u32 s{sHKV}, s{sHKV}, s{sJ}
    s_lshr_b32 s{sH}, s{sW}, 1
    s_and_b32 s{sS}, s{sW}, 1
    s_lshl_b32 s{sW4K}, s{sW}, 12""")

def code_touch(A, name):
    A(f"""s_getpc_b64 s[{sRET}:{sRET+1}]
    {name}_pc:
    s_sub_u32 s{sRET}, s{sRET}, {name}_pc-{name}_kernel
    s_subb_u32 s{sRET+1}, s{sRET+1}, 0
    s_lshr_b32 s{sT0}, s2, 4
    v_lshl_add_u32 v1, v0, 4, s{sT0}
    v_lshlrev_b32 v1, 7, v1
    v_min_u32 v1, {name}_hot-{name}_kernel-4, v1
    s_cmp_lg_u32 s{sW}, 0
    s_cbranch_scc1 {name}_nc
    global_load_dword v255, v1, s[{sRET}:{sRET+1}]
    {name}_nc:""")

def w_addresses(A):
    t = vT
    A(f"""s_mul_i32 s{sX0}, s{sW}, 2560
    s_add_u32 s{sX0}, s{sX0}, {XR}
    v_lshrrev_b32 v{t}, 4, v2
    v_and_b32 v{t+1}, 15, v2
    v_lshlrev_b32 v{t+2}, 1, v{t}
    v_xor_b32 v{t+2}, v{t+1}, v{t+2}
    v_lshlrev_b32 v{t+2}, 4, v{t+2}
    v_lshl_add_u32 v{vWD}, v{t}, 13, v{t+2}
    v_xor_b32 v{vWD+2}, 128, v{vWD}
    v_add_u32 v{vWD+1}, {4*8192-1024}, v{vWD}
    v_add_u32 v{vWD+3}, {12*8192-3072}, v{vWD+2}
    v_add_u32 v{vWD+2}, {8*8192-2048}, v{vWD+2}
    v_lshrrev_b32 v{t}, 3, v2
    v_and_b32 v{t+1}, 7, v2
    s_mul_i32 s{sT0}, s{sW}, 20
    v_add_u32 v{t+2}, s{sT0}, v{t}
    v_bfe_u32 v{t+3}, v{t+2}, 1, 3
    v_xor_b32 v{t+3}, v{t+1}, v{t+3}
    v_mul_u32_u24 v{t+2}, 1152, v{t+2}
    v_lshl_add_u32 v{vXD}, v{t+3}, 4, v{t+2}
    v_xor_b32 v{vXD+1}, 64, v{vXD}
    v_add_u32 v{vXD+1}, {8*1152-1024}, v{vXD+1}
    v_add_u32 v{vXD+2}, {16*1152-2048}, v{vXD}""")
def w_srds(A):
    A(f"s_mul_i32 s{sT0}, s{sB}, 92160")
    srd(A, SX, 4, f"s{sT0}", 92160)
    A(f"""s_lshl_b32 s{sT0}, s{sHKV}, 9
    s_lshl_b32 s{sT2}, s{sH}, 8
    s_add_u32 s{sT0}, s{sT0}, s{sT2}
    s_lshl_b32 s{sT2}, s{sS}, 17
    s_add_u32 s{sT0}, s{sT0}, s{sT2}
    s_sub_u32 s{sT2}, {576*8192}, s{sT0}""")
    srd(A, SWQ, 10, f"s{sT0}", f"s{sT2}")
def kv_setup(A):
    t = vT
    A(f"""v_lshrrev_b32 v{t}, 4, v2
    v_and_b32 v{t+1}, 15, v2
    v_lshlrev_b32 v{t+2}, 1, v{t}
    v_xor_b32 v{t+2}, v{t+1}, v{t+2}
    v_lshlrev_b32 v{t+2}, 4, v{t+2}
    v_lshl_add_u32 v{vVD}, v{t}, 8, v{t+2}
    v_xor_b32 v{vVD+1}, 128, v{vVD}
    v_xor_b32 v{t+2}, v{t+1}, v{t}
    v_lshlrev_b32 v{t+2}, 4, v{t+2}
    v_lshl_add_u32 v{vKD}, v{t}, 8, v{t+2}
    v_xor_b32 v{vKD+1}, 64, v{vKD}
    v_xor_b32 v{vKD+2}, 128, v{vKD}
    v_xor_b32 v{vKD+3}, 192, v{vKD}
    s_lshl_b32 s{sT1}, s{sB}, 4
    s_add_u32 s{sT1}, s{sT1}, s{sHKV}
    s_lshl_b32 s{sT1}, s{sT1}, 17""")
    srd(A, SK, 6, f"s{sT1}", 131072)
    srd(A, SV, 8, f"s{sT1}", 131072)

def late_addresses(A, C):
    g, q, r, cc, t = vT, vT + 1, vT + 2, vT + 3, vT + 4
    A(f"""v_lshrrev_b32 v{g}, 4, v2
    v_and_b32 v{q}, 15, v2
    v_bfe_u32 v{r}, v2, 2, 2
    v_and_b32 v{cc}, 3, v2
    v_and_b32 v{t+2}, 1, v{g}
    v_lshl_add_u32 v{t+1}, v{t+2}, 2, v{r}
    v_lshlrev_b32 v{t+1}, 5, v{t+1}
    v_lshl_add_u32 v{t+1}, v{cc}, 3, v{t+1}
    s_lshl_b32 s{sT1}, s{sS}, 7
    v_xor_b32 v{t+1}, s{sT1}, v{t+1}
    v_lshl_add_u32 v{t}, v{g}, 3, v{r}
    v_lshl_add_u32 v{t}, v{t}, 8, v{t+1}
    s_lshl_b32 s{sT0}, s{sH}, 13
    s_add_u32 s{sT0}, s{sT0}, {WQR}
    v_add_u32 v{vWR}, s{sT0}, v{t}""")
    for k in range(1, 8): A(f"v_xor_b32 v{vWR+k}, {32*k}, v{vWR}")
    A(f"""v_lshl_add_u32 v{t}, v{g}, 2, v{r}
    v_lshl_add_u32 v{t}, v{t}, 8, v{t+1}
    s_lshl_b32 s{sT0}, s{sS}, 13
    s_add_u32 s{sT2}, s{sT0}, {vslot(0)}
    v_add_u32 v{vVR}, s{sT2}, v{t}""")
    for k in range(1, 16): A(f"v_xor_b32 v{vVR+k}, {32*(k & 7) + 8192*(k >> 3)}, v{vVR}")
    A(f"""v_lshrrev_b32 v{t}, 1, v{g}
    v_lshl_add_u32 v{t}, v{t+2}, 1, v{t}
    v_xor_b32 v{t}, v{t}, v{q}
    v_lshlrev_b32 v{t}, 4, v{t}
    v_xor_b32 v{t}, s{sT1}, v{t}
    v_lshl_add_u32 v{t}, v{q}, 8, v{t}
    v_add_u32 v{vKR}, s{sT0}, v{t}""")
    for k in range(1, 8): A(f"v_xor_b32 v{vKR+k}, {64*(k & 3) + 8192*(k >> 2)}, v{vKR}")
    A(f"""v_lshrrev_b32 v{t}, 1, v{q}
    v_xor_b32 v{t}, v{t}, v{g}
    v_lshlrev_b32 v{t}, 4, v{t}
    v_lshl_add_u32 v{t}, v{q}, 7, v{t}
    s_lshl_b32 s{sT0}, s{sS}, 1
    s_add_u32 s{sT0}, s{sT0}, s{sH}
    s_lshl_b32 s{sT0}, s{sT0}, 11
    s_xor_b32 s{sT1}, s{sT0}, 2048
    s_add_u32 s{sT0}, s{sT0}, {XR}
    s_add_u32 s{sT1}, s{sT1}, {XR}
    v_add_u32 v{vXR}, s{sT0}, v{t}
    v_add_u32 v{vXR+2}, s{sT1}, v{t}
    v_add_u32 v{vXR+4}, {XR + 8192}, v{t}""")
    for k in range(3): A(f"v_xor_b32 v{vXR+2*k+1}, 64, v{vXR+2*k}")
    A(f"""v_lshlrev_b32 v3, 4, v2
    v_mov_b32 v1, 0
    s_mov_b32 s{sQS}, {QSCALE}
    s_mov_b32 s{sQS+1}, {QSCALE}
    s_mov_b32 s{sSAFE}, 1
    v_mov_b32 v{vNEG+2}, 0
    v_mov_b32 v{t}, 0x3f803f80""")
    for i in range(4): A(f"v_accvgpr_write_b32 a{aONE+i}, v{t}")
    A(f"s_mul_i32 s{sT0}, s{sHG}, {1024*1152}")
    srd(A, SWO, 12, f"s{sT0}", 1024 * 1152)
    srd(A, SOUT, 14, None, 1280 * 1152)
    srd(A, SDBG, 16, None, 256)

def touches(A, C, vm, first, mid):
    x, w = vQ + 8, vQ + 9
    A(f"""v_lshlrev_b32 v{x}, 7, v0
    v_cmp_gt_u32 vcc, 180, v0
    v_mov_b32 v{vT+1}, {OOB}
    s_lshr_b32 s{sT0}, s{sJ}, 1
    s_mul_i32 s{sT0}, s{sT0}, 46080
    v_cndmask_b32 v{x}, v{vT+1}, v{x}, vcc
    s_mul_i32 s{sT1}, s{sB}, 92160
    s_add_u32 s{sT0}, s{sT0}, s{sT1}
    v_lshrrev_b32 v{w}, 2, v0
    v_and_b32 v{vT+1}, 3, v0
    s_and_b32 s{sT1}, s{sB}, 7
    v_lshl_add_u32 v{w}, v{w}, 3, s{sT1}
    v_lshlrev_b32 v{w}, 13, v{w}
    v_lshl_add_u32 v{w}, v{vT+1}, 7, v{w}
    s_waitcnt lgkmcnt(0)""")
    first()
    srd(A, SOUT, 4, f"s{sT0}", 46080)
    srd(A, SWO, 10, None, 576 * 8192)
    for ch in C.touch:
        if ch == "X":
            A(f"buffer_load_dword v255, v{x}, s[{SOUT}:{SOUT+3}], 0 offen\ns_mov_b32 s{sT0}, 23040\nbuffer_load_dword v255, v{x}, s[{SOUT}:{SOUT+3}], s{sT0} offen"); vm.add("touch", 2)
        if ch in "oW":
            A(f"""s_xor_b32 s{sT0}, s{sHKV}, {1 if ch == 'o' else 0}
            s_lshl_b32 s{sT0}, s{sT0}, 9
            buffer_load_dword v255, v{w}, s[{SWO}:{SWO+3}], s{sT0} offen
            s_add_u32 s{sT0}, s{sT0}, {512*8192}
            buffer_load_dword v255, v{w}, s[{SWO}:{SWO+3}], s{sT0} offen"""); vm.add("touch", 2)
        if ch in "hl":
            A(f"""s_lshl_b32 s{sT0}, s{sHKV}, 9
            s_cmp_{'lt' if ch == 'h' else 'ge'}_u32 s{sW}, 2
            s_cselect_b32 s{sT2}, s{sT0}, {OOB}
            buffer_load_dword v255, v{w}, s[{SWO}:{SWO+3}], s{sT2} offen"""); vm.add("touch")
            if ch == "l": A(f"s_add_u32 s{sT0}, s{sT0}, {512*8192}\nbuffer_load_dword v255, v{w}, s[{SWO}:{SWO+3}], s{sT0} offen"); vm.add("touch")
        if ch == "m": mid()

def wo_touches(A, C, vm):
    if not C.wpre: return
    t = vT
    A(f"s_mul_i32 s{sT0}, s{sHG}, {1024*1152}")
    srd(A, SWO, 12, f"s{sT0}", 1024 * 1152)
    A(f"""v_lshrrev_b32 v{t}, 2, v0
    v_mul_u32_u24 v{t}, 1152, v{t}
    v_and_b32 v{t+1}, 3, v0
    v_lshl_add_u32 v{t+2}, v{t+1}, 7, v{t}
    s_and_b32 s{sT0}, s{sB}, 7
    s_lshl_b32 s{sT0}, s{sT0}, 1
    s_lshr_b32 s{sT2}, s{sJ}, 1
    s_add_u32 s{sT0}, s{sT0}, s{sT2}
    s_mul_i32 s{sT0}, s{sT0}, 73728
    v_cmp_eq_u32 vcc, 0, v{t+1}
    v_mov_b32 v{t+1}, {OOB}
    s_nop 0
    v_cndmask_b32 v{t}, v{t+1}, v{t}, vcc""")
    if "b" in C.wpre: A(f"buffer_load_dword v255, v{t+2}, s[{SWO}:{SWO+3}], s{sT0} offen"); vm.add("touch")
    if "a" in C.wpre:
        A(f"buffer_load_dword v255, v{t+2}, s[{SWO}:{SWO+3}], s{sT0} offen offset:512\nbuffer_load_dword v255, v{t}, s[{SWO}:{SWO+3}], s{sT0} offen offset:1024"); vm.add("touch", 2)

def dma_kv(name, slot=None, so=None):
    i = int(name[1:])
    if name[0] == "V": sr, sl, va = SV, vslot(i), [vVD, vVD + 1, vVD, vVD + 1]
    else: sr, sl, va = SK, kslot(i), [vKD + a for a in range(4)]
    o = [f"s_add_u32 m0, s{sW4K}, {sl if slot is None else slot}", f"s_add_u32 s{sT1}, s{sW4K}, {i*16384 if so is None else so}"]
    return o + [f"buffer_load_dwordx4 v{va[a]}, s[{sr}:{sr+3}], s{sT1} offen offset:{a*1024} nt lds" for a in range(4)]
def dma_wq(j):
    o = [f"s_add_u32 m0, s{sW4K}, {WQR + (j % 3)*16384}", f"s_mov_b32 s{sT1}, {j*262144}"]
    return o + [f"buffer_load_dwordx4 v{vWD+a}, s[{SWQ}:{SWQ+3}], s{sT1} offen offset:{a*1024} lds" for a in range(4)]
def dma_x(t):
    o = [f"s_add_u32 m0, s{sX0}, {(t % 2)*10240}", f"s_mov_b32 s{sT0}, {t*128}"]
    o += [f"buffer_load_dwordx4 v{vXD+i}, s[{SX}:{SX+3}], s{sT0} offen offset:{i*1024} lds" for i in range(2)]
    o += [f"s_mov_b32 exec_hi, 0\nbuffer_load_dwordx4 v{vXD+2}, s[{SX}:{SX+3}], s{sT0} offen offset:2048 lds\ns_mov_b32 exec_hi, -1"]
    return o
def w_reads(j):
    p = j & 1
    o = [("D", f"ds_read_b128 {r4('a', aWB+12*p+4*k)}, v{vXR+2*k+p} offset:{((j >> 1) % 2)*10240}") for k in range(3)]
    for t in range(8):
        for u in range(2): o.append(("d", f"ds_read_b64_tr_b16 a[{aWA+32*p+4*t+2*u}:{aWA+32*p+4*t+2*u+1}], v{vWR+t} offset:{(j % 3)*16384 + u*1024}"))
    return o
def k_reads(i, buf=None, slot=None):
    b = aK + 64 * (i & 1 if buf is None else buf); sl = kslot(i) if slot is None else slot
    return [f"ds_read_b128 {r4('a', b+32*z+16*kt+4*p)}, v{vKR+4*z+p} offset:{sl + kt*4096}" for z in range(2) for kt in range(2) for p in range(4)]
def v_reads(i, slot=None):
    sl = (vslot(i) if slot is None else slot) - vslot(0)
    return [f"ds_read_b64_tr_b16 a[{aV+32*z+4*m+2*u}:{aV+32*z+4*m+2*u+1}], v{vVR+8*z+m} offset:{sl + u*4096}" for z in range(2) for m in range(8) for u in range(2)]

def qproj(A, C, vm, issued, grp):
    mf = []; ops = []; ch = Chain()
    for j in range(18):
        G = 20 * j; p = j & 1; nxt = j + 1
        for t in range(8):
            for k in range(3 if t < 4 else 2):
                d = vO + 32 * k + 4 * t
                mf.append(f"{MF} {r4('v', d)}, {r4('a', aWA+32*p+4*t)}, {r4('a', aWB+12*p+4*k)}, {'0' if j == 0 else r4('v', d)}")
        b0 = G + C.wg + 1
        bar = None
        if nxt < 18:
            wv = waitop([("wq", nxt)] + ([("x", nxt >> 1)] if p else []), "lgkmcnt(0)", lo=b0 - 1, dl=b0 - 1)
            bar = Op("s_barrier", "b", lo=b0, dl=b0, after=[wv]); ops += [wv, bar]
            last = bar
            need = [0, 1, 2] + [x for t in range(8) for x in [3 * t if t < 4 else 4 + 2 * t] * 2]
            rds = sorted(zip(need, range(19), w_reads(nxt)), key=lambda x: (x[0] + (0.5 if x[1] in (3, 4) else 0), x[1])) if C.wp else zip(need, range(19), w_reads(nxt))
            for n, (nd, _, (kind, t)) in enumerate(rds):
                last = Op(t, kind if C.wp else "d", lo=b0 + int(n * C.wp), dl=G + 20 + min(nd - 3, C.wg - 2), pri=G, same=[last]); ops.append(last)
        t = (nxt >> 1) + 1
        gaps = [b0 + 10, b0 + 13, b0 + 16, b0 + 19] if p and t < 9 else [b0 + 3, b0 + 8, b0 + 13, b0 + 18]
        if p and t < 9: ch.group(ops, dma_x(t), ("x", t), [b0 + 1, b0 + 4, b0 + 7], first=[bar])
        gaps = [min(g, 356 + k) for k, g in enumerate(gaps)]
        if j + 3 < 18: ch.group(ops, dma_wq(j + 3), ("wq", j + 3), gaps, first=[bar])
        elif issued < 5: ch.group(ops, dma_kv(ORDER[issued]), ORDER[issued], gaps); issued += 1
        if grp == "b" and C.NB and j == 16:
            for t in k_reads(0):
                last = Op(t, "D", lo=340, dl=359, same=[last]); ops.append(last)
    out, over, idle = schedule(mf, ops)
    print(f"qproj: overflow {over} idle {idle}", file=sys.stderr)
    for o in out:
        if isinstance(o, str): continue
        if "x" in C.abl0 and o.txt.startswith("s_mov_b32 exec_hi"): o.txt = "s_nop 0"; o.tag = None
        if "B" in C.abl0 and o.txt == "s_barrier": o.txt = "s_nop 0"
        if "L" in C.abl0 and o.kind == "L" and not isinstance(o.tag, str): o.txt = "s_nop 0"; o.tag = None
        if "d" in C.abl0 and o.kind == "d": o.txt = "s_nop 0"
    emit(A, vm, fine(C, "w", out))
    return issued

def pack(A, x, y, d, scale, swap):
    if scale:
        for r in (x, x + 2, y, y + 2): A(f"v_pk_mul_f32 v[{r}:{r+1}], v[{r}:{r+1}], {scale}")
    A(f"""v_cvt_pk_bf16_f32 v{d}, v{x}, v{x+1}
    v_cvt_pk_bf16_f32 v{d+1}, v{x+2}, v{x+3}
    v_cvt_pk_bf16_f32 v{d+2}, v{y}, v{y+1}
    v_cvt_pk_bf16_f32 v{d+3}, v{y+2}, v{y+3}""")
    return [f"v_permlane16_swap_b32 v{d}, v{d+2}", f"v_permlane16_swap_b32 v{d+1}, v{d+3}"] if swap else []

def q_epilogue(A, C, vm, issued, grp):
    w = vT
    A(f"s_lshl_b32 s{sT0}, s{sW}, 11\ns_add_u32 s{sT0}, s{sT0}, {QX}\nv_add_u32 v{w}, s{sT0}, v3\nv_xor_b32 v{w+1}, 2048, v{w}")
    pend = []
    todo = [(2, 0), (2, 1)] + [(k, p) for k in range(2) for p in range(4)]
    for n, (k, p) in enumerate(todo):
        x = vO + 32 * k + 8 * p
        sw = pack(A, x, x + 4, vQ + 16 * k + 4 * p, f"s[{sQS}:{sQS+1}]", True)
        for t in pend: A(t)
        pend = sw
        if k == 2: pend = pend + [f"ds_write_b128 v{w}, {r4('v', vQ+32+4*p)} offset:{p*1024}"]
        if n >= 2 and issued < 5 and n % 3 == 2:
            for t in dma_kv(ORDER[issued]): A(t)
            vm.add(ORDER[issued], 4); issued += 1
    for t in pend: A(t)
    pre = grp == "b" and C.NB >= 3
    if C.hop in (1, 3) and grp == "a": A(";hop")
    n = vm.wait("K0", *(("K1", "V0") if pre else ()))
    A((f"s_waitcnt vmcnt({n}) lgkmcnt(0)" if n is not None else "s_waitcnt lgkmcnt(0)") + "\ns_barrier")
    if not (grp == "b" and C.NB):
        for t in k_reads(0): A(t)
    for p in range(2): A(f"ds_read_b128 {r4('v', vQ+40+4*p)}, v{w+1} offset:{p*1024}")
    assert issued == 5
    return pre

def qk(i, jb, c0="0"):
    o = []
    for kt in range(2):
        for p in range(4):
            d = vS + 8 * jb + 4 * kt
            o.append(f"{MF} {r4('v', d)}, {r4('a', aK+64*(i&1)+32*JSET[jb]+16*kt+4*p)}, {r4('v', vQ+16*JSLOT[jb]+4*p)}, {c0 if p == 0 else r4('v', d)}")
    return o
def pv(jb, first, lead=False):
    k = JSLOT[jb]; pp = r4("v", vS + 8 * jb)
    o = [f"{MF} {r4('v', vO+32*k+4*m)}, {r4('a', aV+32*JSET[jb]+4*m)}, {pp}, {'0' if first else r4('v', vO+32*k+4*m)}" for m in range(8)]
    l = [f"{MF} {r4('a', aL+4*k)}, {r4('a', aONE)}, {pp}, {'0' if first else r4('a', aL+4*k)}"]
    return l + o if lead else o + l

def attention(A, C, vm, pre, extra, lag):
    mf = []; ops = []; ch = Chain(); issued = 5
    xg = 20 if pre else 9
    wx = waitop(["K1", "V0"], "lgkmcnt(0)", lo=xg, dl=xg)
    bx = Op("s_barrier", "b", lo=xg + 1, dl=xg + 1, after=[wx]); ops += [wx, bx]
    for n in range(0 if lag else 2):
        ch.group(ops, dma_kv(ORDER[issued]), ORDER[issued], [xg + 4 + 24 * n + 6 * a for a in range(4)], first=[bx]); issued += 1
    gate = None if pre else bx
    for i in range(8):
        G = 85 * i
        for jb in range(5): mf += qk(i, jb)
        for jb in range(5): mf += pv(jb, i == 0 and jb < 3, i == 7)
        for jb in range(5):
            s0 = vS + 8 * jb; dl = G + 38 + 9 * jb
            ex = [Op(f"v_exp_f32 v{s0+k}, v{s0+k}", "e", lo=G + 8 * jb + (7 if k < 4 else 11), dl=dl - 12 + k + k // 2) for k in range(8)]
            prev = None
            for k in range(4):
                prev = Op(f"v_cvt_pk_bf16_f32 v{s0+k}, v{s0+2*k}, v{s0+2*k+1}", "v", dl=dl - 9 + 3 * k, after=[ex[2*k], ex[2*k+1]], same=[prev]); ops.append(prev)
            ops += ex
        last = gate
        if i == 7 and C.latev:
            wv = waitop(["V7"], lo=G + C.latev, dl=G + C.latev)
            last = Op("s_barrier", "b", lo=G + C.latev + 1, dl=G + C.latev + 1, after=[wv]); ops += [wv, last]
        for k, t in enumerate(v_reads(i)):
            z, m = k >> 4, (k >> 1) & 7
            if z == 0: lo, dl = G - 27 + m, G + 28 + m
            elif m < C.vz: lo, dl = G - 9 + m, G + 30 + m
            else: lo, dl = G + C.v0 + C.v1 * (m - C.vz), G + C.v0 + 2 + C.v1 * (m - C.vz)
            if i == 0 and not pre: lo, dl = (0, 14 + 3 * m) if z == 0 else (0, 40 + 3 * m)
            if i == 7 and C.latev: lo, dl = (G + C.latev + 1 + 2 * m, G + 33 + m) if z == 0 else (G + 40 + 2 * m, G + 42 + 2 * m)
            last = Op(t, "d", lo=lo, dl=dl, pri=dl if (z and m >= C.vz) or i == 0 else G - 60, same=[last]); ops.append(last)
        if i < 7:
            last = gate
            for t in k_reads(i + 1):
                last = Op(t, "D", lo=G + 9, dl=G + C.kd, pri=G - 50, same=[last]); ops.append(last)
            wv = waitop([f"K{i+2}", f"V{i+1}"] if i < 6 or not C.latev else [], "lgkmcnt(0)", lo=G + 74, dl=G + 74, after=[last])
            gate = Op("s_barrier", "b", lo=G + 75, dl=G + 75, after=[wv]); ops += [wv, gate]
            for n in range(2):
                if issued < 16:
                    ch.group(ops, dma_kv(ORDER[issued]), ORDER[issued], [G + g for g in C.dg[4*n:4*n+4]], first=[gate]); issued += 1
            if lag and i == lag - 1:
                for n in range(2):
                    ch.group(ops, dma_kv(ORDER[issued]), ORDER[issued], [G + 105 + 24 * n + 6 * a for a in range(4)], first=[gate]); issued += 1
        extra(ops, ch, i, G, gate)
        if i == 7:
            w = Op("s_waitcnt lgkmcnt(0)", "s", lo=G + 62, dl=G + 64, after=[last])
            sb = Op("s_barrier", "b", lo=G + 63, dl=G + 68, after=[w]); ops += [w, sb]
            prev = None
            for lo, t in norm_pre():
                kind = "L" if t.startswith("ds_") else "e" if t.startswith("v_rcp") else t[0]
                prev = Op(t, kind, lo=G + lo, dl=G + min(84, lo + (25 if lo < 40 else 2)), same=[prev] + ([sb] if kind == "L" else []), after=[prev] if prev and ORD[prev.kind] > ORD[kind] else [])
                ops.append(prev)
        if C.sg == 2 and i in (4, 5, 6): ops.append(Op(stamp_txt(C, i - 3), "s", lo=G + 71, dl=G + 73))
        if i == 3 and C.stamps and not C.fine: ops.append(Op(stamp_txt(C, 4), "s", lo=G + 71, dl=G + 73))
    out, over, idle = schedule(mf, ops, 6)
    print(f"attention: overflow {over} idle {idle}", file=sys.stderr)
    for o in out:
        if isinstance(o, str): continue
        if "B" in C.abl and o.txt == "s_barrier": o.txt = "s_nop 0"
        if "L" in C.abl and o.kind == "L": o.txt = "s_nop 0"
        if "d" in C.abl and o.kind in "dD": o.txt = "s_nop 0"
    emit(A, vm, fine(C, "a", out))

def safe_attention(A, name):
    t, u = vT + 4, vT + 5
    A(f"""{name}_safe:
    s_nop 7
    s_mov_b32 s{sCNT}, 0
    v_lshrrev_b32 v{t}, 5, v2
    v_bfe_u32 v{u}, v2, 4, 1
    v_lshl_add_u32 v{t}, v{u}, 1, v{t}
    v_and_b32 v{u}, 15, v2
    v_xor_b32 v{t}, v{t}, v{u}
    v_lshlrev_b32 v{t}, 4, v{t}
    s_lshl_b32 s{sT1}, s{sS}, 7
    v_xor_b32 v{t}, s{sT1}, v{t}
    v_lshl_add_u32 v{t}, v{u}, 8, v{t}
    s_lshl_b32 s{sT1}, s{sS}, 13
    s_add_u32 s{sT1}, s{sT1}, s{sT2}
    v_add_u32 v{vKR}, s{sT1}, v{t}""")
    for k in range(1, 8): A(f"v_xor_b32 v{vKR+k}, {64*(k & 3) + 8192*(k >> 2)}, v{vKR}")
    for k in range(3): A(f"v_mov_b32 v{vNEG+k}, 0x7f800000")
    for r in range(96): A(f"v_mov_b32 v{vO+r}, 0")
    for r in range(12): A(f"v_accvgpr_write_b32 a{aL+r}, 0")
    A(f"{name}_sl:\ns_barrier")
    for nm, slot in (("K0", f"s{sT2}"), ("V0", vslot(1))):
        x = dma_kv(nm, slot, f"s{sCNT}")
        A("\n".join([x[0], x[1]] + x[2:]))
    A("s_waitcnt vmcnt(0)\ns_barrier")
    for x in k_reads(0, 0, 0) + v_reads(0, vslot(1)): A(x)
    A("s_waitcnt lgkmcnt(0)")
    for jb in range(5):
        s0 = vS + 8 * jb; k = JSLOT[jb]
        for m in qk(0, jb): A(m)
        A(f"""s_nop 7
        v_max3_f32 v{t}, v{s0}, v{s0+1}, v{s0+2}
        v_max3_f32 v{t}, v{t}, v{s0+3}, v{s0+4}
        v_max3_f32 v{t}, v{t}, v{s0+5}, v{s0+6}
        v_max_f32 v{t}, v{t}, v{s0+7}
        v_mov_b32 v{u}, v{t}
        s_nop 1
        v_permlane32_swap_b32 v{t}, v{u}
        s_nop 1
        v_max_f32 v{t}, v{t}, v{u}
        v_mov_b32 v{u}, v{t}
        s_nop 1
        v_permlane16_swap_b32 v{t}, v{u}
        s_nop 1
        v_min3_f32 v{t}, -v{t}, -v{u}, v{vNEG+k}
        v_sub_f32 v{u}, v{t}, v{vNEG+k}
        v_exp_f32 v{u}, v{u}
        v_mov_b32 v{vNEG+k}, v{t}""")
        for r in range(8): A(f"v_add_f32 v{s0+r}, v{s0+r}, v{t}")
        for r in range(8): A(f"v_exp_f32 v{s0+r}, v{s0+r}")
        for r in range(32): A(f"v_mul_f32 v{vO+32*k+r}, v{vO+32*k+r}, v{u}")
        for r in range(4): A(f"v_accvgpr_read_b32 v{t}, a{aL+4*k+r}\nv_mul_f32 v{t}, v{t}, v{u}\nv_accvgpr_write_b32 a{aL+4*k+r}, v{t}")
        for r in range(4): A(f"v_cvt_pk_bf16_f32 v{s0+r}, v{s0+2*r}, v{s0+2*r+1}")
        A("s_nop 1")
        for m in pv(jb, False): A(m)
    A(f"s_nop 7\ns_add_u32 s{sCNT}, s{sCNT}, 16384\ns_cmp_lt_u32 s{sCNT}, 131072\ns_cbranch_scc1 {name}_sl\ns_barrier")
    for k in range(8): A(f"v_xor_b32 v{vKR+k}, 8192, v{vWR+k}")
    A(f"s_setpc_b64 s[{sRET}:{sRET+1}]")

EXB = 0
SAFEK = 0
def ob(k, p): return vO + 32 * k + 8 * p
def norm_pre():
    w, r, fa, l = vT, vT + 1, vT + 2, vE
    o = [(30, t.strip()) for t in f"""s_mul_i32 s{sT0}, s{sW}, 5120
    s_add_u32 s{sT0}, s{sT0}, {EXB}
    v_add_u32 v{w}, s{sT0}, v3
    s_xor_b32 s{sT0}, s{sW}, 1
    s_mul_i32 s{sT0}, s{sT0}, 5120
    s_add_u32 s{sT0}, s{sT0}, {EXB}
    v_add_u32 v{r}, s{sT0}, v3
    s_lshl_b32 s{sT0}, s{sW}, 2
    s_add_u32 s{sT0}, s{sT0}, {EXB + 20480}
    v_mov_b32 v{fa}, s{sT0}
    v_mov_b32 v{l+3}, v{vNEG+2}""".split("\n")]
    o += [(63, f"v_accvgpr_read_b32 v{l+2}, a{aL+8}"), (63, f"v_subrev_u32 v{fa+3}, {LLO}, v{l+2}"), (66, f"ds_write_b64 v{w}, v[{l+2}:{l+3}] offset:4096")]
    o += [(70, f"ds_write_b128 v{w}, {r4('v', vO+80)} offset:0"), (72, f"v_accvgpr_read_b32 v{l}, a{aL}"), (72, f"v_subrev_u32 v{fa+1}, {LLO}, v{l}")]
    o += [(72 + 2 * m, f"ds_write_b128 v{w}, {r4('v', vO+80+4*m)} offset:{m*1024}") for m in range(1, 4)]
    o += [(79, f"v_rcp_f32 v{l}, v{l}"), (80, f"v_accvgpr_read_b32 v{l+1}, a{aL+4}"), (80, f"v_subrev_u32 v{fa+2}, {LLO}, v{l+1}"),
          (81, f"v_max3_u32 v{fa+1}, v{fa+1}, v{fa+2}, v{fa+3}"), (81, f"v_cmp_lt_u32 vcc, {LHI - LLO}, v{fa+1}"), (82, f"v_rcp_f32 v{fa+5}, v{l+1}"),
          (83, f"s_cmp_lg_u64 vcc, 0\ns_cselect_b32 s{sT0}, s{sSAFE}, 0"), (83, f"v_mov_b32 v{fa+1}, s{sT0}"), (84, f"ds_write_b32 v{fa}, v{fa+1}")]
    return o

def normalise(A, C, tag, name, store, prebar=lambda: "", checked=lambda: None):
    w, r, fa = vT, vT + 1, vT + 2
    l = vE
    A(f"{tag}_x:")
    for p in range(2):
        pack(A, ob(0, p), ob(0, p) + 4, ob(0, p), f"v[{l}:{l+1}] op_sel_hi:[1,0]", False); store(0, p)
    A(f"""v_mov_b32 v{fa}, {EXB + 20480}
    s_waitcnt {prebar()}lgkmcnt(0)
    s_barrier
    ds_read_b128 {r4('v', vS+16)}, v{fa}
    ds_read_b64 v[{vS+20}:{vS+21}], v{r} offset:4096""")
    for m in range(4): A(f"ds_read_b128 {r4('v', vS+4*m)}, v{r} offset:{m*1024}")
    for p in range(2, 4):
        pack(A, ob(0, p), ob(0, p) + 4, ob(0, p), f"v[{l}:{l+1}] op_sel_hi:[1,0]", False); store(0, p)
    checked()
    lo, no, lp, np_, t = l + 2, l + 3, vS + 20, vS + 21, fa
    sc = f"v[{fa+5}:{fa+6}] op_sel_hi:[1,0]"
    A(f"""v_or3_b32 v{vS+16}, v{vS+16}, v{vS+17}, v{vS+18}
    v_or_b32 v{vS+16}, v{vS+16}, v{vS+19}
    v_cmp_ne_u32 vcc, 0, v{vS+16}
    v_min_f32 v{t}, v{no}, v{np_}
    v_sub_f32 v{no}, v{t}, v{no}
    v_sub_f32 v{np_}, v{t}, v{np_}
    v_exp_f32 v{no}, v{no}
    v_exp_f32 v{np_}, v{np_}
    s_cbranch_vccnz {tag}_fb""")
    pack(A, ob(1, 0), ob(1, 0) + 4, ob(1, 0), sc, False); store(1, 0)
    A(f"v_mul_f32 v{lo}, v{lo}, v{no}\nv_fma_f32 v{lo}, v{lp}, v{np_}, v{lo}\nv_rcp_f32 v{t}, v{lo}")
    pack(A, ob(1, 1), ob(1, 1) + 4, ob(1, 1), sc, False); store(1, 1)
    A(f"v_mul_f32 v{lo}, v{no}, v{t}\nv_mul_f32 v{lp}, v{np_}, v{t}")
    for p in range(2):
        for k in range(8 * p, 8 * p + 8, 2): A(f"v_pk_mul_f32 v[{vO+64+k}:{vO+65+k}], v[{vO+64+k}:{vO+65+k}], v[{lo}:{lo+1}] op_sel_hi:[1,0]")
        for k in range(8 * p, 8 * p + 8, 2): A(f"v_pk_fma_f32 v[{vO+64+k}:{vO+65+k}], v[{vS+k}:{vS+k+1}], v[{lp}:{lp+1}], v[{vO+64+k}:{vO+65+k}] op_sel_hi:[1,0,1]")
        pack(A, ob(2, p), ob(2, p) + 4, ob(2, p), None, False); store(2, p)
        pack(A, ob(1, 2 + p), ob(1, 2 + p) + 4, ob(1, 2 + p), sc, False); store(1, 2 + p)
    redo = "\ns_nop 1\n".join(t for _, t in norm_pre())
    return f"{tag}_fb:\ns_waitcnt vmcnt(0) lgkmcnt(0)\ns_mov_b32 s{sSAFE}, 0\ns_mov_b32 s{sT2}, {SAFEK}\ns_call_b64 s[{sRET}:{sRET+1}], {name}_safe\n{redo}\ns_nop 1\ns_branch {tag}_x"

def dump_setup(A):
    A(f"""v_and_b32 v{vXR}, 15, v2
    v_lshrrev_b32 v{vXR+1}, 4, v2
    v_lshlrev_b32 v{vXR}, 13, v{vXR}
    v_lshl_add_u32 v{vXR}, v{vXR+1}, 3, v{vXR}
    s_lshl_b32 s{sT0}, s{sS}, 7
    v_add_u32 v{vXR}, s{sT0}, v{vXR}
    v_xor_b32 v{vXR+1}, 128, v{vXR}
    s_mul_i32 s{sU+2}, s{sB}, {80*8192}
    s_lshl_b32 s{sT1}, s{sHKV}, 9
    s_add_u32 s{sU+2}, s{sU+2}, s{sT1}
    s_lshl_b32 s{sT1}, s{sH}, 8
    s_add_u32 s{sU+2}, s{sU+2}, s{sT1}
    s_add_u32 s{sU+2}, s{sU+2}, {1280*8192}
    s_lshl_b32 s{sT0}, s{sS}, 1
    s_add_u32 s{sT0}, s{sT0}, s{sH}
    s_lshl_b32 s{sT0}, s{sT0}, 17
    s_xor_b32 s{sT1}, s{sT0}, {1 << 17}
    s_add_u32 s{sU}, s{sU+2}, s{sT0}
    s_add_u32 s{sU+1}, s{sU+2}, s{sT1}
    s_add_u32 s{sU+2}, s{sU+2}, {4 << 17}""")

def flush(A, C, name):
    if not C.stamps: return
    A(f"s_waitcnt lgkmcnt(0)\ns_lshl_b32 s{sT0}, s2, 6\ns_add_u32 s{sT0}, s{sT0}, {STAMP}\ns_cmp_lg_u32 s{sW}, 0\ns_cbranch_scc1 {name}_end\ns_mov_b64 exec, 1")
    for i in range(C.stamps): A(f"v_mov_b32 v4, s{sST+2*i}\nbuffer_store_dword v4, v1, s[{SWS}:{SWS+3}], s{sT0} offen offset:{4*i}")

def path(C, name, grp, stubs):
    A = Asm(); vm = VM(); tag = f"{name}_{grp}"
    T = None
    if C.tail == "h":
        import tail2
        T = tail2.Tail(C, name, grp, A, vm, stubs)
    issued = 0
    if grp == "b":
        code_touch(A, name)
        def mid():
            kv_setup(A)
            if T: T.start()
        def first():
            srd(A, SWS, 18, None, 128 << 20)
            if T: T.clear()
        if T: T.clear_prepare()
        touches(A, C, vm, first, mid)
        wo_touches(A, C, vm)
        w_srds(A)
        A(";hot")
        w_addresses(A)
        late_addresses(A, C)
        if C.hop: A(";hop")
        for n in range(C.NB):
            for t in dma_kv(ORDER[n]): A(t)
            vm.add(ORDER[n], 4)
            if n == min(C.NB - 1, C.rn) and T: T.ready()
        issued = C.NB
    else:
        w_addresses(A)
        A("s_waitcnt lgkmcnt(0)")
        w_srds(A)
    for t in dma_x(0): A(t)
    vm.add(("x", 0), 3)
    for j in range(3):
        for t in dma_wq(j): A(t)
        vm.add(("wq", j), 4)
        if j == 0:
            for t in dma_x(1): A(t)
            vm.add(("x", 1), 3)
    if grp == "a":
        kv_setup(A)
        srd(A, SWS, 18, None, 128 << 20)
        A(";hot")
        late_addresses(A, C)
        if C.hop: A(";hop")
    A(f"s_waitcnt vmcnt({vm.wait(('x', 0), ('wq', 0))})\ns_barrier")
    stamp(A, C, 1)
    for _, t in w_reads(0): A(t)
    issued = qproj(A, C, vm, issued, grp)
    stamp(A, C, 2)
    pre = q_epilogue(A, C, vm, issued, grp)
    if T: T.before_attention()
    stamp(A, C, 3)
    attention(A, C, vm, pre, T.hook if T else lambda *a: None, C.lagb if grp == "b" else C.laga)
    stamp(A, C, 5)
    if T: T.run()
    else:
        dump_setup(A)
        def store(k, p):
            for e in range(2): A(f"buffer_store_dwordx2 v[{ob(k, p)+2*e}:{ob(k, p)+2*e+1}], v{vXR + (p >> 1)}, s[{SWS}:{SWS+3}], s{sU+k} offen offset:{(p & 1)*64 + e*32}")
        stubs.append(normalise(A, C, tag, name, store))
        stamp(A, C, 6)
        flush(A, C, name)
        A("s_endpgm")
    return A

def isins(l):
    t = l.strip(); return t and not t.endswith(":") and not t.startswith((";", "."))
def sizes(lines):
    import subprocess, re
    src = '.amdgcn_target "amdgcn-amd-amdhsa--gfx950"\n.text\nT:\n' + "\n".join(re.sub(r"(s_c?branch\S*) \S+", r"\1 T", l) for l in lines if isins(l)) + "\ns_endpgm\n"
    open("sz.s", "w").write(src)
    subprocess.run(["clang", "-x", "assembler", "-target", "amdgcn-amd-amdhsa", "-mcpu=gfx950", "-c", "sz.s", "-o", "sz.o"], check=True)
    d = subprocess.run(["llvm-objdump", "-d", "--mcpu=gfx950", "sz.o"], capture_output=True, text=True).stdout
    ad = [int(m.group(1), 16) for m in re.finditer(r"// ([0-9A-F]+):", d)]
    return [b - a for a, b in zip(ad, ad[1:])]
HOPLEN = 44
def page_hops(lines, tag):
    sz = iter(sizes(lines)); ad = 0; page = 1; out = []; marks = []
    for i, l in enumerate(lines):
        if l.strip() == ";hop": marks.append([len(out), []]); out.append(l); ad += HOPLEN; continue
        out.append(l)
        if not isins(l): continue
        ad += next(sz)
        if ad >= page * 4096 and ("v_mfma" in l or ad >= page * 4096 + 40):
            if marks: marks[-1][1].append(len(out)); out.append(None); ad += 4
            page += 1
    for k, (pos, st) in enumerate(marks):
        lab = lambda n: f"{tag}_h{k}_{n}" if n < len(st) else f"{tag}_h{k}_r"
        for n, p in enumerate(st): out[p] = f"{lab(n)}:\n    s_cbranch_execz {lab(n + 4)}"
        out[pos] = "    s_mov_b64 exec, 0\n" + "".join(f"    s_cmp_eq_u32 s{sW}, {w}\n    s_cbranch_scc1 {lab(w)}\n" for w in range(3)) + f"    s_nop 0\n    s_nop 0\n    s_branch {lab(3)}\n{lab(99)}:\n    s_mov_b64 exec, -1"
    return out

def kernel(C, name):
    hazard.IGNORE_STAMPS = bool(C.fine)
    P = Asm(); prologue(P, C, name)
    stubs = []
    pa = path(C, name, "a", stubs); pb = path(C, name, "b", stubs)
    for p_ in (pa, pb):
        p_.L, paid = hazard.autowait(p_.L)
        p_.L, forced = hazard.fix(p_.L)
        print("forced pads:", forced, "paid waits:", paid, file=sys.stderr)
    R = Asm(); safe_attention(R, name)
    bad = hazard.check(P.L + pa.L, "a") + hazard.check(P.L + pb.L, "b") + hazard.check(R.L, "safe")
    S = Asm()
    for t in stubs: S(t)
    bad += hazard.check(S.L, "stubs")
    assert not bad, f"{bad} hazards"
    mid = Asm(); mid(f"s_bitcmp1_b32 s{sJ}, 0\ns_cbranch_scc1 {name}_pb0")
    txt = P.text() + mid.text(); hot = ""
    for p_, gname in ((pa, "a"), (pb, "b")):
        n = next(i for i, l in enumerate(p_.L) if l.strip() == ";hot")
        txt += f"{name}_p{gname}0:\n" + "\n".join(p_.L[:n]) + f"\n    s_branch {name}_p{gname}\n"
        hot += f".p2align 12\n{name}_p{gname}:\n" + "\n".join(page_hops(p_.L[n + 1:], f"{name}_{gname}")) + "\n"
    return txt + S.text() + hot + f"{name}_hot:\n" + R.text() + f"{name}_end:\n    s_endpgm\n"

def main():
    from gen_naive import naive_parts
    cfgs = json.loads(sys.argv[1]); names = []
    for c in cfgs:
        n = "j" + "".join(f"_{kk}{vv}" for kk, vv in c.items()); names.append(n)
        C = Cfg(**c)
        l, k = naive_parts()
        if C.tail == "dump": txt = build([("fa_kernel", 256, 256, 163840), l[2]], [("fa_kernel", kernel(C, "fa"), 256, 256), k[2]])
        elif C.stamps == 11:
            from emu3 import after
            txt = build([("fa_kernel", 256, 256, 163840), ("af_kernel", 256, 64, 0)], [("fa_kernel", kernel(C, "fa"), 256, 256), ("af_kernel", after("af", 11), 32, 0)])
        else: txt = build([(KN + "_kernel", 256, 256, 163840)], [(KN + "_kernel", kernel(C, KN), 256, 256)])
        open(n + ".s", "w").write(txt)
    open("list.txt", "w").write(" ".join(x + ".s" for x in names))

if __name__ == "__main__":
    import gen2
    gen2.main()
```

```python
import re
REG = re.compile(r"\b([vas])(?:(\d+)|\[(\d+):(\d+)\])")
TRANS = ("v_exp_", "v_log_", "v_rcp_", "v_rsq_", "v_sqrt_", "v_sin_", "v_cos_")

def regs(tok):
    out = set()
    for m in REG.finditer(tok):
        lo = int(m.group(2) if m.group(2) is not None else m.group(3)); hi = int(m.group(2) if m.group(2) is not None else m.group(4))
        out |= {(m.group(1), i) for i in range(lo, hi + 1)}
    if re.search(r"\bvcc\b", tok): out |= {("s", "vcc")}
    if re.search(r"\bexec(_lo|_hi)?\b", tok): out |= {("s", "exec")}
    if re.search(r"\bm0\b", tok): out |= {("s", "m0")}
    return out

class I:
    def __init__(self, txt):
        self.txt = txt.strip(); t = self.txt.split(";")[0].strip()
        p = t.split(None, 1); self.op = p[0]; rest = p[1] if len(p) > 1 else ""
        ops = [x.strip() for x in re.split(r",(?![^\[]*\])", rest)] if rest else []
        self.ops = ops; op = self.op
        self.mfma = op.startswith("v_mfma"); self.valu = op.startswith("v_") and not self.mfma
        self.ds = op.startswith("ds_"); self.vmem = op.startswith(("buffer_", "global_")); self.salu = op.startswith("s_")
        self.trans = op.startswith(TRANS); self.lds_dma = self.vmem and (" lds" in t or "_lds_" in op)
        self.w = set(); self.r = set(); self.srcc = set(); self.sdata = set()
        if self.mfma:
            self.w = regs(ops[0]); self.r = regs(ops[1]) | regs(ops[2]); self.srcc = regs(ops[3]); self.passes = 8 if "32x32" in op else 4
        elif self.valu:
            self.w = regs(ops[0]); self.r = set().union(*[regs(o) for o in ops[1:]]) if len(ops) > 1 else set()
            if "permlane" in op and "swap" in op: self.w |= regs(ops[1]); self.r |= regs(ops[0])
            if op.startswith(("v_fmac", "v_pk_fmac")): self.r |= regs(ops[0])
            if "_co_" in op: self.w |= regs(ops[1])
        elif self.ds:
            if op.startswith("ds_read"): self.w = regs(ops[0]); self.r = regs(ops[1])
            else: self.r = set().union(*[regs(o) for o in ops])
        elif self.vmem:
            if op in ("buffer_wbl2", "buffer_inv"): pass
            elif self.lds_dma: self.r = set().union(*[regs(o) for o in ops]) | {("s", "m0")}
            elif "load" in op: self.w = regs(ops[0]); self.r = set().union(*[regs(o) for o in ops[1:]])
            else:
                self.r = set().union(*[regs(o) for o in ops])
                if "x4" in op or "x3" in op: self.sdata = regs(ops[0] if op.startswith("buffer") else ops[1])
        elif self.salu:
            if op.startswith(("s_cmp", "s_bitcmp", "s_cbranch", "s_branch", "s_waitcnt", "s_nop", "s_barrier", "s_sleep", "s_setprio", "s_endpgm")):
                self.r = set().union(*[regs(o) for o in ops]) if ops and not op.startswith(("s_cbranch", "s_branch", "s_waitcnt")) else set()
            else:
                self.w = regs(ops[0]); self.r = set().union(*[regs(o) for o in ops[1:]]) if len(ops) > 1 else set()
                if "saveexec" in op: self.w |= {("s", "exec")}
        self.states = int(ops[0]) + 1 if op == "s_nop" else 1

def need(p, c):
    n = 0
    vw = {x for x in p.w if x[0] in "va"}; sw = {x for x in p.w if x[0] == "s"}
    if p.mfma:
        k = p.passes
        if c.mfma:
            if vw & c.r: n = max(n, 8 if k == 4 else 12)
            if vw & c.srcc and not (c.srcc == p.w and c.passes == k): n = max(n, 6 if k == 4 else 10)
            if vw & c.w and c.srcc != p.w: n = max(n, 6 if k == 4 else 10)
        elif c.valu or c.ds or c.vmem:
            if vw & (c.r | c.w): n = max(n, 8 if k == 4 else 12)
            if (c.valu or c.ds or c.vmem) and p.srcc & c.w: n = max(n, 3 if k == 4 else 7)
    if p.valu:
        if c.mfma and vw & (c.r | c.srcc): n = max(n, 2)
        if c.mfma and ("s", "exec") in sw: n = max(n, 4)
        if p.trans and (c.valu or c.ds or c.vmem) and not c.trans and vw & c.r: n = max(n, 1)
        if p.trans and c.trans and vw & c.r: n = max(n, 1)
        if "permlane" in c.op and vw & c.r: n = max(n, 2)
        if "_dpp" in c.op and vw & c.r: n = max(n, 2)
        if c.op.startswith(("v_readlane", "v_readfirstlane")) and vw & c.r: n = max(n, 1)
        if c.vmem and sw & c.r: n = max(n, 5)
        if c.valu and sw & c.r: n = max(n, 2)
    if p.op.startswith("v_dot") and vw & (c.r | c.w) and not (c.op == p.op and not (vw & (regs(c.ops[1]) | regs(c.ops[2])))): n = max(n, 3)
    if p.salu and ("s", "m0") in p.w and c.lds_dma: n = max(n, 1)
    if p.sdata and p.sdata & c.w: n = max(n, 2)
    return n

def check(lines, name=""):
    ins = [I(l) for l in lines if l.strip() and not l.strip().endswith(":") and not l.strip().startswith((";", "."))]
    bad = 0
    for j, c in enumerate(ins):
        dist = 0
        for i in range(j - 1, max(-1, j - 24), -1):
            p = ins[i]; n = need(p, c)
            if n > dist:
                print(f"HAZARD {name}: need {n} have {dist}:\n   {p.txt}\n   {c.txt}"); bad += 1
            dist += p.states
    vm = []; lg = []
    for c in ins:
        if c.op == "s_waitcnt":
            m = re.search(r"vmcnt\((\d+)\)", c.txt)
            if m: n = int(m.group(1)); assert n <= 63, c.txt; vm = vm[len(vm) - n:] if n < len(vm) else vm; vm = vm if n else []
            m = re.search(r"lgkmcnt\((\d+)\)", c.txt)
            if m:
                n = int(m.group(1)); assert n <= 15, c.txt
                if n and any(x.salu for x in lg): pass
                else: lg = lg[len(lg) - n:] if n < len(lg) else lg; lg = lg if n else []
            continue
        for q in vm + lg:
            if q.w & (c.r | c.srcc | c.w) and not (q.ds and c.ds and not (q.w & c.r)) and not (q.vmem and c.vmem and not (q.w & c.r)):
                print(f"UNWAITED {name}:\n   {q.txt}\n   {c.txt}"); bad += 1
        if c.vmem: vm.append(c)
        if c.ds or c.op.startswith("s_load") or (c.op.startswith("s_mem") and not IGNORE_STAMPS): lg.append(c)
    return bad

def fix(lines):
    L = list(lines); forced = 0
    def isins(l):
        t = l.strip(); return t and not t.endswith(":") and not t.startswith((";", "."))
    cache = {}
    def parse(l):
        if l not in cache: cache[l] = I(l)
        return cache[l]
    j = 0
    while j < len(L):
        if not isins(L[j]): j += 1; continue
        c = parse(L[j]); dist = 0; i = j - 1; seen = 0; idles = []; redo = False
        while i >= 0 and seen < 24:
            if L[i].strip() in (";idle", ";sfree"): idles.append(i)
            elif isins(L[i]):
                p = parse(L[i]); n = need(p, c)
                if n > dist:
                    k = n - dist
                    for x in idles[:k]: L[x] = "    s_nop 0"
                    k -= min(k, len(idles))
                    if k: L.insert(j, f"    s_nop {k-1}"); forced += k
                    redo = True; break
                dist += p.states; seen += 1
            i -= 1
        if not redo: j += 1
    return [l for l in L if l.strip() not in (";idle", ";sfree")], forced

IGNORE_STAMPS = False
def autowait(lines):
    L = list(lines); lg = []; paid = 0
    def isins(l):
        t = l.strip(); return t and not t.endswith(":") and not t.startswith((";", "."))
    j = 0
    while j < len(L):
        if not isins(L[j]): j += 1; continue
        c = I(L[j])
        if c.op == "s_waitcnt":
            m = re.search(r"lgkmcnt\((\d+)\)", c.txt)
            if m:
                n = int(m.group(1)); lg = lg[len(lg) - n:] if 0 < n < len(lg) else ([] if n == 0 else lg)
            j += 1; continue
        hit = [k for k, (q, pos) in enumerate(lg) if q.w & (c.r | c.srcc | c.w) and not (c.ds and not (q.w & c.r))]
        if hit:
            k = max(hit); i = j - 1; slot = None
            lead = sum(1 for x in range(lg[k][1], j) if "v_mfma" in L[x]); back = 0
            while i > lg[k][1]:
                if L[i].strip() == ";sfree" and (lead >= 5 or not any(pos > i for _, pos in lg)): slot = i; break
                if "v_mfma" in L[i]:
                    back += 1
                    if back > 3 or lead - back < 8: break
                i -= 1
            smem = any(q.salu for q, _ in lg)
            if slot is not None:
                n = 0 if smem else min(12, sum(1 for q, pos in lg[k+1:] if pos < slot))
                before = [x for x in lg if x[1] < slot]; after = [x for x in lg if x[1] > slot]
                L[slot] = f"    s_waitcnt lgkmcnt({n})"
                lg = (before[len(before) - n:] if n else []) + after
            else:
                n = 0 if smem else min(12, len(lg) - 1 - k)
                L.insert(j, f"    s_waitcnt lgkmcnt({n})"); paid += 1
                lg = lg[len(lg) - n:] if n else []
                j += 1
            continue
        if c.ds or c.op.startswith("s_load") or (c.op.startswith("s_mem") and not IGNORE_STAMPS): lg.append((c, j))
        j += 1
    return L, paid
```

```python
import sys
from gen2 import *
import gen2
BLK, PART, FL, BAT = 66816, 41088, 16 * 66816, 1310720
W0, W1, XB = 98304, 0, 65536
vOR0, vOR1, vXO, vXDM = vWR, vKR, vXR, vXD
vRDY, vPOL, vPA, vFA = 29, 30, 10, 61
sSRC, sOP, sOS, sF1, sDX, sOK, sRB, sW8K = 8, 12, 66, 15, 16, 17, 18, 19
sPS = 69
sSEL = 3
sTA = 60
aF = 128
PRE = 6
vRW, vRR, vPSA, vF = vT, vT + 1, vT + 4, vVR
sF2 = sRET
vSEL = 48

class Tail:
    def __init__(self, C, name, grp, A, vm, stubs):
        self.C, self.name, self.grp, self.A, self.vm, self.stubs = C, name, grp, A, vm, stubs
        self.tag = f"{name}_{grp}"
        self.NT = 10 if grp == "a" else 8
        self.X = [0, 2, 1, 3] if grp == "a" else [0, 1, 3, 2]
        self.pre = 3 if grp == "a" else 4
        self.nl = 0
        gen2.EXB = 0 if grp == "a" else 65536
        gen2.SAFEK = 0 if grp == "a" else 81920

    def clear_prepare(self):
        self.A(f"""s_cmp_eq_u32 s{sHKV}, 1
        s_cselect_b32 s{sCNT}, 0, {OOB}
        v_add_u32 v{vQ+5}, 12, v0
        v_lshrrev_b32 v{vQ+5}, 5, v{vQ+5}
        v_lshlrev_b32 v{vQ+5}, 27, v{vQ+5}
        v_lshl_add_u32 v{vQ+5}, v0, 11, v{vQ+5}
        v_or_b32 v{vQ+5}, s{sCNT}, v{vQ+5}
        v_mov_b32 v{vQ}, 0
        v_mov_b32 v{vQ+1}, 0
        v_mov_b32 v{vQ+2}, 0
        v_mov_b32 v{vQ+3}, 0
        s_mul_i32 s{sT2}, s{sB}, {BAT}
        s_add_u32 s{sT2}, s{sT2}, {FL}""")
    def clear(self):
        for k in range(1 + self.C.dual):
            self.A(f"buffer_store_dwordx4 {r4('v', vQ)}, v{vQ+5}, s[{SWS}:{SWS+3}], s{sT2} offen offset:{1024*k} sc1")
            self.vm.add("clr0")
    def start(self):
        self.A(f"""v_mov_b32 v{vT+1}, {OOB}
        s_mul_i32 s{sT1}, s{sB}, {BAT}
        v_lshlrev_b32 v{vQ+4}, 20, v0
        v_or_b32 v{vQ+4}, s{sCNT}, v{vQ+4}""")
        if self.C.tlb:
            self.A(f"""v_lshrrev_b32 v{vT}, 1, v0
            v_mul_u32_u24 v{vT}, {BLK}, v{vT}
            v_and_b32 v{vT+2}, 1, v0
            v_mul_u32_u24 v{vT+2}, {BLK - 128 - 40960}, v{vT+2}
            v_cmp_gt_u32 vcc, 33, v0
            v_add_u32 v{vT}, v{vT}, v{vT+2}
            v_add_u32 v{vT}, 40960, v{vT}
            v_cndmask_b32 v{vT}, v{vT+1}, v{vT}, vcc
            buffer_load_dword v255, v{vT}, s[{SWS}:{SWS+3}], s{sT1} offen""")
            self.vm.add("clr")
        if self.C.tlb > 1:
            self.A(f"s_mul_i32 s{sT0}, s{sHG}, {1024*1152}")
            srd(self.A, SWO, 12, f"s{sT0}", 1024 * 1152)
            self.A(f"s_mul_i32 s{sT0}, s{sB}, 92160")
            srd(self.A, SOUT, 14, f"s{sT0}", 92160)
            self.A(f"""v_lshlrev_b32 v{vT}, {self.C.tsh}, v0
            buffer_load_dword v255, v{vT}, s[{SWO}:{SWO+3}], 0 offen
            buffer_load_dword v255, v{vT}, s[{SOUT}:{SOUT+3}], 0 offen""")
            self.vm.add("clr", 2)
    def ready(self):
        A = self.A
        srd(A, SDBG, 16, None, 256)
        A(f"""s_lshl_b32 s{sT0}, s{sB}, 4
        v_mov_b32 v{vQ+5}, 1
        s_waitcnt vmcnt({self.vm.wait("clr0")})
        buffer_store_dword v{vQ+5}, v{vQ+4}, s[{SDBG}:{SDBG+3}], s{sT0} offen sc1""")
        self.vm.add("clr")

    def setup_ops(self):
        t = vT + 2
        a = self.grp == "a"
        o = f"""v_lshrrev_b32 v{t}, 4, v2
        v_mul_u32_u24 v{t}, {1152 - 256}, v{t}
        v_add_u32 v{vWD}, v{vVD}, v{t}
        v_add_u32 v{vWD+1}, v{vVD+1}, v{t}
        v_add_u32 v{vWD+2}, {2*(4608-1024)}, v{vWD}
        v_add_u32 v{vWD+3}, {3*(4608-1024)}, v{vWD+1}
        v_add_u32 v{vWD+1}, {4608-1024}, v{vWD+1}
        s_lshl_b32 s{sW8K}, s{sW}, 13
        s_lshr_b32 s{sT2}, s{sJ}, 1
        s_mul_i32 s{sT2}, s{sT2}, {384 if a else 256}
        s_add_u32 s{sPS+6}, s{sT2}, {512 if a else 0}
        s_mul_i32 s{sT2}, s{sW}, {64*1152}
        s_add_u32 s{sT2}, s{sT2}, s{sPS+6}"""
        for k, x in enumerate(self.X):
            o += f"\ns_xor_b32 s{sSRC+k}, s{sJ}, {x}\ns_mul_i32 s{sSRC+k}, s{sSRC+k}, {256*1152}\ns_add_u32 s{sSRC+k}, s{sSRC+k}, s{sT2}"
        o += f"""
        s_mul_i32 s{sT2}, s{sB}, {BAT}
        s_mul_i32 s{sOP}, s{sW}, 10240
        s_add_u32 s{sT2}, s{sT2}, s{sOP}
        s_mul_i32 s{sOP}, s{sHKV}, {BLK}
        s_add_u32 s{sOP}, s{sOP}, s{sT2}
        s_add_u32 s{sOP+1}, s{sOP}, 4096
        s_add_u32 s{sOP+2}, s{sOP}, 8192"""
        for k in range(1, 4):
            o += f"\ns_xor_b32 s{sOS+k-1}, s{sHKV}, {self.X[k]}\ns_mul_i32 s{sOS+k-1}, s{sOS+k-1}, {BLK}\ns_add_u32 s{sOS+k-1}, s{sOS+k-1}, s{sT2}"
        o += f"""
        s_lshl_b32 s{sF1}, s{sHG}, 2
        s_add_u32 s{sF1}, s{sF1}, s{sW}
        s_lshl_b32 s{sF1}, s{sF1}, 11
        s_mul_i32 s{sT2}, s{sB}, {BAT}
        s_add_u32 s{sF1}, s{sF1}, s{sT2}
        s_add_u32 s{sF1}, s{sF1}, {FL}
        v_and_b32 v{vPA}, 3, v2
        v_xor_b32 v{vPA}, s{sJ}, v{vPA}
        v_lshlrev_b32 v{vPA}, 2, v{vPA}
        s_lshl_b32 s{sT2}, s{sS}, 7
        s_lshl_b32 s{sDX}, s{sW}, 6
        s_xor_b32 s{sT2}, s{sT2}, s{sDX}
        v_xor_b32 v{vOR0}, s{sT2}, v{vVR}
        s_lshl_b32 s{sT2}, s{sH}, 14
        s_add_u32 s{sT2}, s{sT2}, {W0 - vslot(0)}
        v_add_u32 v{vOR0}, s{sT2}, v{vOR0}"""
        for k in range(1, 8): o += f"\nv_xor_b32 v{vOR0+k}, {32*k}, v{vOR0}"
        if a:
            o += f"""
            s_lshr_b32 s{sDX}, s{sJ}, 1
            s_mul_i32 s{sDX}, s{sDX}, -320
            s_add_u32 s{sDX}, s{sDX}, 256
            v_lshrrev_b32 v{t}, 2, v2
            v_mul_u32_u24 v{t}, 1152, v{t}
            v_bfe_u32 v{t+1}, v2, 4, 1
            v_lshlrev_b32 v{t+1}, 1, v{t+1}
            v_and_b32 v{t+2}, 3, v2
            v_xor_b32 v{t+2}, v{t+2}, v{t+1}
            v_lshl_add_u32 v{vXDM}, v{t+2}, 4, v{t}
            v_add_u32 v{vXDM+1}, {16*1152-1024}, v{vXDM}
            v_lshrrev_b32 v{t}, 2, v2
            v_lshlrev_b32 v{t}, 6, v{t}
            v_lshl_add_u32 v{t}, v{t+1}, 4, v{t}
            v_and_b32 v{t+2}, 3, v2
            v_lshl_add_u32 v{t}, v{t+2}, 3, v{t}
            s_lshl_b32 s{sT2}, s{sW}, 11
            s_add_u32 s{sT2}, s{sT2}, {XB}
            v_add_u32 v{vXO}, s{sT2}, v{t}
            v_xor_b32 v{vXO+1}, 32, v{vXO}
            v_xor_b32 v{vXO+2}, 2048, v{vXO}
            v_xor_b32 v{vXO+3}, {2048+32}, v{vXO}"""
        return [x.strip() for x in o.split("\n") if x.strip()]

    def touch_setup(self):
        t = vT + 2
        o = f"""s_lshl_b32 s{sRB}, s{sB}, 4
        v_lshrrev_b32 v{t}, 3, v0
        v_mul_u32_u24 v{t}, 1152, v{t}
        v_and_b32 v{t+1}, 7, v0
        v_lshl_add_u32 v{t}, v{t+1}, 7, v{t}
        v_lshrrev_b32 v{vNEG}, 2, v{t+1}
        v_lshl_add_u32 v{vNEG}, v{vNEG}, 30, v{t}
        v_add_u32 v{t+1}, 3, v{t+1}
        v_lshrrev_b32 v{t+1}, 3, v{t+1}
        v_lshl_add_u32 v{vNEG+1}, v{t+1}, 30, v{t}
        s_bfe_u32 s74, s{sB}, 0x10002
        s_lshl_b32 s74, s74, 4
        s_and_b32 s73, s{sB}, 3
        s_lshl_b32 s73, s73, 1
        s_add_u32 s74, s74, s73
        s_lshr_b32 s73, s{sJ}, 1
        s_add_u32 s74, s74, s73
        s_mul_i32 s{sTA}, s74, {32*1152}
        s_add_u32 s{sTA+1}, s{sTA}, {256*1152}"""
        return [x.strip() for x in o.split("\n")]
    def touch_ops(self, ops, lo, hi, shift):
        for key in ("aa", "ab", "ba", "bb"):
            val = getattr(self.C, "t" + key)
            if val and val[0] == self.grp and lo <= int(val[1:]) < hi:
                g = int(val[1:]) - shift
                o = Op(f"buffer_load_dword v255, v{vNEG + (key[1] == 'a')}, s[{SWO}:{SWO+3}], s{sTA + (key[0] == 'b')} offen offset:{512 if key[1] == 'a' else 0}", "L", lo=g, dl=g + 4)
                o.tag = "touch"; ops.append(o)
    def before_attention(self): pass

    def loc(self, c):
        k, u = c >> 1, c & 1
        if k & 1: return (u ^ 1) * 32768, W1, u * 8192
        return u * 32768, W0, 16384 + u * 8192
    def dma(self, c):
        k, u = c >> 1, c & 1; off, win, xo = self.loc(c); gs = []
        for g in range(2):
            gs.append([f"s_add_u32 m0, s{sW8K}, {win + off + g*4096}", f"s_add_u32 s{sT1}, s{sSRC+k}, {(u*32 + 16*g)*1152}"]
                      + [f"buffer_load_dwordx4 v{vWD+a}, s[{SWO}:{SWO+3}], s{sT1} offen offset:{a*1024} lds" for a in range(4)])
        if self.grp == "a":
            gs.append([f"s_lshl_b32 m0, s{sW}, 11\ns_add_u32 m0, m0, {XB + xo}", f"s_add_u32 s{sT1}, s{sSRC+k}, {u*32*1152}\ns_add_u32 s{sT1}, s{sT1}, s{sDX}"]
                      + [f"buffer_load_dwordx4 v{vXDM+a}, s[{SWO}:{SWO+3}], s{sT1} offen offset:{a*1024} lds" for a in range(2)])
        return gs
    def oloads(self, k, sreg):
        return [f"buffer_load_dwordx4 {r4('a', 40*(k-1)+4*n)}, v{(3, vKD, vKD+1)[n >> 2]}, s[{SWS}:{SWS+3}], s{sreg} offen offset:{(n & 3)*1024} {self.C.lf}"
                for n in (0, 4, 8, 2, 6, 1, 5, 9, 3, 7)]
    def poll_txt(self, slow=False): return f"buffer_load_dword v{vPOL}, v{vPA}, s[{SWS}:{SWS+3}], s{sF1} offen offset:{1024 if self.C.dual and not slow else 0} sc1"
    def flag_txt(self):
        st = f"buffer_store_dword v{vRDY}, v{vPA}, s[{SWS}:{SWS+3}], s{sF1} offen"
        return "s_mov_b64 exec, 1\n" + (f"{st} offset:1024\n" if self.C.dual else "") + f"{st} {self.C.of}\ns_mov_b64 exec, -1"
    def spin(self, lab, mask):
        one = lambda slow: f"""{self.poll_txt(slow)}
        s_add_u32 s{sCNT}, s{sCNT}, 1
        s_waitcnt vmcnt(0)
        v_cmp_ne_u32 vcc, 1, v{vPOL}
        s_nop 0
        s_and_b32 s{sT2}, vcc_lo, {mask}
        s_cbranch_scc0 {lab}_q"""
        fast = f"""{one(False)}
        s_and_b32 s{sT2}, s{sCNT}, 15
        s_cbranch_scc1 {lab}_p
        """ if self.C.dual else ""
        return f"""s_mov_b32 s{sCNT}, 0
        {lab}_p:
        {fast}{one(True)}
        s_cmp_lt_u32 s{sCNT}, {SPIN * (4 if self.C.dual else 1)}
        s_cbranch_scc1 {lab}_p
        {lab}_q:"""
    def acquire(self, ops, mask, gp, gc, first=()):
        self.nl += 1; lab = f"{self.tag}_aq{self.nl}"
        p = Op(self.poll_txt(), "L", lo=gp, dl=gp + 2, after=list(first)); p.tag = lab
        w = waitop([lab], lo=gc - 2, dl=gc - 2, after=[p])
        c = Op(f"v_cmp_ne_u32 vcc, 1, v{vPOL}", "v", lo=gc - 2, dl=gc - 2, same=[w])
        b = Op(f"s_and_b32 s{sT2}, vcc_lo, {mask}\ns_cbranch_scc1 {lab}\n{lab}_r:", "b", lo=gc, dl=gc, after=[c])
        ops += [p, w, c, b]
        self.stubs.append(f"{lab}:\n{self.spin(lab, mask)}\ns_branch {lab}_r")
        return b

    def hook(self, ops, ch, i, G, gate):
        C = self.C
        if i == 0:
            prev = None; su = self.touch_setup() + self.setup_ops()
            for n, t in enumerate(su):
                prev = Op(t, "s" if t[0] == "s" else "v", lo=30, dl=400 - 3 * (len(su) - n), pri=10**5, after=[prev]); ops.append(prev)
        if i == 0: self.touch_ops(ops, 0, 680, 0)
        if i == 4:
            o = Op(f"buffer_load_dword v{vRDY}, v1, s[{SDBG}:{SDBG+3}], s{sRB} offen sc1", "L", lo=G - 30, dl=G - 14); o.tag = "rdy"; ops.append(o)
            lab = f"{self.tag}_rdy"
            w = waitop(["rdy"], lo=G + 161, dl=G + 163, after=[o])
            c = Op(f"v_cmp_ne_u32 vcc, 1, v{vRDY}", "v", lo=G + 162, dl=G + 170, after=[w])
            b = Op(f"s_cbranch_vccnz {lab}\n{lab}_r:", "b", lo=G + 164, dl=G + 178, after=[c], dist=2)
            ops += [w, c, b]; self.rdyok = b
            self.stubs.append(f"""{lab}:
            s_mov_b32 s{sCNT}, 0
            {lab}_p:
            buffer_load_dword v{vRDY}, v1, s[{SDBG}:{SDBG+3}], s{sRB} offen sc1
            s_add_u32 s{sCNT}, s{sCNT}, 1
            s_waitcnt vmcnt(0)
            v_cmp_ne_u32 vcc, 1, v{vRDY}
            s_cmp_ge_u32 s{sCNT}, {SPIN}
            s_cbranch_scc1 {lab}_r
            s_cbranch_vccnz {lab}_p
            s_branch {lab}_r""")
        if i == 5: self.gate5 = gate
        if i == 6:
            a = self.grp == "a"
            d0, d1 = (C.da if a else C.db).split("-"); pos = float(d0); rate = float(d1)
            plan = [(0, 0, None), (0, 1, None), (1, 0, None), (1, 1, None)]
            if a: plan += [(0, 2, self.gate5), (1, 2, self.gate5)] + ([(2, 0, gate), (2, 1, gate)] if C.apre > 2 else [])
            else: plan += [(2, 0, gate), (2, 1, gate), (3, 0, gate), (3, 1, gate)]
            quiet = [85 * s_ + g for s_ in (4, 5, 6) for g in C.dg]
            for c, part, dep in plan:
                x = self.dma(c)[part]; gaps = []
                if dep: pos = max(pos, dep.lo + 1)
                for _ in x[2:]:
                    near = [q for q in quiet if pos - 1 <= q <= pos + 1]
                    gaps.append(near[0] if near else int(pos)); pos = max(pos + rate, gaps[-1] + 2)
                ch.group(ops, x, ("wo", c), gaps, first=[dep])
            assert pos - rate < 678, pos
            prev = None
            for k in range(8):
                prev = Op(f"v_xor_b32 v{vOR1+k}, 8192, v{vOR0+k}", "v", lo=G + 76, dl=G + 165, after=[gate]); ops.append(prev)
        if i == 7 and self.grp == "b":
            p = Op(self.poll_txt(), "L", lo=G + C.p1, dl=G + C.p1, after=[self.rdyok]); p.tag = "pol1"; ops.append(p)

    def run(self):
        A, C, vm, NT, tag = self.A, self.C, self.vm, self.NT, self.tag
        a = self.grp == "a"
        def store(k, p):
            if a and C.sr: return
            A(f"buffer_store_dwordx4 {r4('v', ob(k, p))}, v3, s[{SWS}:{SWS+3}], s{sOP+k} offen offset:{p*1024} {C.of}"); vm.add("ost")
        def prebar():
            n = vm.wait(("wo", 0), ("wo", 1))
            return f"vmcnt({n}) " if n is not None else ""
        def checked():
            for n in range(PRE):
                for uu in range(2): A(self.rd((0, 0, 0, n), n, uu))
        self.stubs.append(normalise(A, C, tag, self.name, store, prebar, checked))
        A(f"v_add_u32 v{vKD}, 4096, v3\nv_add_u32 v{vKD+1}, 8192, v3\ns_mov_b32 s{sSAFE}, s{sOP}")
        stamp(A, C, 6)
        kept = lambda k, t: (k == 0) if t >= 8 else (t < 4 if k < 2 else t < 2)
        pool = [vS + 4*i for i in range(10)] + [vO + 80 + 4*i for i in range(4)] + [vO + 8*i + 4 for i in range(4)]
        areg = {}
        for t in range(NT):
            for k in range(3):
                if kept(k, t): areg[(k, t)] = vQ + 40 + 4*(t-8) if t >= 8 else vQ + 16*k + 4*t
                else: areg[(k, t)] = pool.pop(0)
        acc = lambda k, t: r4("v", areg[(k, t)])
        def bfr(s_, k, p): return r4("v", ob(k, p)) if s_ == 0 else r4("a", 40*(s_-1) + 4*(4*k + p))
        frags = []
        NO = C.na if a else C.no
        for c in range(NO):
            for z in range(2):
                for t in range(NT): frags.append((c >> 1, c & 1, z, t))
        us = range(NO - 6, 2)
        frags += [(3, u, 0, t) for t in (3, 2) for u in us]
        frags += [(3, u, z, t) for t in reversed(range(4, NT)) for u in us for z in range(2)]
        frags += [(3, u, 1, t) for t in (3, 2) for u in us]
        frags += [(3, u, z, t) for t in (1, 0) for u in us for z in range(2)]
        NR = 32
        mf = []; first = []; lastuse = []; done = {}
        for n, (s_, u, z, t) in enumerate(frags):
            first.append(len(mf))
            for k in range(3 - z):
                d = acc(k, t)
                mf.append(f"{MF} {d}, {r4('a', aF + 4*(n % NR))}, {bfr(s_, k, 2*z + u)}, {'0' if n < NT else d}")
                done[(k, t)] = len(mf) - 1
            lastuse.append(len(mf) - 1)
        E = len(mf); CH = 5 * NT
        ops = []; ch = Chain(); bars = {}; vis = {}
        LEAD = C.lead
        b1 = Op("s_barrier", "b", lo=6, dl=8)
        if a: ops.append(b1)
        for c in (1, 2, 3, 4, 6):
            g = CH * c - 1
            need = [c + 1] if c + 1 < 6 and not (a and C.v2 and c == 1) else []
            w = waitop([("wo", x) for x in need], lo=g - 1, dl=g - 1)
            bars[c] = Op("s_barrier", "b", lo=g, dl=g, after=[w]); ops += [w, bars[c]]
            for x in need: vis[x] = bars[c]
        for c in sorted({6, NO} | ({2} if a and C.v2 else set())):
            g = CH * c - LEAD - 1; need = [6, 7] if NO == 6 and c == 6 else [c]
            w = waitop([("wo", x) for x in need], lo=g - 1, dl=g - 1)
            o = Op("s_barrier", "b", lo=g, dl=g, after=[w]); ops += [w, o]
            for x in need: vis[x] = o
        last = None; lastrd = {}
        for n in range(PRE, len(frags)):
            s_, u, z, t = frags[n]
            dep = []
            if t < 8 and s_ and lastrd[(z, t)][1] != s_:
                r = (vOR1 if z else vOR0) + t
                tg = Op(f"v_add_u32 v{r}, {(W1 - W0) & 0xffffffff if s_ & 1 else W0 - W1}, v{r}", "v", dl=first[n] - LEAD - 1, after=[lastrd[(z, t)][0]]); ops.append(tg); dep = [tg]
            ld = LEAD + (C.rush if s_ == 3 and first[n] >= NO * CH else 0) * (first[n] - NO * CH) // 10
            for uu in range(2):
                last = Op(self.rd(frags[n], n % NR, uu), "d", lo=max(lastuse[n - NR] if n >= NR else 0, first[n] - ld), dl=first[n] - 7, pri=first[n] - 30, same=[last, vis.get(2*s_ + u)], after=dep); ops.append(last)
            lastrd[(z, t)] = (last, s_)
        fg = C.fga if a else C.fg
        if a and C.sr:
            for n in range(10):
                g = int(1 + C.sr * n)
                o = Op(f"buffer_store_dwordx4 {r4('v', ob(n >> 2, n & 3))}, v{(3, vKD, vKD+1)[n >> 2]}, s[{SWS}:{SWS+3}], s{sSAFE} offen offset:{(n & 3)*1024} {C.of}", "L", lo=g, dl=g + 1); o.tag = "ost"; ops.append(o)
            assert g + 2 < fg
        if C.hop > 1: ops.append(Op(";hop", "s", lo=fg - 1, dl=fg - 1))
        wst = waitop(["ost"], lo=fg, dl=fg)
        fl = Op(self.flag_txt(), "L", lo=fg + 1, dl=fg + 1, after=[wst]); fl.tag = "flag"; fl.cnt = 1 + C.dual; ops += [wst, fl]
        pos = [1.0]
        def place(n, rate):
            g = []
            for _ in range(n): g.append(int(pos[0])); pos[0] += rate
            return g
        def chunk(c, after, lo, rate):
            pos[0] = max(pos[0], lo)
            for x in self.dma(c): ch.group(ops, x, ("wo", c), place(len(x) - 2, rate), first=after)
        def loads(k, after, lo, rate, sreg=None, part=slice(0, 10), waits=True):
            pos[0] = max(pos[0], lo); prev = after
            x = list(enumerate(self.oloads(k, sOS + k - 1 if sreg is None else sreg)))[part]
            for (n, t), g in zip(x, place(len(x), rate)):
                prev = Op(t, "L", lo=g, dl=g, after=[prev]); prev.tag = ("o", k, n); ops.append(prev)
                nd = {2: 0, 4: 3*NT, 7: CH, 9: CH + 3*NT}.get(n)
                if k == 3: nd = {9: 0}.get(n) if NO == 6 else {2: 0, 4: 3*NT, 9: CH}.get(n)
                if waits and nd is not None:
                    assert g < 2*k*CH + nd - 3, (k, n, g)
                    ops.append(waitop([prev.tag], lo=2*k*CH + nd - 3, dl=2*k*CH + nd - 3, after=[prev]))
            return prev
        R = C.lr
        if a:
            if C.apre > 2:
                x = self.dma(2)[2]; pos[0] = 3; ch.group(ops, x, ("wo", 2), place(2, R))
                chunk(3, [b1], 10, R)
            else:
                chunk(2, [], 2, C.l0); chunk(3, [b1], 10, C.l0)
            q = self.acquire(ops, 4, max(C.aq - 22, fg + 2), C.aq, first=[fl])
            p = loads(1, q, C.aq + 2, min(R, (2*CH - 6 - C.aq) / 2), part=slice(0, 5))
            chunk(4, [bars[1]], 0, C.la)
            loads(1, p, 0, C.la, part=slice(5, 10))
            chunk(5, [bars[2]], 0, C.la)
            def soft(k, mask, gp, gc, gate_gap, n1, after):
                lab = f"{tag}_s{k}"
                p = Op(self.poll_txt(), "L", lo=gp, dl=gp + 1, after=after); p.tag = lab
                w = waitop([lab], lo=gc, dl=gc, after=[p])
                c = Op(f"v_cmp_ne_u32 vcc, 1, v{vPOL}", "v", lo=gc, dl=gc, same=[w])
                sl = Op(f"s_and_b32 s{sOK}, vcc_lo, {mask}\ns_cselect_b32 s{sSEL}, {OOB}, s{sOS+k-1}", "b", lo=gc + 2, dl=gc + 2, after=[c])
                l = loads(k, sl, gc + 3, min(R, (gate_gap - gc - 5) / n1), sSEL, part=slice(0, n1), waits=False)
                g = Op(f"s_cmp_lg_u32 s{sOK}, 0\ns_cbranch_scc1 {lab}\n{lab}_r:", "b", lo=gate_gap, dl=gate_gap, after=[l])
                x = self.oloads(k, sOS + k - 1)[:n1]
                self.stubs.append(f"{lab}:\n{self.spin(lab, mask)}\n" + "\n".join(x) + f"\ns_branch {lab}_r")
                ops.extend([p, w, c, sl, g])
                return l, g
            if C.am:
                g0 = max(int(pos[0]), 4*CH - C.am)
                l, g = soft(2, 2, g0 - C.a3, g0, 4*CH - 4, 5, [q])
                ops.append(waitop([l.tag], lo=4*CH - 3, dl=4*CH - 3, after=[g]))
                pos[0] = 4*CH
                loads(2, g, 0, 3, part=slice(5, 10))
                chunk(6, [bars[3]], 0, C.la)
                g1 = int(pos[0])
                l, g = soft(3, 8, g1 - C.a3, g1, g1 + 24, 5, [g])
                ops.append(waitop([l.tag], lo=6*CH - 4, dl=6*CH - 4, after=[g]))
                pos[0] = g1 + 26
                chunk(7, [bars[4], g], 0, C.la)
                loads(3, g, 0, C.la, part=slice(5, 10))
            else:
                chunk(6, [bars[3]], 0, min(R, (4*CH - 4 - max(pos[0], 3*CH + 1)) / 10))
                assert pos[0] < 4*CH
                lab = f"{tag}_late"
                pos[0] = 4*CH
                loads(2, None, 0, 3, part=slice(5, 10))
                ops.append(waitop([("o", 2, 4)], lo=4*CH + 3*NT - 3, dl=4*CH + 3*NT - 3))
                l3 = loads(3, None, 0, R, sSEL, waits=False)
                lg = int(pos[0])
                b = Op(f"s_cmp_lg_u32 s{sOK}, 0\ns_cbranch_scc1 {lab}\n{lab}_r:", "b", lo=lg, dl=lg, after=[l3]); ops.append(b)
                self.stubs.append(f"{lab}:\n{self.spin(lab, 8)}\n" + "\n".join(self.oloads(3, sOS + 2)) + f"\ns_branch {lab}_r")
                ops.append(Op("s_waitcnt vmcnt(0)", "s", lo=6*CH - 4, dl=6*CH - 4, after=[b]))
        else:
            lab = f"{tag}_late"
            w = waitop(["pol1"], lo=C.pc, dl=C.pc)
            c = Op(f"v_cmp_ne_u32 vcc, 1, v{vPOL}", "v", lo=C.pc, dl=C.pc, same=[w])
            sl = Op(f"s_and_b32 s{sOK}, vcc_lo, 10\ns_cselect_b32 s{sSEL}, {OOB}, s{sOS}", "b", lo=C.pc + 2, dl=C.pc + 2, after=[c]); ops += [w, c, sl]
            l1 = loads(1, sl, C.pc + 3, min(R, (44 - C.pc - 3) / 10), sSEL, waits=False)
            lg = int(pos[0]) - 2
            assert not l1.lo <= fg + 1 <= lg
            b = Op(f"s_cmp_lg_u32 s{sOK}, 0\ns_cbranch_scc1 {lab}\n{lab}_r:", "b", lo=lg, dl=lg, after=[l1]); ops.append(b)
            self.stubs.append(f"{lab}:\ns_waitcnt vmcnt(0)\n{self.flag_txt()}\n{self.spin(lab, 10)}\n" + "\n".join(self.oloads(1, sOS)) + f"\ns_branch {lab}_r")
            ops.append(waitop([l1.tag], lo=2*CH - 3, dl=2*CH - 3, after=[b]))
            chunk(4, [bars[1], b], lg + 2, R)
            chunk(5, [bars[2]], 2*CH + 1, R)
            p = loads(2, b, 0, R)
            q = self.acquire(ops, 4, C.pg, C.pg + 30, first=[b, fl])
            chunk(6, [bars[3]], 0, R)
            p = loads(3, q, C.pg + 32, R, part=slice(0, 5))
            chunk(7, [bars[4]], 0, R)
            loads(3, p, 0, R, part=slice(5, 10))
        print(f"{self.grp} last load gap", pos[0], file=sys.stderr)
        self.touch_ops(ops, 680, 2000, 680)
        if C.sg == 1:
            for n, c in enumerate((2, 4, 6)): ops.append(Op(stamp_txt(C, 1 + n), "s", lo=c*CH - 30, dl=c*CH - 26))
            ops.append(Op(stamp_txt(C, 4), "s", lo=E - 14, dl=E - 12))
        prev = None
        for t in self.reduce_setup() + self.final_setup():
            prev = Op(t, "s" if t[0] == "s" else "v", lo=9, pri=10**4, after=[prev]); ops.append(prev)
        sent = [(2, 1, 4)] + ([(2, 4, 8), (1, 4, 7)] if a else []) + [(2, 3, 6), (0, 3, 1), (1, 3, 3), (2, 2, 5), (0, 2, 0), (1, 2, 2)]
        wr = []
        for k, P, idx in sent:
            x, y = areg[(k, 2*P)], areg[(k, 2*P + 1)]
            p = prev
            for d, s0, tt in ((y + 3, y + 2, 1), (y + 2, y, 1), (y, x, 0), (y + 1, x + 2, 0)):
                lo = done[(k, 2*P + tt)] + 4
                p = Op(f"v_cvt_pk_bf16_f32 v{d}, v{s0}, v{s0+1}", "v", lo=lo, dl=lo + 2, pri=lo - 40, same=[p]); ops.append(p)
            o = Op(f"ds_write_b128 v{vRW}, {r4('v', y)} offset:{idx*1024}", "L", lo=lo + 1, dl=lo + 4, pri=lo - 40, after=[p, bars[6]]); ops.append(o); wr.append(o)
        ww = Op("s_waitcnt lgkmcnt(0)", "s", dl=E - 2, pri=0, after=wr + [last], dist=2)
        bw = Op("s_barrier", "b", dl=E - 1, pri=0, after=[ww]); ops += [ww, bw]
        units = [(0, 1, sPS + 1, [(2, 3)]), (1, 1, sPS + 3, [(2, 1)])] + ([(0, 4, sOP, [(2, 7)])] if a else [])
        units += [(0, 0, sPS, [(2, 2)]), (1, 0, sPS + 2, [(2, 0)]), (2, 0, sPS + 4, [(1, 4), (2, 5), (3, 6)])]
        if a: units.insert(0, (2, 4, sOP + 1, [(1, 8), (2, 8), (3, 8)]))
        prev = bw; n = 0
        for k, P, so, fr in units:
            x, y = areg[(k, 2*P)], areg[(k, 2*P + 1)]
            if (k, P) == (2, 4): x, y = vO, vO + 8; fr = [(0, 8)] + fr
            for j, (xw, idx) in enumerate(fr):
                prev = Op(f"ds_read_b128 {r4('a', 4*n)}, v{vRW + xw} offset:{idx*1024}", "d", dl=E - 1, same=[prev]); ops.append(prev)
                for e, d in enumerate((x, y)):
                    mf.append(f"{MF} {r4('v', d)}, {r4('v', vSEL + 2 - 2*e)}, {r4('a', 4*n)}, {'0' if (k, P, j) == (2, 4, 0) else r4('v', d)}")
                n += 1
            lo = len(mf) + 3; p = None
            for d, s0 in ((x, x), (x + 1, x + 2), (x + 2, y), (x + 3, y + 2)):
                p = Op(f"v_cvt_pk_bf16_f32 v{d}, v{s0}, v{s0+1}", "v", lo=lo, same=[p]); ops.append(p)
            for d in (x, x + 1):
                p = Op(f"v_permlane16_swap_b32 v{d}, v{d+2}", "e", after=[p]); ops.append(p)
            p = Op(f"buffer_store_dwordx4 {r4('v', x)}, v{vPSA}, s[{SWS}:{SWS+3}], s{so} offen sc1", "L", after=[p]); ops.append(p)
        out, over, idle = schedule(mf, ops, 60)
        print(f"outproj {self.grp}: overflow {over} idle {idle}", file=sys.stderr)
        for o in out:
            if isinstance(o, str): continue
            if "W" in C.abl2 and o.txt.startswith("ds_write"): o.txt = "s_nop 0"
            if "X" in C.abl2 and o.txt.startswith((f"buffer_load_dwordx4 v{vXDM},", f"buffer_load_dwordx4 v{vXDM+1},")): o.txt = "s_nop 0"; o.tag = None
            if "L" in C.abl2 and o.txt.startswith("buffer_load_dwordx4"): o.txt = "s_nop 0"; o.tag = None
        k0 = max(i for i, o in enumerate(out) if isinstance(o, str) and o.startswith(MF)) + 1
        rest = [o for o in out[k0:] if not isinstance(o, str)]
        out = out[:k0] + sorted(rest, key=lambda o: ({"v": 0, "e": 1, "L": 1}[o.kind], o.id))
        if a and not C.am:
            class Raw:
                def __init__(s, txt, tag=None, want=None): s.txt = txt; s.tag = tag; s.want = want
            lab = f"{tag}_w2"
            ins = [Raw(self.poll_txt(), lab)]
            for x in self.dma(7): ins += [Raw(x[0]), Raw(x[1])] + [Raw(y, ("wo", 7)) for y in x[2:]]
            ins += [Raw("", None, [lab]), Raw(f"v_cmp_ne_u32 vcc, 1, v{vPOL}\ns_nop 0\ns_and_b32 s{sT2}, vcc_lo, 2\ns_cbranch_scc1 {lab}\n{lab}_r:")]
            self.stubs.append(f"{lab}:\n{self.spin(lab, 2)}\ns_branch {lab}_r")
            ins += [Raw(f"s_and_b32 s{sOK}, vcc_lo, 8\ns_cselect_b32 s{sSEL}, {OOB}, s{sOS+2}")]
            ins += [Raw(t, ("o", 2, n)) for n, t in enumerate(self.oloads(2, sOS + 1)[:5])]
            ins += [Raw("", None, [("o", 2, 2)])]
            i1 = [i for i, o in enumerate(out) if isinstance(o, str) and o.startswith(MF)][4*CH]
            out = out[:i1] + ins + out[i1:]
        emit(A, vm, fine(C, "o", out))
        self.final()

    def rd(self, fr, slot, uu):
        s_, u, z, t = fr; off, win, xo = self.loc(2*s_ + u); r = aF + 4*slot + 2*uu
        if t >= 8: return f"ds_read_b64_tr_b16 a[{r}:{r+1}], v{vXO + 2*z + t - 8} offset:{xo + uu*1024}"
        return f"ds_read_b64_tr_b16 a[{r}:{r+1}], v{(vOR1 if z else vOR0) + t} offset:{off + uu*4096}"

    def reduce_setup(self):
        o = ""
        for x in range(4):
            o += f"s_xor_b32 s{sX0}, s{sW}, {x}\ns_lshl_b32 s{sX0}, s{sX0}, 14\ns_add_u32 s{sX0}, s{sX0}, {W0}\nv_add_u32 v{vRW+x}, s{sX0}, v3\n"
        o += f"""v_bfe_u32 v{vPSA+1}, v2, 4, 1
        v_lshrrev_b32 v{vPSA}, 5, v2
        v_lshl_add_u32 v{vPSA}, v{vPSA+1}, 1, v{vPSA}
        v_lshlrev_b32 v{vPSA}, 4, v{vPSA}
        v_and_b32 v{vPSA+1}, 15, v2
        v_lshl_add_u32 v{vPSA}, v{vPSA+1}, 6, v{vPSA}
        s_mul_i32 s{sPS+5}, s{sB}, {BAT}
        s_mul_i32 s{sX0}, s{sHKV}, {BLK}
        s_add_u32 s{sPS+5}, s{sPS+5}, s{sX0}
        s_add_u32 s{sPS+5}, s{sPS+5}, {PART}
        s_mul_i32 s{sPS+4}, s{sW}, 5120
        s_add_u32 s{sPS+4}, s{sPS+4}, s{sPS+5}
        s_xor_b32 s{sPS+2}, s{sW}, 1
        s_mul_i32 s{sPS+2}, s{sPS+2}, 5120
        s_add_u32 s{sPS+2}, s{sPS+2}, s{sPS+5}
        s_lshl_b32 s{sX0}, s{sS}, 1
        s_add_u32 s{sX0}, s{sX0}, s{sH}
        s_lshl_b32 s{sX0}, s{sX0}, 10
        s_add_u32 s{sPS}, s{sPS+4}, s{sX0}
        s_add_u32 s{sPS+1}, s{sPS+2}, s{sX0}
        s_add_u32 s{sOP}, s{sPS+5}, s{sX0}
        s_add_u32 s{sOP}, s{sOP}, 20480
        s_xor_b32 s{sX0}, s{sX0}, 1024
        s_add_u32 s{sPS+3}, s{sPS+2}, s{sX0}
        s_add_u32 s{sPS+2}, s{sPS+4}, s{sX0}
        s_add_u32 s{sPS+4}, s{sPS+4}, 4096
        s_add_u32 s{sOP+1}, s{sPS+5}, {20480 + 4096}
        s_xor_b32 s{sX0}, s{sW}, 3
        s_min_u32 s{sX0}, s{sX0}, 1
        s_lshl_b32 s{sX0}, s{sX0}, 30
        s_or_b32 s{sOP+1}, s{sOP+1}, s{sX0}
        v_lshrrev_b32 v{vSEL}, 4, v2
        v_bfe_u32 v{vSEL+1}, v2, 2, 2
        v_xor_b32 v{vSEL}, v{vSEL}, v{vSEL+1}
        v_min_u32 v{vSEL}, 1, v{vSEL}
        v_sub_u32 v{vSEL}, 1, v{vSEL}
        v_mul_u32_u24 v{vSEL}, 0x3f80, v{vSEL}
        v_and_b32 v{vSEL+1}, 1, v2
        v_lshlrev_b32 v{vSEL+1}, 4, v{vSEL+1}
        v_lshlrev_b32 v{vSEL}, v{vSEL+1}, v{vSEL}
        v_bfe_u32 v{vSEL+1}, v2, 1, 1
        v_sub_u32 v{vSEL+1}, 0, v{vSEL+1}
        v_and_b32 v{vSEL+3}, v{vSEL}, v{vSEL+1}
        v_xor_b32 v{vSEL+2}, v{vSEL}, v{vSEL+3}
        v_mov_b32 v{vSEL}, 0
        v_mov_b32 v{vSEL+1}, 0
        v_mov_b32 v{vSEL+4}, 0
        v_mov_b32 v{vSEL+5}, 0"""
        return [x.strip() for x in o.split("\n") if x.strip()]

    def final_setup(self):
        a = self.grp == "a"; NP = 400 if a else 320
        t = vF + 5
        o = f"""s_mul_i32 s{sX0}, s{sHG}, {NP}
        v_add_u32 v{vF}, s{sX0}, v0
        v_add_u32 v{vF+1}, 256, v{vF}
        s_mov_b32 s{sX0}, 52429
        """
        for r in range(2):
            o += f"""v_mul_u32_u24 v{t}, s{sX0}, v{vF+r}
            v_lshrrev_b32 v{t}, 24, v{t}
            v_mul_u32_u24 v{t+1}, 320, v{t}
            v_sub_u32 v{t+1}, v{vF+r}, v{t+1}
            v_lshrrev_b32 v{t+1}, 2, v{t+1}
            v_mul_u32_u24 v{t+1}, 1152, v{t+1}
            v_lshl_add_u32 v{t+1}, v{t}, 6, v{t+1}
            v_add_u32 v{t+1}, s{sPS+6}, v{t+1}
            """
            if a: o += f"""v_lshrrev_b32 v{t}, 2, v{t}
            v_mul_u32_u24 v{t}, s{sJ}, v{t}
            v_mul_u32_u24 v{t}, 160, v{t}
            v_sub_u32 v{t+1}, v{t+1}, v{t}
            """
            o += f"""v_and_b32 v{t}, 3, v{vF+r}
            v_lshl_add_u32 v{vF+2+r}, v{t}, 4, v{t+1}
            v_lshlrev_b32 v{vF+r}, 4, v{vF+r}
            """
        o += f"""v_sub_u32 v{t}, {NP - 257}, v0
        v_and_b32 v{t}, 0x40000000, v{t}
        v_or_b32 v{vF+1}, v{vF+1}, v{t}
        v_or_b32 v{vF+3}, v{vF+3}, v{t}
        s_mul_i32 s{sF2}, s{sB}, {BAT}
        s_lshl_b32 s{sX0}, s{sJ}, 11
        s_add_u32 s{sF2}, s{sF2}, s{sX0}
        s_add_u32 s{sF2}, s{sF2}, {FL + 32768}
        v_and_b32 v{vF+4}, 3, v2
        v_xor_b32 v{vF+4}, s{sHG}, v{vF+4}
        v_lshlrev_b32 v{vF+4}, 2, v{vF+4}
        s_mul_i32 s{sF2+1}, s{sB}, {BAT}
        s_mul_i32 s{sX0}, s{sJ}, {BLK}
        s_add_u32 s{sF2+1}, s{sF2+1}, s{sX0}
        s_add_u32 s{sF2+1}, s{sF2+1}, {PART}
        s_mul_i32 s{sOP+2}, s{sB}, 92160"""
        return [x.strip() for x in o.split("\n") if x.strip()]

    def final(self):
        A, C, tag = self.A, self.C, self.tag
        stamp(A, C, 7)
        A(f"""s_mov_b32 s{sCNT}, 0
        s_waitcnt vmcnt(0)
        s_barrier""")
        stamp(A, C, 8)
        A(f"""s_cmp_lg_u32 s{sW}, 0
        s_cbranch_scc1 {tag}_fq
        s_mov_b64 exec, 1
        buffer_store_dword v{vRDY}, v{vF+4}, s[{SWS}:{SWS+3}], s{sF2} offen sc1
        s_mov_b64 exec, 14""")
        pl = lambda k: f"buffer_load_dword v{vS+k}, v{vF+4}, s[{SWS}:{SWS+3}], s{sF2} offen sc1"
        D = C.pd
        for k in range(D - 1): A(pl(k) + f"\ns_sleep {C.ps}")
        A(f"{tag}_fp:")
        for k in range(D):
            A(f"""{pl((k + D - 1) % D)}
            s_waitcnt vmcnt({D - 1})
            v_cmp_ne_u32 vcc, 1, v{vS+k}
            s_add_u32 s{sCNT}, s{sCNT}, 1
            s_and_b32 s{sT2}, vcc_lo, 14
            s_cbranch_scc0 {tag}_fq""")
        A(f"s_cmp_lt_u32 s{sCNT}, {SPIN}\ns_cbranch_scc1 {tag}_fp\n{tag}_fq:\ns_mov_b64 exec, -1\ns_barrier")
        stamp(A, C, 9)
        for p in range(4):
            for r in range(2): A(f"buffer_load_dwordx4 {r4('a', 16*r+4*p)}, v{vF+r}, s[{SWS}:{SWS+3}], s{sF2+1} offen sc1")
            if p < 3: A(f"s_add_u32 s{sF2+1}, s{sF2+1}, {4*BLK}")
        for p in range(4):
            A(f"s_waitcnt vmcnt({(3-p)*2})")
            for r in range(2):
                for e in range(2):
                    d = r4("v", vO + 8*r + 4*e)
                    A(f"{MF} {d}, {r4('v', vSEL + 2 - 2*e)}, {r4('a', 16*r+4*p)}, {'0' if p == 0 else d}")
        for r in range(2):
            pack(A, vO + 8*r, vO + 8*r + 4, vO + 8*r, None, False)
            A(f"buffer_store_dwordx4 {r4('v', vO+8*r)}, v{vF+2+r}, s[{SOUT}:{SOUT+3}], s{sOP+2} offen {C.outf}")
        if C.stamps: A("s_waitcnt vmcnt(0)\ns_barrier")
        stamp(A, C, 10)
        flush(A, C, self.name)
        A("s_endpgm")
```

```python
import sys, math, struct, json
from asmlib import *
from sched import Op, schedule, ORDER as ORD
import hazard
QSCALE = struct.unpack("<I", struct.pack("<f", math.log2(math.e) / math.sqrt(128.0)))[0]
STAMP = 64 << 20
OOB = 0x7fff0000
SPIN = 200000
MF = "v_mfma_f32_16x16x32_bf16"
LLO, LHI = (127 - 60) << 23, (127 + 60) << 23

SDBG, SX, SK, SV, SWQ, SWO, SWS, SOUT = 4, 20, 24, 28, 32, 36, 40, 44
sW, sH, sS, sJ, sHG, sB, sHKV, sW4K, sX0, sT0, sT1, sT2, sQS, sRET, sSAFE, sCNT = 48, 49, 50, 51, 52, 53, 54, 55, 56, 57, 58, 59, 60, 62, 64, 65
sU = 8
sST = 76
vWD, vXD, vKD, vVD, vWR, vXR, vKR, vVR, vT = 4, 8, 11, 15, 17, 25, 31, 39, 55
vQ, vO, vS, vE = 64, 112, 208, 248
vNEG = 252
aK, aV, aL, aONE = 0, 128, 192, 204
aWA, aWB = 64, 208
XR, WQR, QX = 94208, 114688, 114688
def kslot(i): return (i % 3) * 16384
def vslot(i): return 49152 + (i % 3) * 16384
ORDER = ["K0"] + [x for i in range(7) for x in (f"K{i+1}", f"V{i}")] + ["V7"]
JSLOT, JSET = [0, 1, 2, 0, 1], [0, 0, 0, 1, 1]

class Cfg:
    nact = 256; abl = ""; abl0 = ""; fine = ""; abl2 = ""; wg = 7; cyc = 0; NB = 5; lagb = 0; laga = 0; latev = 0; tlb = 1; wpre = ""; tsh = 16; stamps = 0; tail = "h"; split = 3; touch = "KWm"; outf = ""; wsp = 0; wp = 0; vz = 0; v0 = 10; v1 = 6; kd = 70; sr = 0; s0 = 1; fga = 40; pc = 14; am = 0; a3 = 25; ea = ""; eb = "01"; va = ""; vb = ""; l0 = 2.6; p1 = 45; hop = 2; da = "540-4.5"; db = "560-4.5"
    dg = (76, 78, 80, 82, 85, 87, 89, 91); of = "sc1"; dual = 1; f0 = 3; qi = 3; xg = 18; nost = ""; be = 6; g0 = 2; bpre = 4; r7 = 4; l1e = 44; cl = 1; f2s = 2; p0 = 0; pl = 0; c7 = 2; c6 = 4; sw = 0; s3 = 4; s4 = 6; l2 = ""; mid = "ab"; taa = "a433"; tba = "b436"; tab = "b433"; tbb = "a150"; wbb = 460; rn = 1; tf = ""; apre = 3; wa = 540; wb = -1; lf = "sc1"; fg = 24; lr = 4.2; la = 3.4; pd = 1; ps = 4; na = 7; rush = 3; pg = 140; aq = 62; lead = 12; no = 7; sg = 0
    def __init__(self, **kw):
        for k, val in kw.items(): setattr(self, k, val)
        if isinstance(self.dg, str): self.dg = tuple(int(x) for x in self.dg.split('-'))

class VM:
    def __init__(self): self.q = []
    def add(self, tag, n=1): self.q += [tag] * n
    def wait(self, *tags):
        idx = [i for i, t in enumerate(self.q) if t in tags]
        if not idx: return None
        n = len(self.q) - 1 - max(idx)
        self.q = self.q[max(idx) + 1:]
        assert n <= 63
        return n

def srd(A, d, base, off, size):
    if off is None: A(f"s_mov_b32 s{d}, s{base}\ns_mov_b32 s{d+1}, s{base+1}")
    else: A(f"s_add_u32 s{d}, s{base}, {off}\ns_addc_u32 s{d+1}, s{base+1}, 0")
    A(f"s_mov_b32 s{d+2}, {size}\ns_mov_b32 s{d+3}, 0x20000")
def stamp_txt(C, i): return f"{'s_memtime' if C.cyc else 's_memrealtime'} s[{sST+2*i}:{sST+2*i+1}]"
def stamp(A, C, i):
    if C.sg == 4 and 5 <= i <= 8 and any(f's[{sST+2*i}:' in l for l in A.L): return
    if C.stamps and not C.fine: A(stamp_txt(C, i))
def fine(C, phase, out):
    if not C.fine or C.fine[0] != phase: return out
    g0, dg = (int(x) for x in C.fine[1:].split("-")); res = []; n = 0
    for i, o in enumerate(out):
        res.append(o)
        if isinstance(o, str) and o.startswith(MF):
            if n >= g0 and (n - g0) % dg == 0 and (n - g0) // dg < 13:
                res.append(stamp_txt(C, (n - g0) // dg))
                if out[i + 1] == ";sfree": out[i + 1] = ";"
            n += 1
    return res
def r4(p, i): return f"{p}[{i}:{i+3}]"

def emit(A, vm, out):
    for o in out:
        if isinstance(o, str): A(o); continue
        if getattr(o, "want", None) is not None:
            n = vm.wait(*o.want)
            if n is None: A(f"s_waitcnt {o.txt}" if o.txt else ";sfree")
            else: A(f"s_waitcnt vmcnt({n}) {o.txt}")
        else: A(o.txt)
        if getattr(o, "tag", None) is not None: vm.add(o.tag, getattr(o, "cnt", 1))
def waitop(tags, extra="", **kw):
    o = Op(extra, "s", **kw); o.want = tags; return o
class Chain:
    def __init__(self): self.last = None
    def group(self, ops, x, tag, gaps, first=(), nscal=2):
        prev = self.last
        for t in reversed(x[:nscal]):
            o = Op(t, "s", lo=gaps[0] - 2, dl=gaps[0], pri=gaps[0] - 2, after=[prev] if prev and prev.kind == "L" else [], same=[prev] if prev and prev.kind == "s" else [])
            ops.append(o); prev = o
        for t, gp in zip(x[len(x) - len(gaps):] if nscal == 1 else x[2:], gaps):
            o = Op(t, "L", lo=gp, dl=gp, after=[prev] + list(first))
            o.tag = tag; ops.append(o); prev = o
        self.last = prev
        return prev

def prologue(A, C, name):
    A(f"""s_load_dwordx16 s[4:19], s[0:1], 0
    s_cmp_ge_u32 s2, {C.nact}
    s_cbranch_scc1 {name}_end""")
    stamp(A, C, 0)
    A(f"""v_lshrrev_b32 v1, 6, v0
    v_and_b32 v2, 63, v0
    v_readfirstlane_b32 s{sW}, v1
    s_and_b32 s{sHG}, s2, 3
    s_bfe_u32 s{sJ}, s2, 0x20003
    s_lshr_b32 s{sB}, s2, 5
    s_bfe_u32 s{sT0}, s2, 0x10002
    s_lshl_b32 s{sT0}, s{sT0}, 3
    s_add_u32 s{sB}, s{sB}, s{sT0}
    s_lshl_b32 s{sHKV}, s{sHG}, 2
    s_add_u32 s{sHKV}, s{sHKV}, s{sJ}
    s_lshr_b32 s{sH}, s{sW}, 1
    s_and_b32 s{sS}, s{sW}, 1
    s_lshl_b32 s{sW4K}, s{sW}, 12""")

def code_touch(A, name):
    A(f"""s_getpc_b64 s[{sRET}:{sRET+1}]
    {name}_pc:
    s_sub_u32 s{sRET}, s{sRET}, {name}_pc-{name}_kernel
    s_subb_u32 s{sRET+1}, s{sRET+1}, 0
    s_lshr_b32 s{sT0}, s2, 4
    v_lshl_add_u32 v1, v0, 4, s{sT0}
    v_lshlrev_b32 v1, 7, v1
    v_min_u32 v1, {name}_hot-{name}_kernel-4, v1
    s_cmp_lg_u32 s{sW}, 0
    s_cbranch_scc1 {name}_nc
    global_load_dword v255, v1, s[{sRET}:{sRET+1}]
    {name}_nc:""")

def w_addresses(A):
    t = vT
    A(f"""s_mul_i32 s{sX0}, s{sW}, 2560
    s_add_u32 s{sX0}, s{sX0}, {XR}
    v_lshrrev_b32 v{t}, 4, v2
    v_and_b32 v{t+1}, 15, v2
    v_lshlrev_b32 v{t+2}, 1, v{t}
    v_xor_b32 v{t+2}, v{t+1}, v{t+2}
    v_lshlrev_b32 v{t+2}, 4, v{t+2}
    v_lshl_add_u32 v{vWD}, v{t}, 13, v{t+2}
    v_xor_b32 v{vWD+2}, 128, v{vWD}
    v_add_u32 v{vWD+1}, {4*8192-1024}, v{vWD}
    v_add_u32 v{vWD+3}, {12*8192-3072}, v{vWD+2}
    v_add_u32 v{vWD+2}, {8*8192-2048}, v{vWD+2}
    v_lshrrev_b32 v{t}, 3, v2
    v_and_b32 v{t+1}, 7, v2
    s_mul_i32 s{sT0}, s{sW}, 20
    v_add_u32 v{t+2}, s{sT0}, v{t}
    v_bfe_u32 v{t+3}, v{t+2}, 1, 3
    v_xor_b32 v{t+3}, v{t+1}, v{t+3}
    v_mul_u32_u24 v{t+2}, 1152, v{t+2}
    v_lshl_add_u32 v{vXD}, v{t+3}, 4, v{t+2}
    v_xor_b32 v{vXD+1}, 64, v{vXD}
    v_add_u32 v{vXD+1}, {8*1152-1024}, v{vXD+1}
    v_add_u32 v{vXD+2}, {16*1152-2048}, v{vXD}""")
def w_srds(A):
    A(f"s_mul_i32 s{sT0}, s{sB}, 92160")
    srd(A, SX, 4, f"s{sT0}", 92160)
    A(f"""s_lshl_b32 s{sT0}, s{sHKV}, 9
    s_lshl_b32 s{sT2}, s{sH}, 8
    s_add_u32 s{sT0}, s{sT0}, s{sT2}
    s_lshl_b32 s{sT2}, s{sS}, 17
    s_add_u32 s{sT0}, s{sT0}, s{sT2}
    s_sub_u32 s{sT2}, {576*8192}, s{sT0}""")
    srd(A, SWQ, 10, f"s{sT0}", f"s{sT2}")
def kv_setup(A):
    t = vT
    A(f"""v_lshrrev_b32 v{t}, 4, v2
    v_and_b32 v{t+1}, 15, v2
    v_lshlrev_b32 v{t+2}, 1, v{t}
    v_xor_b32 v{t+2}, v{t+1}, v{t+2}
    v_lshlrev_b32 v{t+2}, 4, v{t+2}
    v_lshl_add_u32 v{vVD}, v{t}, 8, v{t+2}
    v_xor_b32 v{vVD+1}, 128, v{vVD}
    v_xor_b32 v{t+2}, v{t+1}, v{t}
    v_lshlrev_b32 v{t+2}, 4, v{t+2}
    v_lshl_add_u32 v{vKD}, v{t}, 8, v{t+2}
    v_xor_b32 v{vKD+1}, 64, v{vKD}
    v_xor_b32 v{vKD+2}, 128, v{vKD}
    v_xor_b32 v{vKD+3}, 192, v{vKD}
    s_lshl_b32 s{sT1}, s{sB}, 4
    s_add_u32 s{sT1}, s{sT1}, s{sHKV}
    s_lshl_b32 s{sT1}, s{sT1}, 17""")
    srd(A, SK, 6, f"s{sT1}", 131072)
    srd(A, SV, 8, f"s{sT1}", 131072)

def late_addresses(A, C):
    g, q, r, cc, t = vT, vT + 1, vT + 2, vT + 3, vT + 4
    A(f"""v_lshrrev_b32 v{g}, 4, v2
    v_and_b32 v{q}, 15, v2
    v_bfe_u32 v{r}, v2, 2, 2
    v_and_b32 v{cc}, 3, v2
    v_and_b32 v{t+2}, 1, v{g}
    v_lshl_add_u32 v{t+1}, v{t+2}, 2, v{r}
    v_lshlrev_b32 v{t+1}, 5, v{t+1}
    v_lshl_add_u32 v{t+1}, v{cc}, 3, v{t+1}
    s_lshl_b32 s{sT1}, s{sS}, 7
    v_xor_b32 v{t+1}, s{sT1}, v{t+1}
    v_lshl_add_u32 v{t}, v{g}, 3, v{r}
    v_lshl_add_u32 v{t}, v{t}, 8, v{t+1}
    s_lshl_b32 s{sT0}, s{sH}, 13
    s_add_u32 s{sT0}, s{sT0}, {WQR}
    v_add_u32 v{vWR}, s{sT0}, v{t}""")
    for k in range(1, 8): A(f"v_xor_b32 v{vWR+k}, {32*k}, v{vWR}")
    A(f"""v_lshl_add_u32 v{t}, v{g}, 2, v{r}
    v_lshl_add_u32 v{t}, v{t}, 8, v{t+1}
    s_lshl_b32 s{sT0}, s{sS}, 13
    s_add_u32 s{sT2}, s{sT0}, {vslot(0)}
    v_add_u32 v{vVR}, s{sT2}, v{t}""")
    for k in range(1, 16): A(f"v_xor_b32 v{vVR+k}, {32*(k & 7) + 8192*(k >> 3)}, v{vVR}")
    A(f"""v_lshrrev_b32 v{t}, 1, v{g}
    v_lshl_add_u32 v{t}, v{t+2}, 1, v{t}
    v_xor_b32 v{t}, v{t}, v{q}
    v_lshlrev_b32 v{t}, 4, v{t}
    v_xor_b32 v{t}, s{sT1}, v{t}
    v_lshl_add_u32 v{t}, v{q}, 8, v{t}
    v_add_u32 v{vKR}, s{sT0}, v{t}""")
    for k in range(1, 8): A(f"v_xor_b32 v{vKR+k}, {64*(k & 3) + 8192*(k >> 2)}, v{vKR}")
    A(f"""v_lshrrev_b32 v{t}, 1, v{q}
    v_xor_b32 v{t}, v{t}, v{g}
    v_lshlrev_b32 v{t}, 4, v{t}
    v_lshl_add_u32 v{t}, v{q}, 7, v{t}
    s_lshl_b32 s{sT0}, s{sS}, 1
    s_add_u32 s{sT0}, s{sT0}, s{sH}
    s_lshl_b32 s{sT0}, s{sT0}, 11
    s_xor_b32 s{sT1}, s{sT0}, 2048
    s_add_u32 s{sT0}, s{sT0}, {XR}
    s_add_u32 s{sT1}, s{sT1}, {XR}
    v_add_u32 v{vXR}, s{sT0}, v{t}
    v_add_u32 v{vXR+2}, s{sT1}, v{t}
    v_add_u32 v{vXR+4}, {XR + 8192}, v{t}""")
    for k in range(3): A(f"v_xor_b32 v{vXR+2*k+1}, 64, v{vXR+2*k}")
    A(f"""v_lshlrev_b32 v3, 4, v2
    v_mov_b32 v1, 0
    s_mov_b32 s{sQS}, {QSCALE}
    s_mov_b32 s{sQS+1}, {QSCALE}
    s_mov_b32 s{sSAFE}, 1
    v_mov_b32 v{vNEG+2}, 0
    v_mov_b32 v{t}, 0x3f803f80""")
    for i in range(4): A(f"v_accvgpr_write_b32 a{aONE+i}, v{t}")
    A(f"s_mul_i32 s{sT0}, s{sHG}, {1024*1152}")
    srd(A, SWO, 12, f"s{sT0}", 1024 * 1152)
    srd(A, SOUT, 14, None, 1280 * 1152)
    srd(A, SDBG, 16, None, 256)

def touches(A, C, vm, first, mid):
    x, w = vQ + 8, vQ + 9
    A(f"s_movk_i32 s{sX0}, 224")
    A(f"""v_lshlrev_b32 v{x}, 7, v0
    v_cmp_gt_u32 vcc, 180, v0
    v_mov_b32 v{vT+1}, {OOB}
    s_lshr_b32 s{sT0}, s{sJ}, 1
    s_mul_i32 s{sT0}, s{sT0}, 46080
    v_cndmask_b32 v{x}, v{vT+1}, v{x}, vcc
    s_mul_i32 s{sT1}, s{sB}, 92160
    s_add_u32 s{sT0}, s{sT0}, s{sT1}
    v_lshrrev_b32 v{w}, 2, v0
    v_and_b32 v{vT+1}, 3, v0
    s_and_b32 s{sT1}, s{sB}, 7
    v_lshl_add_u32 v{w}, v{w}, 3, s{sT1}
    v_lshlrev_b32 v{w}, 13, v{w}
    v_lshl_add_u32 v{w}, v{vT+1}, 7, v{w}""")
    if "K" in C.touch:
        k = vQ + 10
        A(f"""v_mul_u32_u24 v{k}, 21846, v0
        v_lshrrev_b32 v{k}, 16, v{k}
        v_mul_u32_u24 v{k}, {1152 - 384}, v{k}
        v_lshl_add_u32 v{k}, v0, 7, v{k}
        v_subrev_u32 v{k+1}, {256*8192}, v{w}
        v_cmp_gt_u32 vcc, 128, v0
        v_cmp_gt_u32 s[{sQS}:{sQS+1}], s{sX0}, v0
        v_mov_b32 v{vT+1}, {OOB}
        v_cndmask_b32 v{k}, v{k+1}, v{k}, vcc
        s_xor_b32 s{sT1}, s{sHKV}, 1
        s_lshl_b32 s{sT1}, s{sT1}, 9
        v_cndmask_b32 v{k}, v{vT+1}, v{k}, s[{sQS}:{sQS+1}]""")
    A("s_waitcnt lgkmcnt(0)")
    if C.sg == 4: stamp(A, C, 5)
    first()
    srd(A, SOUT, 4, f"s{sT0}", 46080)
    srd(A, SWO, 10, None, 576 * 8192)
    for ch in C.touch:
        if ch == "K":
            A(f"""s_cmp_lt_u32 s{sW}, 2
            s_cselect_b32 s{SX}, s{SOUT}, s{SWO}
            s_cselect_b32 s{SX+1}, s{SOUT+1}, s{SWO+1}
            s_cselect_b32 s{SX+2}, s{SOUT+2}, s{SWO+2}
            s_cselect_b32 s{sT1}, 0, s{sT1}
            s_cselect_b32 s{sT0}, 1, 4096
            s_mov_b32 s{SX+3}, 0x20000
            s_mul_i32 s{sT0}, s{sT0}, 384""")
            for r in range(3):
                A(f"buffer_load_dword v255, v{vQ+10}, s[{SX}:{SX+3}], s{sT1} offen\ns_add_u32 s{sT1}, s{sT1}, s{sT0}"); vm.add("touch")
        if ch == "X":
            A(f"buffer_load_dword v255, v{x}, s[{SOUT}:{SOUT+3}], 0 offen\ns_mov_b32 s{sT0}, 23040\nbuffer_load_dword v255, v{x}, s[{SOUT}:{SOUT+3}], s{sT0} offen"); vm.add("touch", 2)
        if ch in "oW":
            A(f"""s_xor_b32 s{sT0}, s{sHKV}, {1 if ch == 'o' else 0}
            s_lshl_b32 s{sT0}, s{sT0}, 9
            buffer_load_dword v255, v{w}, s[{SWO}:{SWO+3}], s{sT0} offen
            s_add_u32 s{sT0}, s{sT0}, {512*8192}
            buffer_load_dword v255, v{w}, s[{SWO}:{SWO+3}], s{sT0} offen"""); vm.add("touch", 2)
        if ch in "hl":
            A(f"""s_lshl_b32 s{sT0}, s{sHKV}, 9
            s_cmp_{'lt' if ch == 'h' else 'ge'}_u32 s{sW}, 2
            s_cselect_b32 s{sT2}, s{sT0}, {OOB}
            buffer_load_dword v255, v{w}, s[{SWO}:{SWO+3}], s{sT2} offen"""); vm.add("touch")
            if ch == "l": A(f"s_add_u32 s{sT0}, s{sT0}, {512*8192}\nbuffer_load_dword v255, v{w}, s[{SWO}:{SWO+3}], s{sT0} offen"); vm.add("touch")
        if ch == "m":
            if C.sg == 4: stamp(A, C, 6)
            mid()

def wo_touches(A, C, vm):
    if not C.wpre: return
    t = vT
    A(f"s_mul_i32 s{sT0}, s{sHG}, {1024*1152}")
    srd(A, SWO, 12, f"s{sT0}", 1024 * 1152)
    A(f"""v_lshrrev_b32 v{t}, 2, v0
    v_mul_u32_u24 v{t}, 1152, v{t}
    v_and_b32 v{t+1}, 3, v0
    v_lshl_add_u32 v{t+2}, v{t+1}, 7, v{t}
    s_and_b32 s{sT0}, s{sB}, 7
    s_lshl_b32 s{sT0}, s{sT0}, 1
    s_lshr_b32 s{sT2}, s{sJ}, 1
    s_add_u32 s{sT0}, s{sT0}, s{sT2}
    s_mul_i32 s{sT0}, s{sT0}, 73728
    v_cmp_eq_u32 vcc, 0, v{t+1}
    v_mov_b32 v{t+1}, {OOB}
    s_nop 0
    v_cndmask_b32 v{t}, v{t+1}, v{t}, vcc""")
    if "b" in C.wpre: A(f"buffer_load_dword v255, v{t+2}, s[{SWO}:{SWO+3}], s{sT0} offen"); vm.add("touch")
    if "a" in C.wpre:
        A(f"buffer_load_dword v255, v{t+2}, s[{SWO}:{SWO+3}], s{sT0} offen offset:512\nbuffer_load_dword v255, v{t}, s[{SWO}:{SWO+3}], s{sT0} offen offset:1024"); vm.add("touch", 2)

def dma_kv(name, slot=None, so=None):
    i = int(name[1:])
    if name[0] == "V": sr, sl, va = SV, vslot(i), [vVD, vVD + 1, vVD, vVD + 1]
    else: sr, sl, va = SK, kslot(i), [vKD + a for a in range(4)]
    o = [f"s_add_u32 m0, s{sW4K}, {sl if slot is None else slot}", f"s_add_u32 s{sT1}, s{sW4K}, {i*16384 if so is None else so}"]
    return o + [f"buffer_load_dwordx4 v{va[a]}, s[{sr}:{sr+3}], s{sT1} offen offset:{a*1024} nt lds" for a in range(4)]
def dma_wq(j):
    o = [f"s_add_u32 m0, s{sW4K}, {WQR + (j % 3)*16384}", f"s_mov_b32 s{sT1}, {j*262144}"]
    return o + [f"buffer_load_dwordx4 v{vWD+a}, s[{SWQ}:{SWQ+3}], s{sT1} offen offset:{a*1024} lds" for a in range(4)]
def dma_x(t):
    o = [f"s_add_u32 m0, s{sX0}, {((t + 1) % 2)*10240}", f"s_mov_b32 s{sT0}, {t*128}"]
    o += [f"buffer_load_dwordx4 v{vXD+i}, s[{SX}:{SX+3}], s{sT0} offen offset:{i*1024} lds" for i in range(2)]
    o += [f"s_mov_b32 exec_hi, 0\nbuffer_load_dwordx4 v{vXD+2}, s[{SX}:{SX+3}], s{sT0} offen offset:2048 lds\ns_mov_b32 exec_hi, -1"]
    return o
def w_reads(j):
    p = j & 1
    o = [("D", f"ds_read_b128 {r4('a', aWB+12*p+4*k)}, v{vXR+2*k+p} offset:{(((j >> 1) + 1) % 2)*10240}") for k in range(3)]
    for t in range(8):
        for u in range(2): o.append(("d", f"ds_read_b64_tr_b16 a[{aWA+32*p+4*t+2*u}:{aWA+32*p+4*t+2*u+1}], v{vWR+t} offset:{(j % 3)*16384 + u*1024}"))
    return o
def k_reads(i, buf=None, slot=None):
    b = aK + 64 * (i & 1 if buf is None else buf); sl = kslot(i) if slot is None else slot
    return [f"ds_read_b128 {r4('a', b+32*z+16*kt+4*p)}, v{vKR+4*z+p} offset:{sl + kt*4096}" for z in range(2) for kt in range(2) for p in range(4)]
def v_reads(i, slot=None):
    sl = (vslot(i) if slot is None else slot) - vslot(0)
    return [f"ds_read_b64_tr_b16 a[{aV+32*z+4*m+2*u}:{aV+32*z+4*m+2*u+1}], v{vVR+8*z+m} offset:{sl + u*4096}" for z in range(2) for m in range(8) for u in range(2)]

def qproj(A, C, vm, issued, grp):
    mf = []; ops = []; ch = Chain()
    for j in range(18):
        G = 20 * j; p = j & 1; nxt = j + 1
        for t in range(8):
            for k in range(3 if t < 4 else 2):
                d = vO + 32 * k + 4 * t
                mf.append(f"{MF} {r4('v', d)}, {r4('a', aWA+32*p+4*t)}, {r4('a', aWB+12*p+4*k)}, {'0' if j == 0 else r4('v', d)}")
        b0 = G + C.wg + 1
        bar = None
        if nxt < 18:
            wv = waitop([("wq", nxt)] + ([("x", nxt >> 1)] if p else []), "lgkmcnt(0)", lo=b0 - 1, dl=b0 - 1)
            bar = Op("s_barrier", "b", lo=b0, dl=b0, after=[wv]); ops += [wv, bar]
            last = bar
            need = [0, 1, 2] + [x for t in range(8) for x in [3 * t if t < 4 else 4 + 2 * t] * 2]
            rds = sorted(zip(need, range(19), w_reads(nxt)), key=lambda x: (x[0] + (0.5 if x[1] in (3, 4) else 0), x[1])) if C.wp else zip(need, range(19), w_reads(nxt))
            for n, (nd, _, (kind, t)) in enumerate(rds):
                last = Op(t, kind if C.wp else "d", lo=b0 + int(n * C.wp), dl=G + 20 + min(nd - 3, C.wg - 2), pri=G, same=[last]); ops.append(last)
        t = (nxt >> 1) + 1
        gaps = [b0 + 10, b0 + 13, b0 + 16, b0 + 19] if p and t < 9 else [b0 + 3, b0 + 8, b0 + 13, b0 + 18]
        if p and t < 9: ch.group(ops, dma_x(t), ("x", t), [b0 + 1, b0 + 4, b0 + 7], first=[bar])
        gaps = [min(g, 356 + k) for k, g in enumerate(gaps)]
        if j + 3 < 18: ch.group(ops, dma_wq(j + 3), ("wq", j + 3), gaps, first=[bar])
        elif issued < (C.be if grp == "b" and C.NB else 5):
            assert issued < 6 or j == 17
            ch.group(ops, dma_kv(ORDER[issued]), ORDER[issued], gaps); issued += 1
        if grp == "b" and C.NB and j == 0:
            for n, t in enumerate(k_reads(0)):
                g = 20 * (2 + n // 2) + C.wg - 6 + (n & 1); ops.append(Op(t, "D", lo=g, dl=g + 2))
    out, over, idle = schedule(mf, ops)
    print(f"qproj: overflow {over} idle {idle}", file=sys.stderr)
    for o in out:
        if isinstance(o, str): continue
        if "x" in C.abl0 and o.txt.startswith("s_mov_b32 exec_hi"): o.txt = "s_nop 0"; o.tag = None
        if "B" in C.abl0 and o.txt == "s_barrier": o.txt = "s_nop 0"
        if "L" in C.abl0 and o.kind == "L" and not isinstance(o.tag, str): o.txt = "s_nop 0"; o.tag = None
        if "d" in C.abl0 and o.kind == "d": o.txt = "s_nop 0"
    emit(A, vm, fine(C, "w", out))
    return issued

def pack(A, x, y, d, scale, swap):
    if scale:
        for r in (x, x + 2, y, y + 2): A(f"v_pk_mul_f32 v[{r}:{r+1}], v[{r}:{r+1}], {scale}")
    A(f"""v_cvt_pk_bf16_f32 v{d}, v{x}, v{x+1}
    v_cvt_pk_bf16_f32 v{d+1}, v{x+2}, v{x+3}
    v_cvt_pk_bf16_f32 v{d+2}, v{y}, v{y+1}
    v_cvt_pk_bf16_f32 v{d+3}, v{y+2}, v{y+3}""")
    return [f"v_permlane16_swap_b32 v{d}, v{d+2}", f"v_permlane16_swap_b32 v{d+1}, v{d+3}"] if swap else []

def q_epilogue(A, C, vm, issued, grp):
    w = vT
    A(f"s_lshl_b32 s{sT0}, s{sW}, 11\ns_add_u32 s{sT0}, s{sT0}, {QX}\nv_add_u32 v{w}, s{sT0}, v3\nv_xor_b32 v{w+1}, 2048, v{w}")
    pend = []
    todo = [(2, 0), (2, 1)] + [(k, p) for k in range(2) for p in range(4)]
    for n, (k, p) in enumerate(todo):
        x = vO + 32 * k + 8 * p
        sw = pack(A, x, x + 4, vQ + 16 * k + 4 * p, f"s[{sQS}:{sQS+1}]", True)
        for t in pend: A(t)
        pend = sw
        if k == 2: pend = pend + [f"ds_write_b128 v{w}, {r4('v', vQ+32+4*p)} offset:{p*1024}"]
        if n >= 2 and issued < C.qi and n % 3 == 2:
            for t in dma_kv(ORDER[issued]): A(t)
            vm.add(ORDER[issued], 4); issued += 1
    for t in pend: A(t)
    pre = grp == "b" and C.NB >= 3
    if C.hop in (1, 3) and grp == "a": A(";hop")
    n = vm.wait("K0", *(("K1", "V0") if pre else ()))
    A((f"s_waitcnt vmcnt({n}) lgkmcnt(0)" if n is not None else "s_waitcnt lgkmcnt(0)") + "\ns_barrier")
    if not (grp == "b" and C.NB):
        for t in k_reads(0): A(t)
    for p in range(2): A(f"ds_read_b128 {r4('v', vQ+40+4*p)}, v{w+1} offset:{p*1024}")
    return pre, issued

def qk(i, jb, c0="0"):
    o = []
    for kt in range(2):
        for p in range(4):
            d = vS + 8 * jb + 4 * kt
            o.append(f"{MF} {r4('v', d)}, {r4('a', aK+64*(i&1)+32*JSET[jb]+16*kt+4*p)}, {r4('v', vQ+16*JSLOT[jb]+4*p)}, {c0 if p == 0 else r4('v', d)}")
    return o
def pv(jb, first, lead=False):
    k = JSLOT[jb]; pp = r4("v", vS + 8 * jb)
    o = [f"{MF} {r4('v', vO+32*k+4*m)}, {r4('a', aV+32*JSET[jb]+4*m)}, {pp}, {'0' if first else r4('v', vO+32*k+4*m)}" for m in range(8)]
    l = [f"{MF} {r4('a', aL+4*k)}, {r4('a', aONE)}, {pp}, {'0' if first else r4('a', aL+4*k)}"]
    return l + o if lead else o + l

def attention(A, C, vm, pre, issued, extra, lag):
    mf = []; ops = []; ch = Chain()
    xg = 20 if pre else C.xg
    wx = waitop(["K1", "V0"], "lgkmcnt(0)", lo=xg, dl=xg)
    bx = Op("s_barrier", "b", lo=xg + 1, dl=xg + 1, after=[wx])
    if pre: bx = None
    else: ops += [wx, bx]
    g0 = 2 if issued < 5 else C.g0 if pre else xg + 4; sp = min((72 - g0) / (4 * max(1, 7 - issued)), 6)
    while issued < (5 if lag else 7):
        ch.group(ops, dma_kv(ORDER[issued]), ORDER[issued], [int(g0 + sp * a) for a in range(4)], first=[bx] if issued >= 5 else []); issued += 1; g0 += 4 * sp
    gate = None if pre else bx
    for i in range(8):
        G = 85 * i
        for jb in range(5): mf += qk(i, jb)
        for jb in range(5): mf += pv(jb, i == 0 and jb < 3, i == 7)
        for jb in range(5):
            s0 = vS + 8 * jb; dl = G + 38 + 9 * jb
            ex = [Op(f"v_exp_f32 v{s0+k}, v{s0+k}", "e", lo=G + 8 * jb + (7 if k < 4 else 11), dl=dl - 12 + k + k // 2) for k in range(8)]
            prev = None
            for k in range(4):
                prev = Op(f"v_cvt_pk_bf16_f32 v{s0+k}, v{s0+2*k}, v{s0+2*k+1}", "v", dl=dl - 9 + 3 * k, after=[ex[2*k], ex[2*k+1]], same=[prev]); ops.append(prev)
            ops += ex
        last = gate
        if i == 7 and C.latev:
            wv = waitop(["V7"], lo=G + C.latev, dl=G + C.latev)
            last = Op("s_barrier", "b", lo=G + C.latev + 1, dl=G + C.latev + 1, after=[wv]); ops += [wv, last]
        for k, t in enumerate(v_reads(i)):
            z, m = k >> 4, (k >> 1) & 7
            if z == 0: lo, dl = G - 27 + m, G + 28 + m
            elif m < C.vz: lo, dl = G - 9 + m, G + 30 + m
            else: lo, dl = G + C.v0 + C.v1 * (m - C.vz), G + C.v0 + 2 + C.v1 * (m - C.vz)
            if i == 0 and not pre: lo, dl = (0, xg + 3 + (34 - xg) * m // 8) if z == 0 else (0, 40 + 3 * m)
            if i == 7 and C.latev: lo, dl = (G + C.latev + 1 + 2 * m, G + 33 + m) if z == 0 else (G + 40 + 2 * m, G + 42 + 2 * m)
            last = Op(t, "d", lo=lo, dl=dl, pri=dl if (z and m >= C.vz) or (i == 0 and not pre) else G - 60, same=[last]); ops.append(last)
        if i < 7:
            last = gate
            for t in k_reads(i + 1):
                last = Op(t, "D", lo=G + 9, dl=G + C.kd, pri=G - 50, same=[last]); ops.append(last)
            wv = waitop([f"K{i+2}", f"V{i+1}"] if i < 6 or not C.latev else [], "lgkmcnt(0)", lo=G + 74, dl=G + 74, after=[last])
            gate = Op("s_barrier", "b", lo=G + 75, dl=G + 75, after=[wv]); ops += [wv, gate]
            for n in range(2):
                if issued < 16:
                    ch.group(ops, dma_kv(ORDER[issued]), ORDER[issued], [G + g for g in C.dg[4*n:4*n+4]], first=[gate]); issued += 1
            if lag and i == lag - 1:
                for n in range(2):
                    ch.group(ops, dma_kv(ORDER[issued]), ORDER[issued], [G + 105 + 24 * n + 6 * a for a in range(4)], first=[gate]); issued += 1
        extra(ops, ch, i, G, gate)
        if i == 7:
            w = Op("s_waitcnt lgkmcnt(0)", "s", lo=G + 62, dl=G + 64, after=[last])
            sb = Op("s_barrier", "b", lo=G + 63, dl=G + 68, after=[w]); ops += [w, sb]
            prev = None
            for lo, t in norm_pre():
                kind = "L" if t.startswith("ds_") else "e" if t.startswith("v_rcp") else t[0]
                prev = Op(t, kind, lo=G + lo, dl=G + (min(84, lo + 2) if lo > 0 else 55), same=[prev] + ([sb] if kind == "L" else []), after=[prev] if prev and ORD[prev.kind] > ORD[kind] else [])
                ops.append(prev)
        if C.sg == 2 and i in (4, 5, 6): ops.append(Op(stamp_txt(C, i - 3), "s", lo=G + 71, dl=G + 73))
        if i == 3 and C.stamps and not C.fine: ops.append(Op(stamp_txt(C, 4), "s", lo=G + 71, dl=G + 73))
    out, over, idle = schedule(mf, ops, 6)
    print(f"attention: overflow {over} idle {idle}", file=sys.stderr)
    for o in out:
        if isinstance(o, str): continue
        if "B" in C.abl and o.txt == "s_barrier": o.txt = "s_nop 0"
        if "L" in C.abl and o.kind == "L": o.txt = "s_nop 0"
        if "d" in C.abl and o.kind in "dD": o.txt = "s_nop 0"
    emit(A, vm, fine(C, "a", out))

def safe_attention(A, name):
    t, u = vT + 4, vT + 5
    A(f"""{name}_safe:
    s_nop 7
    s_mov_b32 s{sCNT}, 0
    v_lshrrev_b32 v{t}, 5, v2
    v_bfe_u32 v{u}, v2, 4, 1
    v_lshl_add_u32 v{t}, v{u}, 1, v{t}
    v_and_b32 v{u}, 15, v2
    v_xor_b32 v{t}, v{t}, v{u}
    v_lshlrev_b32 v{t}, 4, v{t}
    s_lshl_b32 s{sT1}, s{sS}, 7
    v_xor_b32 v{t}, s{sT1}, v{t}
    v_lshl_add_u32 v{t}, v{u}, 8, v{t}
    s_lshl_b32 s{sT1}, s{sS}, 13
    s_add_u32 s{sT1}, s{sT1}, s{sT2}
    v_add_u32 v{vKR}, s{sT1}, v{t}""")
    for k in range(1, 8): A(f"v_xor_b32 v{vKR+k}, {64*(k & 3) + 8192*(k >> 2)}, v{vKR}")
    for k in range(3): A(f"v_mov_b32 v{vNEG+k}, 0x7f800000")
    for r in range(96): A(f"v_mov_b32 v{vO+r}, 0")
    for r in range(12): A(f"v_accvgpr_write_b32 a{aL+r}, 0")
    A(f"{name}_sl:\ns_barrier")
    for nm, slot in (("K0", f"s{sT2}"), ("V0", vslot(1))):
        x = dma_kv(nm, slot, f"s{sCNT}")
        A("\n".join([x[0], x[1]] + x[2:]))
    A("s_waitcnt vmcnt(0)\ns_barrier")
    for x in k_reads(0, 0, 0) + v_reads(0, vslot(1)): A(x)
    A("s_waitcnt lgkmcnt(0)")
    for jb in range(5):
        s0 = vS + 8 * jb; k = JSLOT[jb]
        for m in qk(0, jb): A(m)
        A(f"""s_nop 7
        v_max3_f32 v{t}, v{s0}, v{s0+1}, v{s0+2}
        v_max3_f32 v{t}, v{t}, v{s0+3}, v{s0+4}
        v_max3_f32 v{t}, v{t}, v{s0+5}, v{s0+6}
        v_max_f32 v{t}, v{t}, v{s0+7}
        v_mov_b32 v{u}, v{t}
        s_nop 1
        v_permlane32_swap_b32 v{t}, v{u}
        s_nop 1
        v_max_f32 v{t}, v{t}, v{u}
        v_mov_b32 v{u}, v{t}
        s_nop 1
        v_permlane16_swap_b32 v{t}, v{u}
        s_nop 1
        v_min3_f32 v{t}, -v{t}, -v{u}, v{vNEG+k}
        v_sub_f32 v{u}, v{t}, v{vNEG+k}
        v_exp_f32 v{u}, v{u}
        v_mov_b32 v{vNEG+k}, v{t}""")
        for r in range(8): A(f"v_add_f32 v{s0+r}, v{s0+r}, v{t}")
        for r in range(8): A(f"v_exp_f32 v{s0+r}, v{s0+r}")
        for r in range(32): A(f"v_mul_f32 v{vO+32*k+r}, v{vO+32*k+r}, v{u}")
        for r in range(4): A(f"v_accvgpr_read_b32 v{t}, a{aL+4*k+r}\nv_mul_f32 v{t}, v{t}, v{u}\nv_accvgpr_write_b32 a{aL+4*k+r}, v{t}")
        for r in range(4): A(f"v_cvt_pk_bf16_f32 v{s0+r}, v{s0+2*r}, v{s0+2*r+1}")
        A("s_nop 1")
        for m in pv(jb, False): A(m)
    A(f"s_nop 7\ns_add_u32 s{sCNT}, s{sCNT}, 16384\ns_cmp_lt_u32 s{sCNT}, 131072\ns_cbranch_scc1 {name}_sl\ns_barrier")
    for k in range(8): A(f"v_xor_b32 v{vKR+k}, 8192, v{vWR+k}")
    A(f"s_setpc_b64 s[{sRET}:{sRET+1}]")

EXB = 0
SAFEK = 0
def ob(k, p): return vO + 32 * k + 8 * p
def norm_pre():
    w, r, fa, l = vT, vT + 1, vT + 2, vE
    o = [(-160, t.strip()) for t in f"""s_mul_i32 s{sT0}, s{sW}, 5120
    s_add_u32 s{sT0}, s{sT0}, {EXB}
    v_add_u32 v{w}, s{sT0}, v3
    s_xor_b32 s{sT0}, s{sW}, 1
    s_mul_i32 s{sT0}, s{sT0}, 5120
    s_add_u32 s{sT0}, s{sT0}, {EXB}
    v_add_u32 v{r}, s{sT0}, v3
    s_lshl_b32 s{sT0}, s{sW}, 2
    s_add_u32 s{sT0}, s{sT0}, {EXB + 20480}
    v_mov_b32 v{fa}, s{sT0}
    v_mov_b32 v{l+3}, v{vNEG+2}""".split("\n")]
    o += [(63, f"v_accvgpr_read_b32 v{l+2}, a{aL+8}"), (63, f"v_subrev_u32 v{fa+3}, {LLO}, v{l+2}"), (66, f"ds_write_b64 v{w}, v[{l+2}:{l+3}] offset:4096")]
    o += [(70, f"ds_write_b128 v{w}, {r4('v', vO+80)} offset:0"), (72, f"v_accvgpr_read_b32 v{l}, a{aL}"), (72, f"v_subrev_u32 v{fa+1}, {LLO}, v{l}")]
    o += [(72 + 2 * m, f"ds_write_b128 v{w}, {r4('v', vO+80+4*m)} offset:{m*1024}") for m in range(1, 4)]
    o += [(79, f"v_rcp_f32 v{l}, v{l}"), (80, f"v_accvgpr_read_b32 v{l+1}, a{aL+4}"), (80, f"v_subrev_u32 v{fa+2}, {LLO}, v{l+1}"),
          (81, f"v_max3_u32 v{fa+1}, v{fa+1}, v{fa+2}, v{fa+3}"), (81, f"v_cmp_lt_u32 vcc, {LHI - LLO}, v{fa+1}"), (82, f"v_rcp_f32 v{fa+5}, v{l+1}"),
          (83, f"s_cmp_lg_u64 vcc, 0\ns_cselect_b32 s{sT0}, s{sSAFE}, 0"), (83, f"v_mov_b32 v{fa+1}, s{sT0}"), (84, f"ds_write_b32 v{fa}, v{fa+1}")]
    return o

def normalise(A, C, tag, name, store, prebar=lambda: "", checked=lambda: None):
    w, r, fa = vT, vT + 1, vT + 2
    l = vE
    A(f"{tag}_x:")
    for p in range(2):
        pack(A, ob(0, p), ob(0, p) + 4, ob(0, p), f"v[{l}:{l+1}] op_sel_hi:[1,0]", False); store(0, p)
    A(f"""v_mov_b32 v{fa}, {EXB + 20480}
    s_waitcnt {prebar()}lgkmcnt(0)
    s_barrier
    ds_read_b128 {r4('v', vS+16)}, v{fa}
    ds_read_b64 v[{vS+20}:{vS+21}], v{r} offset:4096""")
    for m in range(4): A(f"ds_read_b128 {r4('v', vS+4*m)}, v{r} offset:{m*1024}")
    for p in range(2, 4):
        pack(A, ob(0, p), ob(0, p) + 4, ob(0, p), f"v[{l}:{l+1}] op_sel_hi:[1,0]", False); store(0, p)
    if not C.cl: checked()
    lo, no, lp, np_, t = l + 2, l + 3, vS + 20, vS + 21, fa
    sc = f"v[{fa+5}:{fa+6}] op_sel_hi:[1,0]"
    A(f"""v_or3_b32 v{vS+16}, v{vS+16}, v{vS+17}, v{vS+18}
    v_or_b32 v{vS+16}, v{vS+16}, v{vS+19}
    v_cmp_ne_u32 vcc, 0, v{vS+16}
    v_min_f32 v{t}, v{no}, v{np_}
    v_sub_f32 v{no}, v{t}, v{no}
    v_sub_f32 v{np_}, v{t}, v{np_}
    v_exp_f32 v{no}, v{no}
    v_exp_f32 v{np_}, v{np_}
    s_cbranch_vccnz {tag}_fb""")
    pack(A, ob(1, 0), ob(1, 0) + 4, ob(1, 0), sc, False); store(1, 0)
    A(f"v_mul_f32 v{lo}, v{lo}, v{no}\nv_fma_f32 v{lo}, v{lp}, v{np_}, v{lo}\nv_rcp_f32 v{t}, v{lo}")
    pack(A, ob(1, 1), ob(1, 1) + 4, ob(1, 1), sc, False); store(1, 1)
    A(f"v_mul_f32 v{lo}, v{no}, v{t}\nv_mul_f32 v{lp}, v{np_}, v{t}")
    for p in range(2):
        for k in range(8 * p, 8 * p + 8, 2): A(f"v_pk_mul_f32 v[{vO+64+k}:{vO+65+k}], v[{vO+64+k}:{vO+65+k}], v[{lo}:{lo+1}] op_sel_hi:[1,0]")
        for k in range(8 * p, 8 * p + 8, 2): A(f"v_pk_fma_f32 v[{vO+64+k}:{vO+65+k}], v[{vS+k}:{vS+k+1}], v[{lp}:{lp+1}], v[{vO+64+k}:{vO+65+k}] op_sel_hi:[1,0,1]")
        pack(A, ob(2, p), ob(2, p) + 4, ob(2, p), None, False); store(2, p)
        pack(A, ob(1, 2 + p), ob(1, 2 + p) + 4, ob(1, 2 + p), sc, False); store(1, 2 + p)
    if C.cl: checked()
    redo = "\ns_nop 1\n".join(t for _, t in norm_pre())
    return f"{tag}_fb:\ns_waitcnt vmcnt(0) lgkmcnt(0)\ns_mov_b32 s{sSAFE}, 0\ns_mov_b32 s{sT2}, {SAFEK}\ns_call_b64 s[{sRET}:{sRET+1}], {name}_safe\n{redo}\ns_nop 1\ns_branch {tag}_x"

def dump_setup(A):
    A(f"""v_and_b32 v{vXR}, 15, v2
    v_lshrrev_b32 v{vXR+1}, 4, v2
    v_lshlrev_b32 v{vXR}, 13, v{vXR}
    v_lshl_add_u32 v{vXR}, v{vXR+1}, 3, v{vXR}
    s_lshl_b32 s{sT0}, s{sS}, 7
    v_add_u32 v{vXR}, s{sT0}, v{vXR}
    v_xor_b32 v{vXR+1}, 128, v{vXR}
    s_mul_i32 s{sU+2}, s{sB}, {80*8192}
    s_lshl_b32 s{sT1}, s{sHKV}, 9
    s_add_u32 s{sU+2}, s{sU+2}, s{sT1}
    s_lshl_b32 s{sT1}, s{sH}, 8
    s_add_u32 s{sU+2}, s{sU+2}, s{sT1}
    s_add_u32 s{sU+2}, s{sU+2}, {1280*8192}
    s_lshl_b32 s{sT0}, s{sS}, 1
    s_add_u32 s{sT0}, s{sT0}, s{sH}
    s_lshl_b32 s{sT0}, s{sT0}, 17
    s_xor_b32 s{sT1}, s{sT0}, {1 << 17}
    s_add_u32 s{sU}, s{sU+2}, s{sT0}
    s_add_u32 s{sU+1}, s{sU+2}, s{sT1}
    s_add_u32 s{sU+2}, s{sU+2}, {4 << 17}""")

def flush(A, C, name):
    if not C.stamps: return
    A(f"s_waitcnt lgkmcnt(0)\ns_lshl_b32 s{sT0}, s2, 6\ns_add_u32 s{sT0}, s{sT0}, {STAMP}\ns_cmp_lg_u32 s{sW}, 0\ns_cbranch_scc1 {name}_end\ns_mov_b64 exec, 1")
    for i in range(C.stamps): A(f"v_mov_b32 v4, s{sST+2*i}\nbuffer_store_dword v4, v1, s[{SWS}:{SWS+3}], s{sT0} offen offset:{4*i}")

MID = dict(vz=4, v0=20, v1=10, dg=(78, 82, 86, 90, 104, 116, 128, 140))
MID2 = dict(vz=4, v0=14, v1=8, dg=(78, 82, 86, 90, 128, 136, 144, 152))
def path(C, name, grp, stubs):
    import copy
    C = copy.copy(C)
    if grp in C.l2: C.of = ""
    if grp in C.mid:
        for k, val in (MID2 if "2" in C.mid else MID).items(): setattr(C, k, val)
    A = Asm(); vm = VM(); tag = f"{name}_{grp}"
    T = None
    if C.tail == "h":
        import tail2
        T = tail2.Tail(C, name, grp, A, vm, stubs)
    issued = 0
    if grp == "b":
        code_touch(A, name)
        def mid():
            kv_setup(A)
            if T: T.start()
        def first():
            srd(A, SWS, 18, None, 128 << 20)
            if T: T.clear()
        if T: T.clear_prepare()
        touches(A, C, vm, first, mid)
        wo_touches(A, C, vm)
        w_srds(A)
        A(";hot")
        w_addresses(A)
        late_addresses(A, C)
        if T: A("\n".join(T.touch_setup()))
        if C.hop: A(";hop")
        for n in range(C.NB):
            for t in dma_kv(ORDER[n]): A(t)
            vm.add(ORDER[n], 4)
            if n == min(C.NB - 1, C.rn) and T: T.ready()
        issued = C.NB
    else:
        w_addresses(A)
        if C.sg == 4: stamp(A, C, 5)
        A("s_waitcnt lgkmcnt(0)")
        if C.sg == 4: stamp(A, C, 6)
        w_srds(A)
    first = [(dma_x(0), ("x", 0), 3), (dma_wq(0), ("wq", 0), 4), (dma_wq(1), ("wq", 1), 4), (dma_x(1), ("x", 1), 3), (dma_wq(2), ("wq", 2), 4)]
    for n, (x, tg, cnt) in enumerate(first + [([], None, 0)]):
        if n == C.f0 and grp == "a":
            if C.sg == 4: stamp(A, C, 7)
            kv_setup(A)
            srd(A, SWS, 18, None, 128 << 20)
            A(";hot")
            late_addresses(A, C)
            if T: A("\n".join(T.touch_setup()))
            if C.hop: A(";hop")
        for t in x: A(t)
        vm.add(tg, cnt)
    if C.sg == 4: stamp(A, C, 8)
    A(f"s_waitcnt vmcnt({vm.wait(('x', 0), ('wq', 0))})\ns_barrier")
    stamp(A, C, 1)
    for _, t in w_reads(0): A(t)
    issued = qproj(A, C, vm, issued, grp)
    stamp(A, C, 2)
    pre, issued = q_epilogue(A, C, vm, issued, grp)
    if T: T.before_attention()
    stamp(A, C, 3)
    attention(A, C, vm, pre, issued, T.hook if T else lambda *a: None, C.lagb if grp == "b" else C.laga)
    stamp(A, C, 5)
    if T: T.run()
    else:
        dump_setup(A)
        def store(k, p):
            for e in range(2): A(f"buffer_store_dwordx2 v[{ob(k, p)+2*e}:{ob(k, p)+2*e+1}], v{vXR + (p >> 1)}, s[{SWS}:{SWS+3}], s{sU+k} offen offset:{(p & 1)*64 + e*32}")
        stubs.append(normalise(A, C, tag, name, store))
        stamp(A, C, 6)
        flush(A, C, name)
        A("s_endpgm")
    return A

def isins(l):
    t = l.strip(); return t and not t.endswith(":") and not t.startswith((";", "."))
def sizes(lines):
    import subprocess, re
    src = '.amdgcn_target "amdgcn-amd-amdhsa--gfx950"\n.text\nT:\n' + "\n".join(re.sub(r"(s_c?branch\S*) \S+", r"\1 T", l) for l in lines if isins(l)) + "\ns_endpgm\n"
    open("sz.s", "w").write(src)
    subprocess.run(["clang", "-x", "assembler", "-target", "amdgcn-amd-amdhsa", "-mcpu=gfx950", "-c", "sz.s", "-o", "sz.o"], check=True)
    d = subprocess.run(["llvm-objdump", "-d", "--mcpu=gfx950", "sz.o"], capture_output=True, text=True).stdout
    ad = [int(m.group(1), 16) for m in re.finditer(r"// ([0-9A-F]+):", d)]
    return [b - a for a, b in zip(ad, ad[1:])]
HOPLEN = 44
def page_hops(lines, tag):
    sz = iter(sizes(lines)); ad = 0; page = 1; out = []; marks = []
    for i, l in enumerate(lines):
        if l.strip() == ";hop": marks.append([len(out), []]); out.append(l); ad += HOPLEN; continue
        out.append(l)
        if not isins(l): continue
        ad += next(sz)
        if ad >= page * 4096 and ("v_mfma" in l or ad >= page * 4096 + 40):
            if marks: marks[-1][1].append(len(out)); out.append(None); ad += 4
            page += 1
    for k, (pos, st) in enumerate(marks):
        lab = lambda n: f"{tag}_h{k}_{n}" if n < len(st) else f"{tag}_h{k}_r"
        for n, p in enumerate(st): out[p] = f"{lab(n)}:\n    s_cbranch_execz {lab(n + 4)}"
        out[pos] = "    s_mov_b64 exec, 0\n" + "".join(f"    s_cmp_eq_u32 s{sW}, {w}\n    s_cbranch_scc1 {lab(w)}\n" for w in range(3)) + f"    s_nop 0\n    s_nop 0\n    s_branch {lab(3)}\n{lab(99)}:\n    s_mov_b64 exec, -1"
    return out

def kernel(C, name):
    hazard.IGNORE_STAMPS = bool(C.fine)
    P = Asm(); prologue(P, C, name)
    stubs = []
    pa = path(C, name, "a", stubs); pb = path(C, name, "b", stubs)
    for p_ in (pa, pb):
        p_.L, paid = hazard.autowait(p_.L)
        p_.L, forced = hazard.fix(p_.L)
        print("forced pads:", forced, "paid waits:", paid, file=sys.stderr)
    R = Asm(); safe_attention(R, name)
    bad = hazard.check(P.L + pa.L, "a") + hazard.check(P.L + pb.L, "b") + hazard.check(R.L, "safe")
    S = Asm()
    for t in stubs: S(t)
    bad += hazard.check(S.L, "stubs")
    assert not bad, f"{bad} hazards"
    mid = Asm(); mid(f"s_bitcmp1_b32 s{sJ}, 0\ns_cbranch_scc1 {name}_pb0")
    txt = P.text() + mid.text(); hot = ""
    for p_, gname in ((pa, "a"), (pb, "b")):
        n = next(i for i, l in enumerate(p_.L) if l.strip() == ";hot")
        txt += f"{name}_p{gname}0:\n" + "\n".join(p_.L[:n]) + f"\n    s_branch {name}_p{gname}\n"
        hot += f".p2align 12\n{name}_p{gname}:\n" + "\n".join(page_hops(p_.L[n + 1:], f"{name}_{gname}")) + "\n"
    return txt + S.text() + hot + f"{name}_hot:\n" + R.text() + f"{name}_end:\n    s_endpgm\n"

def main():
    from gen_naive import naive_parts
    cfgs = json.loads(sys.argv[1]); names = []
    for c in cfgs:
        n = "j" + "".join(f"_{kk}{vv}" for kk, vv in c.items()); names.append(n)
        C = Cfg(**c)
        l, k = naive_parts()
        if C.tail == "dump": txt = build([("fa_kernel", 256, 256, 163840), l[2]], [("fa_kernel", kernel(C, "fa"), 256, 256), k[2]])
        elif C.stamps == 11:
            from emu3 import after
            txt = build([("fa_kernel", 256, 256, 163840), ("af_kernel", 256, 64, 0)], [("fa_kernel", kernel(C, "fa"), 256, 256), ("af_kernel", after("af", 11), 32, 0)])
        else: txt = build([(KN + "_kernel", 256, 256, 163840)], [(KN + "_kernel", kernel(C, KN), 256, 256)])
        open(n + ".s", "w").write(txt)
    open("list.txt", "w").write(" ".join(x + ".s" for x in names))

if __name__ == "__main__":
    import gen2
    gen2.main()
```

```python
import sys
from gen2 import *
import gen2
BLK, PART, FL, BAT = 66816, 41088, 16 * 66816, 1310720
W0, W1, XB = 98304, 0, 65536
vOR0, vOR1, vXO, vXDM = vWR, vKR, vXR, vXD
vRDY, vPOL, vPA, vFA = 29, 30, 10, 61
sSRC, sOP, sOS, sF1, sDX, sOK, sRB, sW8K = 8, 12, 66, 15, 16, 17, 18, 19
sPS = 69
sSEL = 3
sTA = 73
aF = 128
PRE = 6
vRW, vRR, vPSA, vF = vT, vT + 1, vT + 4, vVR
sF2 = sRET
vSEL = 48

class Tail:
    def __init__(self, C, name, grp, A, vm, stubs):
        self.C, self.name, self.grp, self.A, self.vm, self.stubs = C, name, grp, A, vm, stubs
        self.tag = f"{name}_{grp}"
        self.NT = 10 if grp == "a" else 8
        self.X = [0, 2, 1, 3] if grp == "a" else [0, 1, 3, 2]
        self.pre = 3 if grp == "a" else 4
        self.nl = 0
        self.early = C.ea if grp == "a" else C.eb
        gen2.EXB = 0 if grp == "a" else 65536
        gen2.SAFEK = 0 if grp == "a" else 81920

    def clear_prepare(self):
        self.A(f"""s_cmp_eq_u32 s{sHKV}, 1
        s_cselect_b32 s{sCNT}, 0, {OOB}
        v_lshrrev_b32 v{vQ}, 2, v0
        v_add_u32 v{vQ}, 12, v{vQ}
        v_and_b32 v{vQ+1}, 3, v0
        v_lshl_add_u32 v{vQ}, v{vQ}, 3, v{vQ+1}
        v_lshlrev_b32 v{vQ+1}, 3, v0
        v_min_u32 v{vQ}, v{vQ}, v{vQ+1}
        v_lshrrev_b32 v{vQ+5}, 5, v0
        v_lshlrev_b32 v{vQ+5}, 27, v{vQ+5}
        v_lshl_add_u32 v{vQ+5}, v{vQ}, 8, v{vQ+5}
        v_or_b32 v{vQ+5}, s{sCNT}, v{vQ+5}
        v_mov_b32 v{vQ}, 0
        v_mov_b32 v{vQ+1}, 0
        v_mov_b32 v{vQ+2}, 0
        v_mov_b32 v{vQ+3}, 0
        s_mul_i32 s{sT2}, s{sB}, {BAT}
        s_add_u32 s{sT2}, s{sT2}, {FL}""")
    def clear(self):
        for k in range(1 + self.C.dual):
            self.A(f"buffer_store_dwordx4 {r4('v', vQ)}, v{vQ+5}, s[{SWS}:{SWS+3}], s{sT2} offen offset:{1024*k} sc1")
            self.vm.add("clr0")
    def start(self):
        self.A(f"""v_mov_b32 v{vT+1}, {OOB}
        s_mul_i32 s{sT1}, s{sB}, {BAT}
        v_lshlrev_b32 v{vQ+4}, 20, v0
        v_or_b32 v{vQ+4}, s{sCNT}, v{vQ+4}""")
        if self.C.tlb:
            self.A(f"""v_lshrrev_b32 v{vT}, 1, v0
            v_mul_u32_u24 v{vT}, {BLK}, v{vT}
            v_and_b32 v{vT+2}, 1, v0
            v_mul_u32_u24 v{vT+2}, {BLK - 128 - 40960}, v{vT+2}
            v_cmp_gt_u32 vcc, 33, v0
            v_add_u32 v{vT}, v{vT}, v{vT+2}
            v_add_u32 v{vT}, 40960, v{vT}
            v_cndmask_b32 v{vT}, v{vT+1}, v{vT}, vcc
            buffer_load_dword v255, v{vT}, s[{SWS}:{SWS+3}], s{sT1} offen""")
            self.vm.add("clr")
        if self.C.tlb > 1:
            self.A(f"s_mul_i32 s{sT0}, s{sHG}, {1024*1152}")
            srd(self.A, SWO, 12, f"s{sT0}", 1024 * 1152)
            self.A(f"s_mul_i32 s{sT0}, s{sB}, 92160")
            srd(self.A, SOUT, 14, f"s{sT0}", 92160)
            self.A(f"""v_lshlrev_b32 v{vT}, {self.C.tsh}, v0
            buffer_load_dword v255, v{vT}, s[{SWO}:{SWO+3}], 0 offen
            buffer_load_dword v255, v{vT}, s[{SOUT}:{SOUT+3}], 0 offen""")
            self.vm.add("clr", 2)
    def ready(self):
        A = self.A
        srd(A, SDBG, 16, None, 256)
        A(f"""s_lshl_b32 s{sT0}, s{sB}, 4
        v_mov_b32 v{vQ+5}, 1
        s_waitcnt vmcnt({self.vm.wait("clr0")})
        buffer_store_dword v{vQ+5}, v{vQ+4}, s[{SDBG}:{SDBG+3}], s{sT0} offen sc1""")
        self.vm.add("clr")

    def setup_ops(self):
        t = vT + 2
        a = self.grp == "a"
        o = f"""v_lshrrev_b32 v{t}, 4, v2
        v_mul_u32_u24 v{t}, {1152 - 256}, v{t}
        v_add_u32 v{vWD}, v{vVD}, v{t}
        v_add_u32 v{vWD+1}, v{vVD+1}, v{t}
        v_add_u32 v{vWD+2}, {2*(4608-1024)}, v{vWD}
        v_add_u32 v{vWD+3}, {3*(4608-1024)}, v{vWD+1}
        v_add_u32 v{vWD+1}, {4608-1024}, v{vWD+1}
        s_lshl_b32 s{sW8K}, s{sW}, 13
        s_lshr_b32 s{sT2}, s{sJ}, 1
        s_mul_i32 s{sT2}, s{sT2}, {384 if a else 256}
        s_add_u32 s{sPS+6}, s{sT2}, {512 if a else 0}
        s_mul_i32 s{sT2}, s{sW}, {64*1152}
        s_add_u32 s{sT2}, s{sT2}, s{sPS+6}"""
        for k, x in enumerate(self.X):
            o += f"\ns_xor_b32 s{sSRC+k}, s{sJ}, {x}\ns_mul_i32 s{sSRC+k}, s{sSRC+k}, {256*1152}\ns_add_u32 s{sSRC+k}, s{sSRC+k}, s{sT2}"
        o += f"""
        s_mul_i32 s{sT2}, s{sB}, {BAT}
        s_mul_i32 s{sOP}, s{sW}, 10240
        s_add_u32 s{sT2}, s{sT2}, s{sOP}
        s_mul_i32 s{sOP}, s{sHKV}, {BLK}
        s_add_u32 s{sOP}, s{sOP}, s{sT2}
        s_add_u32 s{sOP+1}, s{sOP}, 4096
        s_add_u32 s{sOP+2}, s{sOP}, 8192"""
        for k in range(1, 4):
            o += f"\ns_xor_b32 s{sOS+k-1}, s{sHKV}, {self.X[k]}\ns_mul_i32 s{sOS+k-1}, s{sOS+k-1}, {BLK}\ns_add_u32 s{sOS+k-1}, s{sOS+k-1}, s{sT2}"
        o += f"""
        s_lshl_b32 s{sF1}, s{sHG}, 2
        s_add_u32 s{sF1}, s{sF1}, s{sW}
        s_lshl_b32 s{sF1}, s{sF1}, 11
        s_mul_i32 s{sT2}, s{sB}, {BAT}
        s_add_u32 s{sF1}, s{sF1}, s{sT2}
        s_add_u32 s{sF1}, s{sF1}, {FL}
        v_and_b32 v{vPA}, 3, v2
        v_xor_b32 v{vPA}, s{sJ}, v{vPA}
        v_lshlrev_b32 v{vPA}, 2, v{vPA}
        s_lshl_b32 s{sT2}, s{sS}, 7
        s_lshl_b32 s{sDX}, s{sW}, 6
        s_xor_b32 s{sT2}, s{sT2}, s{sDX}
        v_xor_b32 v{vOR0}, s{sT2}, v{vVR}
        s_lshl_b32 s{sT2}, s{sH}, 14
        s_add_u32 s{sT2}, s{sT2}, {W0 - vslot(0)}
        v_add_u32 v{vOR0}, s{sT2}, v{vOR0}"""
        for k in range(1, 8): o += f"\nv_xor_b32 v{vOR0+k}, {32*k}, v{vOR0}"
        if a:
            o += f"""
            s_lshr_b32 s{sDX}, s{sJ}, 1
            s_mul_i32 s{sDX}, s{sDX}, -320
            s_add_u32 s{sDX}, s{sDX}, 256
            v_lshrrev_b32 v{t}, 2, v2
            v_mul_u32_u24 v{t}, 1152, v{t}
            v_bfe_u32 v{t+1}, v2, 4, 1
            v_lshlrev_b32 v{t+1}, 1, v{t+1}
            v_and_b32 v{t+2}, 3, v2
            v_xor_b32 v{t+2}, v{t+2}, v{t+1}
            v_lshl_add_u32 v{vXDM}, v{t+2}, 4, v{t}
            v_add_u32 v{vXDM+1}, {16*1152-1024}, v{vXDM}
            v_lshrrev_b32 v{t}, 2, v2
            v_lshlrev_b32 v{t}, 6, v{t}
            v_lshl_add_u32 v{t}, v{t+1}, 4, v{t}
            v_and_b32 v{t+2}, 3, v2
            v_lshl_add_u32 v{t}, v{t+2}, 3, v{t}
            s_lshl_b32 s{sT2}, s{sW}, 11
            s_add_u32 s{sT2}, s{sT2}, {XB}
            v_add_u32 v{vXO}, s{sT2}, v{t}
            v_xor_b32 v{vXO+1}, 32, v{vXO}
            v_xor_b32 v{vXO+2}, 2048, v{vXO}
            v_xor_b32 v{vXO+3}, {2048+32}, v{vXO}"""
        return [x.strip() for x in o.split("\n") if x.strip()]

    def touch_setup(self):
        t = vT + 2
        o = f"""s_lshl_b32 s{sRB}, s{sB}, 4
        v_lshrrev_b32 v{t}, 3, v0
        v_mul_u32_u24 v{t}, 1152, v{t}
        v_and_b32 v{t+1}, 7, v0
        v_lshl_add_u32 v{t}, v{t+1}, 7, v{t}
        v_lshrrev_b32 v{vNEG}, 2, v{t+1}
        v_lshl_add_u32 v{vNEG}, v{vNEG}, 30, v{t}
        v_add_u32 v{t+1}, 3, v{t+1}
        v_lshrrev_b32 v{t+1}, 3, v{t+1}
        v_lshl_add_u32 v{vNEG+1}, v{t+1}, 30, v{t}
        s_bfe_u32 s74, s{sB}, 0x10002
        s_lshl_b32 s74, s74, 4
        s_and_b32 s73, s{sB}, 3
        s_lshl_b32 s73, s73, 1
        s_add_u32 s74, s74, s73
        s_lshr_b32 s73, s{sJ}, 1
        s_add_u32 s74, s74, s73
        s_mul_i32 s{sTA}, s74, {32*1152}
        s_add_u32 s{sTA+1}, s{sTA}, {256*1152}"""
        return [x.strip() for x in o.split("\n")]
    def touch_ops(self, ops, lo, hi, shift):
        for key in ("aa", "ab", "ba", "bb"):
            val = getattr(self.C, "t" + key)
            if val and val[0] == self.grp and lo <= int(val[1:]) < hi:
                g = int(val[1:]) - shift
                o = Op(f"buffer_load_dword v255, v{vNEG + (key[1] == 'a')}, s[{SWO}:{SWO+3}], s{sTA + (key[0] == 'b')} offen offset:{512 if key[1] == 'a' else 0}", "L", lo=g, dl=g + 4)
                o.tag = "touch"; ops.append(o)
    def before_attention(self): pass

    def loc(self, c):
        k, u = c >> 1, c & 1
        if k & 1: return (u ^ 1) * 32768, W1, u * 8192
        return u * 32768, W0, 16384 + u * 8192
    def dma(self, c):
        k, u = c >> 1, c & 1; off, win, xo = self.loc(c); gs = []
        for g in range(2):
            gs.append([f"s_add_u32 m0, s{sW8K}, {win + off + g*4096}", f"s_add_u32 s{sT1}, s{sSRC+k}, {(u*32 + 16*g)*1152}"]
                      + [f"buffer_load_dwordx4 v{vWD+a}, s[{SWO}:{SWO+3}], s{sT1} offen offset:{a*1024} lds" for a in range(4)])
        if self.grp == "a":
            gs.append([f"s_lshl_b32 m0, s{sW}, 11\ns_add_u32 m0, m0, {XB + xo}", f"s_add_u32 s{sT1}, s{sSRC+k}, {u*32*1152}\ns_add_u32 s{sT1}, s{sT1}, s{sDX}"]
                      + [f"buffer_load_dwordx4 v{vXDM+a}, s[{SWO}:{SWO+3}], s{sT1} offen offset:{a*1024} lds" for a in range(2)])
        return gs
    def oloads(self, k, sreg):
        return [f"buffer_load_dwordx4 {r4('a', 40*(k-1)+4*n)}, v{(3, vKD, vKD+1)[n >> 2]}, s[{SWS}:{SWS+3}], s{sreg} offen offset:{(n & 3)*1024} {self.C.lf}"
                for n in (0, 4, 8, 2, 6, 1, 5, 9, 3, 7)]
    def poll_txt(self, slow=False): return f"buffer_load_dword v{vPOL}, v{vPA}, s[{SWS}:{SWS+3}], s{sF1} offen offset:{1024 if self.C.dual and not slow else 0} sc1"
    def flag_txt(self):
        st = f"buffer_store_dword v{vRDY}, v{vPA}, s[{SWS}:{SWS+3}], s{sF1} offen"
        return "s_mov_b64 exec, 1\n" + (f"{st} offset:1024\n" if self.C.dual else "") + f"{st} sc1\ns_mov_b64 exec, -1"
    def spin(self, lab, mask):
        one = lambda slow: f"""{self.poll_txt(slow)}
        s_add_u32 s{sCNT}, s{sCNT}, 1
        s_waitcnt vmcnt(0)
        v_cmp_ne_u32 vcc, 1, v{vPOL}
        s_nop 0
        s_and_b32 s{sT2}, vcc_lo, {mask}
        s_cbranch_scc0 {lab}_q"""
        fast = f"""{one(False)}
        s_and_b32 s{sT2}, s{sCNT}, 15
        s_cbranch_scc1 {lab}_p
        """ if self.C.dual else ""
        return f"""s_mov_b32 s{sCNT}, 0
        {lab}_p:
        {fast}{one(True)}
        s_cmp_lt_u32 s{sCNT}, {SPIN * (4 if self.C.dual else 1)}
        s_cbranch_scc1 {lab}_p
        {lab}_q:"""
    def acquire(self, ops, mask, gp, gc, first=()):
        self.nl += 1; lab = f"{self.tag}_aq{self.nl}"
        p = Op(self.poll_txt(), "L", lo=gp, dl=gp + 2, after=list(first)); p.tag = lab
        w = waitop([lab], lo=gc - 2, dl=gc - 2, after=[p])
        c = Op(f"v_cmp_ne_u32 vcc, 1, v{vPOL}", "v", lo=gc - 2, dl=gc - 2, same=[w])
        b = Op(f"s_and_b32 s{sT2}, vcc_lo, {mask}\ns_cbranch_scc1 {lab}\n{lab}_r:", "b", lo=gc, dl=gc, after=[c])
        ops += [p, w, c, b]
        self.stubs.append(f"{lab}:\n{self.spin(lab, mask)}\ns_branch {lab}_r")
        return b

    def hook(self, ops, ch, i, G, gate):
        C = self.C
        if i == 0:
            prev = None; su = self.setup_ops()
            for n, t in enumerate(su):
                prev = Op(t, "s" if t[0] == "s" else "v", lo=30, dl=(60 + 3 * n if n < 17 and self.early else 400 - 3 * (len(su) - n)), pri=10**5, after=[prev]); ops.append(prev)
                if n == 16: self.su16 = prev
        if i == 0: self.touch_ops(ops, 0, 680, 0)
        if i == 4:
            o = Op(f"buffer_load_dword v{vRDY}, v1, s[{SDBG}:{SDBG+3}], s{sRB} offen sc1", "L", lo=G - 30, dl=G - 14); o.tag = "rdy"; ops.append(o)
            lab = f"{self.tag}_rdy"
            w = waitop(["rdy"], lo=G + 161, dl=G + 163, after=[o])
            c = Op(f"v_cmp_ne_u32 vcc, 1, v{vRDY}", "v", lo=G + 162, dl=G + 170, after=[w])
            b = Op(f"s_cbranch_vccnz {lab}\n{lab}_r:", "b", lo=G + 164, dl=G + 178, after=[c], dist=2)
            ops += [w, c, b]; self.rdyok = b
            self.stubs.append(f"""{lab}:
            s_mov_b32 s{sCNT}, 0
            {lab}_p:
            buffer_load_dword v{vRDY}, v1, s[{SDBG}:{SDBG+3}], s{sRB} offen sc1
            s_add_u32 s{sCNT}, s{sCNT}, 1
            s_waitcnt vmcnt(0)
            v_cmp_ne_u32 vcc, 1, v{vRDY}
            s_cmp_ge_u32 s{sCNT}, {SPIN}
            s_cbranch_scc1 {lab}_r
            s_cbranch_vccnz {lab}_p
            s_branch {lab}_r""")
        if str(i) in self.early:
            n = self.early.index(str(i))
            ch.group(ops, self.dma(n >> 1)[n & 1], ("wo", n >> 1), [G + 144 + 4 * k for k in range(4)], first=[self.su16])
        if i == 5: self.gate5 = gate
        if i == 6:
            a = self.grp == "a"
            d0, d1 = (C.da if a else C.db).split("-"); pos = float(d0); rate = float(d1)
            plan = [(0, 0, None), (0, 1, None), (1, 0, None), (1, 1, None)][len(self.early):]
            if a: plan += [(0, 2, self.gate5), (1, 2, self.gate5)] + ([(2, 0, gate), (2, 1, gate)] if C.apre > 2 else [])
            else: plan += [(c, p, gate) for c in range(2, C.bpre) for p in range(2)]
            quiet = [85 * s_ + g for s_ in (4, 5, 6) for g in C.dg]
            for c, part, dep in plan:
                x = self.dma(c)[part]; gaps = []
                if dep: pos = max(pos, dep.lo + 1)
                if dep is gate: rate = min(rate, 4.6) if a or C.bpre == 4 else C.r7
                for _ in x[2:]:
                    near = [q for q in quiet if pos - 1 <= q <= pos + 1]
                    gaps.append(near[0] if near else int(pos)); pos = max(pos + rate, gaps[-1] + 2)
                ch.group(ops, x, ("wo", c), gaps, first=[dep])
            assert pos - rate < 678, pos
            prev = None
            for k in range(8):
                prev = Op(f"v_xor_b32 v{vOR1+k}, 8192, v{vOR0+k}", "v", lo=G + 76, dl=G + 165, after=[gate]); ops.append(prev)
        if i == 7 and self.grp == "b":
            p = Op(self.poll_txt(), "L", lo=G + C.p1, dl=G + C.p1, after=[self.rdyok]); p.tag = "pol1"; ops.append(p)

    def run(self):
        A, C, vm, NT, tag = self.A, self.C, self.vm, self.NT, self.tag
        a = self.grp == "a"
        def store(k, p):
            if a and C.sr or self.grp in C.nost and (k, p) != (0, 0): return
            A(f"buffer_store_dwordx4 {r4('v', ob(k, p))}, v3, s[{SWS}:{SWS+3}], s{sOP+k} offen offset:{p*1024} {C.of}"); vm.add("ost")
        def prebar():
            n = vm.wait(("wo", 0), ("wo", 1))
            return f"vmcnt({n}) " if n is not None else ""
        def checked():
            for n in range(PRE):
                for uu in range(2): A(self.rd((0, 0, 0, n), n, uu))
        self.stubs.append(normalise(A, C, tag, self.name, store, prebar, checked))
        A(f"v_add_u32 v{vKD}, 4096, v3\nv_add_u32 v{vKD+1}, 8192, v3\ns_mov_b32 s{sSAFE}, s{sOP}")
        stamp(A, C, 6)
        kept = lambda k, t: (k == 0) if t >= 8 else (t < 4 if k < 2 else t < 2)
        pool = [vS + 4*i for i in range(10)] + [vO + 80 + 4*i for i in range(4)] + [vO + 8*i + 4 for i in range(4)]
        areg = {}
        for t in range(NT):
            for k in range(3):
                if kept(k, t): areg[(k, t)] = vQ + 40 + 4*(t-8) if t >= 8 else vQ + 16*k + 4*t
                else: areg[(k, t)] = pool.pop(0)
        acc = lambda k, t: r4("v", areg[(k, t)])
        def bfr(s_, k, p): return r4("v", ob(k, p)) if s_ == 0 else r4("a", 40*(s_-1) + 4*(4*k + p))
        frags = []
        NO = C.na if a else C.no
        swap = a and C.sw
        if swap: NO = 7
        for c in ([0, 1, 2, 3, 4, 6, 5] if swap else range(NO)):
            for z in range(2):
                for t in range(NT): frags.append((c >> 1, c & 1, z, t))
        us = range(NO - 6, 2)
        frags += [(3, u, 0, t) for t in (3, 2) for u in us]
        frags += [(3, u, z, t) for t in reversed(range(4, NT)) for u in us for z in range(2)]
        frags += [(3, u, 1, t) for t in (3, 2) for u in us]
        frags += [(3, u, z, t) for t in (1, 0) for u in us for z in range(2)]
        NR = 32
        mf = []; first = []; lastuse = []; done = {}
        for n, (s_, u, z, t) in enumerate(frags):
            first.append(len(mf))
            for k in range(3 - z):
                d = acc(k, t)
                mf.append(f"{MF} {d}, {r4('a', aF + 4*(n % NR))}, {bfr(s_, k, 2*z + u)}, {'0' if n < NT else d}")
                done[(k, t)] = len(mf) - 1
            lastuse.append(len(mf) - 1)
        E = len(mf); CH = 5 * NT
        ops = []; ch = Chain(); bars = {}; vis = {}
        LEAD = C.lead
        latevis = {int(x) for x in (C.va if a else C.vb)}
        b1 = Op("s_barrier", "b", lo=6, dl=8)
        if a: ops.append(b1)
        for c in (1, 2, 3, 4, 7 if swap else 6):
            g = CH * c - 1
            need = [c + 1] if c + 1 < 6 and c + 1 not in latevis else []
            if swap and c == 4: need = []
            w = waitop([("wo", x) for x in need], lo=g - 1, dl=g - 1)
            bars[c] = Op("s_barrier", "b", lo=g, dl=g, after=[w]); ops += [w, bars[c]]
            for x in need: vis[x] = bars[c]
        if swap: bars[6] = bars[7]
        for c in sorted(({5} if swap else {6, NO}) | latevis):
            g = CH * c - LEAD - 1; need = [5, 6, 7] if c == 5 and swap else [6, 7] if NO == 6 and c == 6 else [c]
            w = waitop([("wo", x) for x in need], lo=g - 1, dl=g - 1)
            o = Op("s_barrier", "b", lo=g, dl=g, after=[w]); ops += [w, o]
            for x in need: vis[x] = o
        last = None; lastrd = {}
        for n in range(PRE, len(frags)):
            s_, u, z, t = frags[n]
            dep = []
            if t < 8 and s_ and lastrd[(z, t)][1] != s_:
                r = (vOR1 if z else vOR0) + t
                tg = Op(f"v_add_u32 v{r}, {(W1 - W0) & 0xffffffff if s_ & 1 else W0 - W1}, v{r}", "v", dl=first[n] - LEAD - 1, after=[lastrd[(z, t)][0]]); ops.append(tg); dep = [tg]
            ld = LEAD + (C.rush if s_ == 3 and first[n] >= NO * CH else 0) * (first[n] - NO * CH) // 10
            for uu in range(2):
                last = Op(self.rd(frags[n], n % NR, uu), "d", lo=max(lastuse[n - NR] if n >= NR else 0, first[n] - ld), dl=first[n] - 7, pri=first[n] - 30, same=[last, vis.get(2*s_ + u)], after=dep); ops.append(last)
            lastrd[(z, t)] = (last, s_)
        fg = C.fga if a else C.fg
        if a and C.sr:
            for n in range(10):
                g = int(C.s0 + C.sr * n)
                o = Op(f"buffer_store_dwordx4 {r4('v', ob(n >> 2, n & 3))}, v{(3, vKD, vKD+1)[n >> 2]}, s[{SWS}:{SWS+3}], s{sSAFE} offen offset:{(n & 3)*1024} {C.of}", "L", lo=g, dl=g + 1); o.tag = "ost"; ops.append(o)
            assert g + 2 < fg
        if C.hop > 1: ops.append(Op(";hop", "s", lo=fg - 1, dl=fg - 1))
        wst = waitop(["ost"], lo=fg, dl=fg)
        fl = Op(self.flag_txt(), "L", lo=fg + 1, dl=fg + 1, after=[wst]); fl.tag = "flag"; fl.cnt = 1 + C.dual; ops += [wst, fl]
        if C.sg == 3 and not a: ops += [Op(stamp_txt(C, 1), "s", lo=fg - 2, dl=fg - 2), Op(stamp_txt(C, 2), "s", lo=fg + 2, dl=fg + 2)]
        pos = [1.0]
        def place(n, rate):
            g = []
            for _ in range(n): g.append(int(pos[0])); pos[0] += rate
            return g
        def chunk(c, after, lo, rate):
            pos[0] = max(pos[0], lo)
            for x in self.dma(c): ch.group(ops, x, ("wo", c), place(len(x) - 2, rate), first=after)
        def loads(k, after, lo, rate, sreg=None, part=slice(0, 10), waits=True):
            pos[0] = max(pos[0], lo); prev = after
            x = list(enumerate(self.oloads(k, sOS + k - 1 if sreg is None else sreg)))[part]
            for (n, t), g in zip(x, place(len(x), rate)):
                prev = Op(t, "L", lo=g, dl=g, after=[prev]); prev.tag = ("o", k, n); ops.append(prev)
                nd = {2: 0, 4: 3*NT, 7: CH, 9: CH + 3*NT}.get(n)
                if k == 3: nd = {9: 0}.get(n) if NO == 6 else {2: 0, 4: 3*NT, 9: CH}.get(n)
                if waits and nd is not None:
                    assert g < 2*k*CH + nd - 3, (k, n, g)
                    ops.append(waitop([prev.tag], lo=2*k*CH + nd - 3, dl=2*k*CH + nd - 3, after=[prev]))
            return prev
        R = C.lr
        if a:
            if C.apre > 2:
                x = self.dma(2)[2]; pos[0] = 3; ch.group(ops, x, ("wo", 2), place(2, R))
                chunk(3, [b1], 10, R)
            else:
                chunk(2, [], 2, C.l0); chunk(3, [b1], 10, C.l0)
            q = self.acquire(ops, 4, max(C.aq - 22, fg + 2), C.aq, first=[fl])
            p = loads(1, q, C.aq + 2, min(R, (2*CH - 6 - C.aq) / 2), part=slice(0, 5))
            chunk(4, [bars[1]], 0, C.la)
            loads(1, p, 0, C.la, part=slice(5, 10))
            chunk(5, [bars[2]], 0, C.la)
            def soft(k, mask, gp, gc, gate_gap, n1, after):
                lab = f"{tag}_s{k}"
                p = Op(self.poll_txt(), "L", lo=gp, dl=gp + 1, after=after); p.tag = lab
                w = waitop([lab], lo=gc, dl=gc, after=[p])
                c = Op(f"v_cmp_ne_u32 vcc, 1, v{vPOL}", "v", lo=gc, dl=gc, same=[w])
                sl = Op(f"s_and_b32 s{sOK}, vcc_lo, {mask}\ns_cselect_b32 s{sSEL}, {OOB}, s{sOS+k-1}", "b", lo=gc + 2, dl=gc + 2, after=[c])
                l = loads(k, sl, gc + 3, min(R, (gate_gap - gc - 5) / n1), sSEL, part=slice(0, n1), waits=False)
                g = Op(f"s_cmp_lg_u32 s{sOK}, 0\ns_cbranch_scc1 {lab}\n{lab}_r:", "b", lo=gate_gap, dl=gate_gap, after=[l])
                x = self.oloads(k, sOS + k - 1)[:n1]
                self.stubs.append(f"{lab}:\n{self.spin(lab, mask)}\n" + "\n".join(x) + f"\ns_branch {lab}_r")
                ops.extend([p, w, c, sl, g])
                return l, g
            if swap:
                chunk(6, [bars[3]], 0, min(R, (4*CH - C.c6 - max(pos[0], 3*CH + 1)) / 10))
                assert pos[0] < 4*CH
                lab = f"{tag}_late"
                pos[0] = 4*CH
                l3 = loads(3, None, 0, C.s3, sSEL, part=slice(0, 5), waits=False)
                l2 = loads(2, l3, 0, C.s3, part=slice(5, 10), waits=False)
                ops.append(waitop([("o", 2, 4)], lo=4*CH + 3*NT - 3, dl=4*CH + 3*NT - 3))
                lg = 5*CH - C.s4
                assert pos[0] < lg
                b = Op(f"s_cmp_lg_u32 s{sOK}, 0\ns_cbranch_scc1 {lab}\n{lab}_r:", "b", lo=lg, dl=lg, after=[l2]); ops.append(b)
                self.stubs.append(f"{lab}:\n{self.spin(lab, 8)}\n" + "\n".join(self.oloads(3, sOS + 2)[:5]) + f"\ns_waitcnt vmcnt(0)\ns_branch {lab}_r")
                ops.append(waitop([l3.tag], lo=5*CH - 3, dl=5*CH - 3, after=[b]))
                l = loads(3, b, 5*CH, R, part=slice(5, 10), waits=False)
                ops.append(waitop([l2.tag], lo=6*CH - 3, dl=6*CH - 3))
                ops.append(waitop([l.tag], lo=7*CH - 4, dl=7*CH - 4))
            elif C.am:
                g0 = max(int(pos[0]), 4*CH - C.am)
                l, g = soft(2, 2, g0 - C.a3, g0, 4*CH - 4, 5, [q])
                ops.append(waitop([l.tag], lo=4*CH - 3, dl=4*CH - 3, after=[g]))
                pos[0] = 4*CH
                loads(2, g, 0, 3, part=slice(5, 10))
                chunk(6, [bars[3]], 0, C.la)
                g1 = int(pos[0])
                l, g = soft(3, 8, g1 - C.a3, g1, g1 + 24, 5, [g])
                ops.append(waitop([l.tag], lo=6*CH - 4, dl=6*CH - 4, after=[g]))
                pos[0] = g1 + 26
                chunk(7, [bars[4], g], 0, C.la)
                loads(3, g, 0, C.la, part=slice(5, 10))
            else:
                chunk(6, [bars[3]], 0, min(R, (4*CH - C.c6 - max(pos[0], 3*CH + 1)) / 10))
                assert pos[0] < 4*CH
                lab = f"{tag}_late"
                pos[0] = 4*CH
                loads(2, None, 0, 3, part=slice(5, 10))
                ops.append(waitop([("o", 2, 4)], lo=4*CH + 3*NT - 3, dl=4*CH + 3*NT - 3))
                if C.c7 == 1: chunk(7, [bars[4]], 0, C.s3)
                l3 = loads(3, None, 0, C.s3 if C.c7 else R, sSEL, waits=False)
                lg = int(pos[0])
                b = Op(f"s_cmp_lg_u32 s{sOK}, 0\ns_cbranch_scc1 {lab}\n{lab}_r:", "b", lo=lg, dl=lg, after=[l3]); ops.append(b)
                self.stubs.append(f"{lab}:\n{self.spin(lab, 8)}\n" + "\n".join(self.oloads(3, sOS + 2)) + f"\ns_branch {lab}_r")
                if C.c7 == 2:
                    chunk(7, [bars[4], b], lg + 3, R)
                    ops.append(waitop([l3.tag], lo=6*CH - 4, dl=6*CH - 4, after=[b]))
                else: ops.append(Op("s_waitcnt vmcnt(0)", "s", lo=6*CH - 4, dl=6*CH - 4, after=[b]))
        else:
            lab = f"{tag}_late"
            w = waitop(["pol1"], lo=C.pc, dl=C.pc)
            c = Op(f"v_cmp_ne_u32 vcc, 1, v{vPOL}", "v", lo=C.pc, dl=C.pc, same=[w])
            sl = Op(f"s_and_b32 s{sOK}, vcc_lo, 10\ns_cselect_b32 s{sSEL}, {OOB}, s{sOS}", "b", lo=C.pc + 2, dl=C.pc + 2, after=[c]); ops += [w, c, sl]
            if C.bpre < 3: chunk(2, [], 2, (C.pc + 1) / 8)
            l1 = loads(1, sl, C.pc + 3, min(R, (C.l1e - C.pc - 3) / 10), sSEL, waits=False)
            lg = int(pos[0]) - 2
            assert not l1.lo <= fg + 1 <= lg
            b = Op(f"s_cmp_lg_u32 s{sOK}, 0\ns_cbranch_scc1 {lab}\n{lab}_r:", "b", lo=lg, dl=lg, after=[l1]); ops.append(b)
            self.stubs.append(f"{lab}:\ns_waitcnt vmcnt(0)\n{self.flag_txt()}\n{self.spin(lab, 10)}\n" + "\n".join(self.oloads(1, sOS)) + f"\ns_branch {lab}_r")
            ops.append(waitop([l1.tag], lo=2*CH - 3, dl=2*CH - 3, after=[b]))
            if C.bpre < 4: chunk(3, [b], lg + 2, R)
            chunk(4, [bars[1], b], lg + 2, R)
            chunk(5, [bars[2]], 2*CH + 1, R)
            p = loads(2, b, 0, R)
            q = self.acquire(ops, 4, C.pg, C.pg + 30, first=[b, fl])
            chunk(6, [bars[3]], 0, R)
            p = loads(3, q, C.pg + 32, R, part=slice(0, 5))
            chunk(7, [bars[4]], 0, R)
            loads(3, p, 0, R, part=slice(5, 10))
        print(f"{self.grp} last load gap", pos[0], file=sys.stderr)
        if C.sg == 1:
            for n, c in enumerate((2, 4, 6)): ops.append(Op(stamp_txt(C, 1 + n), "s", lo=c*CH - 30, dl=c*CH - 26))
            ops.append(Op(stamp_txt(C, 4), "s", lo=E - 14, dl=E - 12))
        prev = None
        for t in self.reduce_setup() + self.final_setup():
            prev = Op(t, "s" if t[0] == "s" else "v", lo=9, pri=10**4, after=[prev]); ops.append(prev)
        sent = [(2, 1, 4)] + ([(2, 4, 8), (1, 4, 7)] if a else []) + [(2, 3, 6), (0, 3, 1), (1, 3, 3), (2, 2, 5), (0, 2, 0), (1, 2, 2)]
        wr = []
        for k, P, idx in sent:
            x, y = areg[(k, 2*P)], areg[(k, 2*P + 1)]
            p = prev
            for d, s0, tt in ((y + 3, y + 2, 1), (y + 2, y, 1), (y, x, 0), (y + 1, x + 2, 0)):
                lo = done[(k, 2*P + tt)] + 4
                p = Op(f"v_cvt_pk_bf16_f32 v{d}, v{s0}, v{s0+1}", "v", lo=lo, dl=lo + 2, pri=lo - 40, same=[p]); ops.append(p)
            o = Op(f"ds_write_b128 v{vRW}, {r4('v', y)} offset:{idx*1024}", "L", lo=lo + 1, dl=lo + 4, pri=lo - 40, after=[p, bars[6]]); ops.append(o); wr.append(o)
        ww = Op("s_waitcnt lgkmcnt(0)", "s", dl=E - 2, pri=0, after=wr + [last], dist=2)
        bw = Op("s_barrier", "b", dl=E - 1, pri=0, after=[ww]); ops += [ww, bw]
        units = [(0, 1, sPS + 1, [(2, 3)]), (1, 1, sPS + 3, [(2, 1)])] + ([(0, 4, sOP, [(2, 7)])] if a else [])
        units += [(0, 0, sPS, [(2, 2)]), (1, 0, sPS + 2, [(2, 0)]), (2, 0, sPS + 4, [(1, 4), (2, 5), (3, 6)])]
        if a: units.insert(0, (2, 4, sOP + 1, [(1, 8), (2, 8), (3, 8)]))
        prev = bw; n = 0
        for k, P, so, fr in units:
            x, y = areg[(k, 2*P)], areg[(k, 2*P + 1)]
            if (k, P) == (2, 4): x, y = vO, vO + 8; fr = [(0, 8)] + fr
            for j, (xw, idx) in enumerate(fr):
                prev = Op(f"ds_read_b128 {r4('a', 4*n)}, v{vRW + xw} offset:{idx*1024}", "d", dl=E - 1, same=[prev]); ops.append(prev)
                for e, d in enumerate((x, y)):
                    mf.append(f"{MF} {r4('v', d)}, {r4('v', vSEL + 2 - 2*e)}, {r4('a', 4*n)}, {'0' if (k, P, j) == (2, 4, 0) else r4('v', d)}")
                n += 1
            lo = len(mf) + 3; p = None
            for d, s0 in ((x, x), (x + 1, x + 2), (x + 2, y), (x + 3, y + 2)):
                p = Op(f"v_cvt_pk_bf16_f32 v{d}, v{s0}, v{s0+1}", "v", lo=lo, same=[p]); ops.append(p)
            for d in (x, x + 1):
                p = Op(f"v_permlane16_swap_b32 v{d}, v{d+2}", "e", after=[p]); ops.append(p)
            p = Op(f"buffer_store_dwordx4 {r4('v', x)}, v{vPSA}, s[{SWS}:{SWS+3}], s{so} offen sc1", "L", after=[p]); ops.append(p)
        out, over, idle = schedule(mf, ops, 60)
        print(f"outproj {self.grp}: overflow {over} idle {idle}", file=sys.stderr)
        k0 = max(i for i, o in enumerate(out) if isinstance(o, str) and o.startswith(MF)) + 1
        rest = [o for o in out[k0:] if not isinstance(o, str)]
        out = out[:k0] + sorted(rest, key=lambda o: ({"v": 0, "e": 1, "L": 1}[o.kind], o.id))
        if a and not C.am:
            class Raw:
                def __init__(s, txt, tag=None, want=None): s.txt = txt; s.tag = tag; s.want = want
            lab = f"{tag}_w2"
            st = lambda n: [stamp_txt(C, n)] if C.sg == 3 else []
            ins = st(1) + [Raw(self.poll_txt(), lab)]
            for x in ([] if C.c7 else self.dma(7)): ins += [Raw(x[0]), Raw(x[1])] + [Raw(y, ("wo", 7)) for y in x[2:]]
            ins += st(2) + [Raw("", None, [lab]), Raw(f"v_cmp_ne_u32 vcc, 1, v{vPOL}\ns_nop 0\ns_and_b32 s{sT2}, vcc_lo, 2\ns_cbranch_scc1 {lab}\n{lab}_r:")]
            self.stubs.append(f"{lab}:\n{self.spin(lab, 2)}\ns_branch {lab}_r")
            ins += [Raw(f"s_and_b32 s{sOK}, vcc_lo, 8\ns_cselect_b32 s{sSEL}, {OOB}, s{sOS+2}")]
            ins += st(3) + [Raw(t, ("o", 2, n)) for n, t in enumerate(self.oloads(2, sOS + 1)[:5])]
            ins += [Raw("", None, [("o", 2, 2)])] + st(4)
            i1 = [i for i, o in enumerate(out) if isinstance(o, str) and o.startswith(MF)][4*CH]
            out = out[:i1] + ins + out[i1:]
        for o in out:
            if isinstance(o, str) or not a: continue
            kill = ("X" in C.abl2 and o.txt.startswith((f"buffer_load_dwordx4 v{vXDM},", f"buffer_load_dwordx4 v{vXDM+1},"))
                    or "M" in C.abl2 and o.txt.startswith(tuple(f"buffer_load_dwordx4 v{vWD+i}," for i in range(4)))
                    or "O" in C.abl2 and o.txt.startswith("buffer_load_dwordx4 a"))
            if kill: o.txt = "s_nop 0"; o.tag = None
        emit(A, vm, fine(C, "o", out))
        self.final()

    def rd(self, fr, slot, uu):
        s_, u, z, t = fr; off, win, xo = self.loc(2*s_ + u); r = aF + 4*slot + 2*uu
        if t >= 8: return f"ds_read_b64_tr_b16 a[{r}:{r+1}], v{vXO + 2*z + t - 8} offset:{xo + uu*1024}"
        return f"ds_read_b64_tr_b16 a[{r}:{r+1}], v{(vOR1 if z else vOR0) + t} offset:{off + uu*4096}"

    def reduce_setup(self):
        o = ""
        for x in range(4):
            o += f"s_xor_b32 s{sX0}, s{sW}, {x}\ns_lshl_b32 s{sX0}, s{sX0}, 14\ns_add_u32 s{sX0}, s{sX0}, {W0}\nv_add_u32 v{vRW+x}, s{sX0}, v3\n"
        o += f"""v_bfe_u32 v{vPSA+1}, v2, 4, 1
        v_lshrrev_b32 v{vPSA}, 5, v2
        v_lshl_add_u32 v{vPSA}, v{vPSA+1}, 1, v{vPSA}
        v_lshlrev_b32 v{vPSA}, 4, v{vPSA}
        v_and_b32 v{vPSA+1}, 15, v2
        v_lshl_add_u32 v{vPSA}, v{vPSA+1}, 6, v{vPSA}
        s_mul_i32 s{sPS+5}, s{sB}, {BAT}
        s_mul_i32 s{sX0}, s{sHKV}, {BLK}
        s_add_u32 s{sPS+5}, s{sPS+5}, s{sX0}
        s_add_u32 s{sPS+5}, s{sPS+5}, {PART}
        s_mul_i32 s{sPS+4}, s{sW}, 5120
        s_add_u32 s{sPS+4}, s{sPS+4}, s{sPS+5}
        s_xor_b32 s{sPS+2}, s{sW}, 1
        s_mul_i32 s{sPS+2}, s{sPS+2}, 5120
        s_add_u32 s{sPS+2}, s{sPS+2}, s{sPS+5}
        s_lshl_b32 s{sX0}, s{sS}, 1
        s_add_u32 s{sX0}, s{sX0}, s{sH}
        s_lshl_b32 s{sX0}, s{sX0}, 10
        s_add_u32 s{sPS}, s{sPS+4}, s{sX0}
        s_add_u32 s{sPS+1}, s{sPS+2}, s{sX0}
        s_add_u32 s{sOP}, s{sPS+5}, s{sX0}
        s_add_u32 s{sOP}, s{sOP}, 20480
        s_xor_b32 s{sX0}, s{sX0}, 1024
        s_add_u32 s{sPS+3}, s{sPS+2}, s{sX0}
        s_add_u32 s{sPS+2}, s{sPS+4}, s{sX0}
        s_add_u32 s{sPS+4}, s{sPS+4}, 4096
        s_add_u32 s{sOP+1}, s{sPS+5}, {20480 + 4096}
        s_xor_b32 s{sX0}, s{sW}, 3
        s_min_u32 s{sX0}, s{sX0}, 1
        s_lshl_b32 s{sX0}, s{sX0}, 30
        s_or_b32 s{sOP+1}, s{sOP+1}, s{sX0}
        v_lshrrev_b32 v{vSEL}, 4, v2
        v_bfe_u32 v{vSEL+1}, v2, 2, 2
        v_xor_b32 v{vSEL}, v{vSEL}, v{vSEL+1}
        v_min_u32 v{vSEL}, 1, v{vSEL}
        v_sub_u32 v{vSEL}, 1, v{vSEL}
        v_mul_u32_u24 v{vSEL}, 0x3f80, v{vSEL}
        v_and_b32 v{vSEL+1}, 1, v2
        v_lshlrev_b32 v{vSEL+1}, 4, v{vSEL+1}
        v_lshlrev_b32 v{vSEL}, v{vSEL+1}, v{vSEL}
        v_bfe_u32 v{vSEL+1}, v2, 1, 1
        v_sub_u32 v{vSEL+1}, 0, v{vSEL+1}
        v_and_b32 v{vSEL+3}, v{vSEL}, v{vSEL+1}
        v_xor_b32 v{vSEL+2}, v{vSEL}, v{vSEL+3}
        v_mov_b32 v{vSEL}, 0
        v_mov_b32 v{vSEL+1}, 0
        v_mov_b32 v{vSEL+4}, 0
        v_mov_b32 v{vSEL+5}, 0"""
        return [x.strip() for x in o.split("\n") if x.strip()]

    def final_setup(self):
        a = self.grp == "a"; NP = 400 if a else 320
        t = vF + 5
        o = f"""s_mul_i32 s{sX0}, s{sHG}, {NP}
        v_add_u32 v{vF}, s{sX0}, v0
        v_add_u32 v{vF+1}, 256, v{vF}
        s_mov_b32 s{sX0}, 52429
        """
        for r in range(2):
            o += f"""v_mul_u32_u24 v{t}, s{sX0}, v{vF+r}
            v_lshrrev_b32 v{t}, 24, v{t}
            v_mul_u32_u24 v{t+1}, 320, v{t}
            v_sub_u32 v{t+1}, v{vF+r}, v{t+1}
            v_lshrrev_b32 v{t+1}, 2, v{t+1}
            v_mul_u32_u24 v{t+1}, 1152, v{t+1}
            v_lshl_add_u32 v{t+1}, v{t}, 6, v{t+1}
            v_add_u32 v{t+1}, s{sPS+6}, v{t+1}
            """
            if a: o += f"""v_lshrrev_b32 v{t}, 2, v{t}
            v_mul_u32_u24 v{t}, s{sJ}, v{t}
            v_mul_u32_u24 v{t}, 160, v{t}
            v_sub_u32 v{t+1}, v{t+1}, v{t}
            """
            o += f"""v_and_b32 v{t}, 3, v{vF+r}
            v_lshl_add_u32 v{vF+2+r}, v{t}, 4, v{t+1}
            v_lshlrev_b32 v{vF+r}, 4, v{vF+r}
            """
        o += f"""v_sub_u32 v{t}, {NP - 257}, v0
        v_and_b32 v{t}, 0x40000000, v{t}
        v_or_b32 v{vF+1}, v{vF+1}, v{t}
        v_or_b32 v{vF+3}, v{vF+3}, v{t}
        s_mul_i32 s{sF2}, s{sB}, {BAT}
        s_lshl_b32 s{sX0}, s{sJ}, 11
        s_add_u32 s{sF2}, s{sF2}, s{sX0}
        s_add_u32 s{sF2}, s{sF2}, {FL + 32768}
        v_and_b32 v{vF+4}, 3, v2
        v_xor_b32 v{vF+4}, s{sHG}, v{vF+4}
        v_lshlrev_b32 v{vF+4}, {self.C.f2s}, v{vF+4}
        s_mul_i32 s{sF2+1}, s{sB}, {BAT}
        s_mul_i32 s{sX0}, s{sJ}, {BLK}
        s_add_u32 s{sF2+1}, s{sF2+1}, s{sX0}
        s_add_u32 s{sF2+1}, s{sF2+1}, {PART}
        s_mul_i32 s{sOP+2}, s{sB}, 92160"""
        return [x.strip() for x in o.split("\n") if x.strip()]

    def final(self):
        A, C, tag = self.A, self.C, self.tag
        stamp(A, C, 7)
        A(f"""s_mov_b32 s{sCNT}, 0
        s_waitcnt vmcnt(0)
        s_barrier""")
        stamp(A, C, 8)
        A(f"""s_cmp_lg_u32 s{sW}, 0
        s_cbranch_scc1 {tag}_fq
        s_mov_b64 exec, 1
        buffer_store_dword v{vRDY}, v{vF+4}, s[{SWS}:{SWS+3}], s{sF2} offen sc1
        s_mov_b64 exec, 14""")
        pl = lambda k: f"buffer_load_dword v{vS+k}, v{vF+4}, s[{SWS}:{SWS+3}], s{sF2} offen sc1"
        D = C.pd
        for k in range(D - 1): A(pl(k) + f"\ns_sleep {C.ps}")
        if C.p0: A(f"s_sleep {C.p0}")
        A(f"{tag}_fp:")
        for k in range(D):
            A(f"""{pl((k + D - 1) % D)}
            s_waitcnt vmcnt({D - 1})
            v_cmp_ne_u32 vcc, 1, v{vS+k}
            s_add_u32 s{sCNT}, s{sCNT}, 1
            s_and_b32 s{sT2}, vcc_lo, 14
            s_cbranch_scc0 {tag}_fq""")
        if C.pl: A(f"s_sleep {C.pl}")
        A(f"s_cmp_lt_u32 s{sCNT}, {SPIN}\ns_cbranch_scc1 {tag}_fp\n{tag}_fq:\ns_mov_b64 exec, -1\ns_barrier")
        stamp(A, C, 9)
        for p in range(4):
            for r in range(2): A(f"buffer_load_dwordx4 {r4('a', 16*r+4*p)}, v{vF+r}, s[{SWS}:{SWS+3}], s{sF2+1} offen sc1")
            if p < 3: A(f"s_add_u32 s{sF2+1}, s{sF2+1}, {4*BLK}")
        for p in range(4):
            A(f"s_waitcnt vmcnt({(3-p)*2})")
            for r in range(2):
                for e in range(2):
                    d = r4("v", vO + 8*r + 4*e)
                    A(f"{MF} {d}, {r4('v', vSEL + 2 - 2*e)}, {r4('a', 16*r+4*p)}, {'0' if p == 0 else d}")
        for r in range(2):
            pack(A, vO + 8*r, vO + 8*r + 4, vO + 8*r, None, False)
            A(f"buffer_store_dwordx4 {r4('v', vO+8*r)}, v{vF+2+r}, s[{SOUT}:{SOUT+3}], s{sOP+2} offen {C.outf}")
        if C.stamps: A("s_waitcnt vmcnt(0)\ns_barrier")
        stamp(A, C, 10)
        flush(A, C, self.name)
        A("s_endpgm")
```

```python
KN = "standalone__gqa_block_cached__near_ridge"
HEADER = """; Kernarg layout for this problem (64 bytes, ptrs only, base s[0:1]):
;
"""
def v(i, n=1): return f"v{i}" if n == 1 else f"v[{i}:{i+n-1}]"
def a(i, n=1): return f"a{i}" if n == 1 else f"a[{i}:{i+n-1}]"
def s(i, n=1): return f"s{i}" if n == 1 else f"s[{i}:{i+n-1}]"

class Asm:
    def __init__(self): self.L = []; self.uid = 0
    def __call__(self, txt):
        for ln in txt.split("\n"):
            ln = ln.strip()
            if ln: self.L.append(ln if ln.endswith(":") else "    " + ln)
    def label(self, base="L"):
        self.uid += 1; return f"{base}_{self.uid}"
    def text(self): return "\n".join(self.L) + "\n"

def kernel_begin(name):
    return f".globl {name}\n.p2align 8\n.type {name},@function\n{name}:\n"
def kd(name, vgpr, agpr=0, sgpr=102):
    acc = (vgpr + 3) // 4 * 4
    nfv = acc + agpr if agpr else vgpr
    return f""".p2align 6
.amdhsa_kernel {name}
  .amdhsa_next_free_vgpr {nfv}
  .amdhsa_next_free_sgpr {sgpr}
  .amdhsa_accum_offset {acc}
  .amdhsa_group_segment_fixed_size 0
  .amdhsa_kernarg_size 64
  .amdhsa_user_sgpr_count 2
  .amdhsa_user_sgpr_kernarg_segment_ptr 1
  .amdhsa_system_sgpr_workgroup_id_x 1
.end_amdhsa_kernel
"""
def build(launches, kernels):
    out = HEADER
    if len(launches) == 1 and launches[0][0] == KN + "_kernel":
        n, g, b, l = launches[0]
        out += f"; @launch grid=({g},1,1) block=({b},1,1) lds={l}\n"
    else:
        for n, g, b, l in launches:
            out += f"; @launch kernel={n} grid=({g},1,1) block=({b},1,1) lds={l}\n"
    out += '.amdgcn_target "amdgcn-amd-amdhsa--gfx950"\n.text\n'
    for n, body, vg, ag in kernels:
        out += kernel_begin(n) + body
    out += '.section .rodata,"a"\n'
    for n, body, vg, ag in kernels:
        out += kd(n, vg, ag)
    return out
```

```python
import sys, math, struct, json
from asmlib import *
from sched import Op, schedule, ORDER as ORD
import hazard
QSCALE = struct.unpack("<I", struct.pack("<f", math.log2(math.e) / math.sqrt(128.0)))[0]
STAMP = 64 << 20
OOB = 0x7fff0000
SPIN = 200000
MF = "v_mfma_f32_16x16x32_bf16"
LLO, LHI = (127 - 60) << 23, (127 + 60) << 23

SDBG, SX, SK, SV, SWQ, SWO, SWS, SOUT = 4, 20, 24, 28, 32, 36, 40, 44
sW, sH, sS, sJ, sHG, sB, sHKV, sW4K, sX0, sT0, sT1, sT2, sQS, sRET, sSAFE, sCNT = 48, 49, 50, 51, 52, 53, 54, 55, 56, 57, 58, 59, 60, 62, 64, 65
sU = 8
sST = 76
vWD, vXD, vKD, vVD, vWR, vXR, vKR, vVR, vT = 4, 8, 11, 15, 17, 25, 31, 39, 55
vQ, vO, vS, vE = 64, 112, 208, 248
vNEG = 252
aK, aV, aL, aONE = 0, 128, 192, 204
aWA, aWB = 64, 208
XR, WQR, QX = 94208, 114688, 114688
def kslot(i): return (i % 3) * 16384
def vslot(i): return 49152 + (i % 3) * 16384
ORDER = ["K0"] + [x for i in range(7) for x in (f"K{i+1}", f"V{i}")] + ["V7"]
JSLOT, JSET = [0, 1, 2, 0, 1], [0, 0, 0, 1, 1]

class Cfg:
    nact = 256; abl = ""; abl0 = ""; fine = ""; abl2 = ""; wg = 7; cyc = 0; NB = 5; lagb = 0; laga = 0; latev = 0; tlb = 0; wpre = ""; tsh = 16; stamps = 0; tail = "h"; split = 3; touch = "KWm"; outf = ""; wsp = 0; wp = 0; vz = 0; v0 = 10; v1 = 6; kd = 70; sr = 0; s0 = 1; fga = 40; pc = 14; am = 0; a3 = 25; ea = ""; eb = "01"; va = ""; vb = ""; l0 = 2.6; p1 = 45; hop = 2; da = "540-4.5"; db = "560-4.5"
    dg = (76, 78, 80, 82, 85, 87, 89, 91); of = "sc1"; dual = 1; f0 = 3; qi = 3; xg = 18; nost = ""; be = 6; g0 = 2; bpre = 4; r7 = 4; l1e = 44; cl = 1; f2s = 2; p0 = 0; pl = 0; c7 = 2; c6 = 4; sw = 0; s3 = 4; s4 = 6; l2 = ""; mid = "ab"; taa = "a433"; tba = "b436"; tab = "b433"; tbb = "a150"; wbb = 460; rn = 1; tf = ""; apre = 3; wa = 540; wb = -1; lf = "sc1"; fg = 24; lr = 4.2; la = 3.4; pd = 1; ps = 4; na = 7; rush = 3; pg = 140; aq = 62; lead = 12; no = 7; sg = 0
    def __init__(self, **kw):
        for k, val in kw.items(): setattr(self, k, val)
        if isinstance(self.dg, str): self.dg = tuple(int(x) for x in self.dg.split('-'))

class VM:
    def __init__(self): self.q = []
    def add(self, tag, n=1): self.q += [tag] * n
    def wait(self, *tags):
        idx = [i for i, t in enumerate(self.q) if t in tags]
        if not idx: return None
        n = len(self.q) - 1 - max(idx)
        self.q = self.q[max(idx) + 1:]
        assert n <= 63
        return n

def srd(A, d, base, off, size):
    if off is None: A(f"s_mov_b32 s{d}, s{base}\ns_mov_b32 s{d+1}, s{base+1}")
    else: A(f"s_add_u32 s{d}, s{base}, {off}\ns_addc_u32 s{d+1}, s{base+1}, 0")
    A(f"s_mov_b32 s{d+2}, {size}\ns_mov_b32 s{d+3}, 0x20000")
def stamp_txt(C, i): return f"{'s_memtime' if C.cyc else 's_memrealtime'} s[{sST+2*i}:{sST+2*i+1}]"
def stamp(A, C, i):
    if C.sg == 4 and 5 <= i <= 8 and any(f's[{sST+2*i}:' in l for l in A.L): return
    if C.stamps and not C.fine: A(stamp_txt(C, i))
def fine(C, phase, out):
    if not C.fine or C.fine[0] != phase: return out
    g0, dg = (int(x) for x in C.fine[1:].split("-")); res = []; n = 0
    for i, o in enumerate(out):
        res.append(o)
        if isinstance(o, str) and o.startswith(MF):
            if n >= g0 and (n - g0) % dg == 0 and (n - g0) // dg < 13:
                res.append(stamp_txt(C, (n - g0) // dg))
                if out[i + 1] == ";sfree": out[i + 1] = ";"
            n += 1
    return res
def r4(p, i): return f"{p}[{i}:{i+3}]"

def emit(A, vm, out):
    for o in out:
        if isinstance(o, str): A(o); continue
        if getattr(o, "want", None) is not None:
            n = vm.wait(*o.want)
            if n is None: A(f"s_waitcnt {o.txt}" if o.txt else ";sfree")
            else: A(f"s_waitcnt vmcnt({n}) {o.txt}")
        else: A(o.txt)
        if getattr(o, "tag", None) is not None: vm.add(o.tag, getattr(o, "cnt", 1))
def waitop(tags, extra="", **kw):
    o = Op(extra, "s", **kw); o.want = tags; return o
class Chain:
    def __init__(self): self.last = None
    def group(self, ops, x, tag, gaps, first=(), nscal=2):
        prev = self.last
        for t in reversed(x[:nscal]):
            o = Op(t, "s", lo=gaps[0] - 2, dl=gaps[0], pri=gaps[0] - 2, after=[prev] if prev and prev.kind == "L" else [], same=[prev] if prev and prev.kind == "s" else [])
            ops.append(o); prev = o
        for t, gp in zip(x[len(x) - len(gaps):] if nscal == 1 else x[2:], gaps):
            o = Op(t, "L", lo=gp, dl=gp, after=[prev] + list(first))
            o.tag = tag; ops.append(o); prev = o
        self.last = prev
        return prev

def prologue(A, C, name):
    A(f"""s_load_dwordx16 s[4:19], s[0:1], 0
    s_cmp_ge_u32 s2, {C.nact}
    s_cbranch_scc1 {name}_end""")
    stamp(A, C, 0)
    A(f"""v_lshrrev_b32 v1, 6, v0
    v_and_b32 v2, 63, v0
    v_readfirstlane_b32 s{sW}, v1
    s_and_b32 s{sHG}, s2, 3
    s_bfe_u32 s{sJ}, s2, 0x20003
    s_lshr_b32 s{sB}, s2, 5
    s_bfe_u32 s{sT0}, s2, 0x10002
    s_lshl_b32 s{sT0}, s{sT0}, 3
    s_add_u32 s{sB}, s{sB}, s{sT0}
    s_lshl_b32 s{sHKV}, s{sHG}, 2
    s_add_u32 s{sHKV}, s{sHKV}, s{sJ}
    s_lshr_b32 s{sH}, s{sW}, 1
    s_and_b32 s{sS}, s{sW}, 1
    s_lshl_b32 s{sW4K}, s{sW}, 12""")

def code_touch(A, name):
    A(f"""s_getpc_b64 s[{sRET}:{sRET+1}]
    {name}_pc:
    s_sub_u32 s{sRET}, s{sRET}, {name}_pc-{name}_kernel
    s_subb_u32 s{sRET+1}, s{sRET+1}, 0
    s_lshr_b32 s{sT0}, s2, 4
    v_lshl_add_u32 v1, v0, 4, s{sT0}
    v_lshlrev_b32 v1, 7, v1
    v_min_u32 v1, {name}_hot-{name}_kernel-4, v1
    s_cmp_lg_u32 s{sW}, 0
    s_cbranch_scc1 {name}_nc
    global_load_dword v255, v1, s[{sRET}:{sRET+1}]
    {name}_nc:""")

def w_addresses(A):
    t = vT
    A(f"""s_mul_i32 s{sX0}, s{sW}, 2560
    s_add_u32 s{sX0}, s{sX0}, {XR}
    v_lshrrev_b32 v{t}, 4, v2
    v_and_b32 v{t+1}, 15, v2
    v_lshlrev_b32 v{t+2}, 1, v{t}
    v_xor_b32 v{t+2}, v{t+1}, v{t+2}
    v_lshlrev_b32 v{t+2}, 4, v{t+2}
    v_lshl_add_u32 v{vWD}, v{t}, 13, v{t+2}
    v_xor_b32 v{vWD+2}, 128, v{vWD}
    v_add_u32 v{vWD+1}, {4*8192-1024}, v{vWD}
    v_add_u32 v{vWD+3}, {12*8192-3072}, v{vWD+2}
    v_add_u32 v{vWD+2}, {8*8192-2048}, v{vWD+2}
    v_lshrrev_b32 v{t}, 3, v2
    v_and_b32 v{t+1}, 7, v2
    s_mul_i32 s{sT0}, s{sW}, 20
    v_add_u32 v{t+2}, s{sT0}, v{t}
    v_bfe_u32 v{t+3}, v{t+2}, 1, 3
    v_xor_b32 v{t+3}, v{t+1}, v{t+3}
    v_mul_u32_u24 v{t+2}, 1152, v{t+2}
    v_lshl_add_u32 v{vXD}, v{t+3}, 4, v{t+2}
    v_xor_b32 v{vXD+1}, 64, v{vXD}
    v_add_u32 v{vXD+1}, {8*1152-1024}, v{vXD+1}
    v_add_u32 v{vXD+2}, {16*1152-2048}, v{vXD}""")
def w_srds(A):
    A(f"s_mul_i32 s{sT0}, s{sB}, 92160")
    srd(A, SX, 4, f"s{sT0}", 92160)
    A(f"""s_lshl_b32 s{sT0}, s{sHKV}, 9
    s_lshl_b32 s{sT2}, s{sH}, 8
    s_add_u32 s{sT0}, s{sT0}, s{sT2}
    s_lshl_b32 s{sT2}, s{sS}, 17
    s_add_u32 s{sT0}, s{sT0}, s{sT2}
    s_sub_u32 s{sT2}, {576*8192}, s{sT0}""")
    srd(A, SWQ, 10, f"s{sT0}", f"s{sT2}")
def kv_setup(A):
    t = vT
    A(f"""v_lshrrev_b32 v{t}, 4, v2
    v_and_b32 v{t+1}, 15, v2
    v_lshlrev_b32 v{t+2}, 1, v{t}
    v_xor_b32 v{t+2}, v{t+1}, v{t+2}
    v_lshlrev_b32 v{t+2}, 4, v{t+2}
    v_lshl_add_u32 v{vVD}, v{t}, 8, v{t+2}
    v_xor_b32 v{vVD+1}, 128, v{vVD}
    v_xor_b32 v{t+2}, v{t+1}, v{t}
    v_lshlrev_b32 v{t+2}, 4, v{t+2}
    v_lshl_add_u32 v{vKD}, v{t}, 8, v{t+2}
    v_xor_b32 v{vKD+1}, 64, v{vKD}
    v_xor_b32 v{vKD+2}, 128, v{vKD}
    v_xor_b32 v{vKD+3}, 192, v{vKD}
    s_lshl_b32 s{sT1}, s{sB}, 4
    s_add_u32 s{sT1}, s{sT1}, s{sHKV}
    s_lshl_b32 s{sT1}, s{sT1}, 17""")
    srd(A, SK, 6, f"s{sT1}", 131072)
    srd(A, SV, 8, f"s{sT1}", 131072)

def late_addresses(A, C):
    g, q, r, cc, t = vT, vT + 1, vT + 2, vT + 3, vT + 4
    A(f"""v_lshrrev_b32 v{g}, 4, v2
    v_and_b32 v{q}, 15, v2
    v_bfe_u32 v{r}, v2, 2, 2
    v_and_b32 v{cc}, 3, v2
    v_and_b32 v{t+2}, 1, v{g}
    v_lshl_add_u32 v{t+1}, v{t+2}, 2, v{r}
    v_lshlrev_b32 v{t+1}, 5, v{t+1}
    v_lshl_add_u32 v{t+1}, v{cc}, 3, v{t+1}
    s_lshl_b32 s{sT1}, s{sS}, 7
    v_xor_b32 v{t+1}, s{sT1}, v{t+1}
    v_lshl_add_u32 v{t}, v{g}, 3, v{r}
    v_lshl_add_u32 v{t}, v{t}, 8, v{t+1}
    s_lshl_b32 s{sT0}, s{sH}, 13
    s_add_u32 s{sT0}, s{sT0}, {WQR}
    v_add_u32 v{vWR}, s{sT0}, v{t}""")
    for k in range(1, 8): A(f"v_xor_b32 v{vWR+k}, {32*k}, v{vWR}")
    A(f"""v_lshl_add_u32 v{t}, v{g}, 2, v{r}
    v_lshl_add_u32 v{t}, v{t}, 8, v{t+1}
    s_lshl_b32 s{sT0}, s{sS}, 13
    s_add_u32 s{sT2}, s{sT0}, {vslot(0)}
    v_add_u32 v{vVR}, s{sT2}, v{t}""")
    for k in range(1, 16): A(f"v_xor_b32 v{vVR+k}, {32*(k & 7) + 8192*(k >> 3)}, v{vVR}")
    A(f"""v_lshrrev_b32 v{t}, 1, v{g}
    v_lshl_add_u32 v{t}, v{t+2}, 1, v{t}
    v_xor_b32 v{t}, v{t}, v{q}
    v_lshlrev_b32 v{t}, 4, v{t}
    v_xor_b32 v{t}, s{sT1}, v{t}
    v_lshl_add_u32 v{t}, v{q}, 8, v{t}
    v_add_u32 v{vKR}, s{sT0}, v{t}""")
    for k in range(1, 8): A(f"v_xor_b32 v{vKR+k}, {64*(k & 3) + 8192*(k >> 2)}, v{vKR}")
    A(f"""v_lshrrev_b32 v{t}, 1, v{q}
    v_xor_b32 v{t}, v{t}, v{g}
    v_lshlrev_b32 v{t}, 4, v{t}
    v_lshl_add_u32 v{t}, v{q}, 7, v{t}
    s_lshl_b32 s{sT0}, s{sS}, 1
    s_add_u32 s{sT0}, s{sT0}, s{sH}
    s_lshl_b32 s{sT0}, s{sT0}, 11
    s_xor_b32 s{sT1}, s{sT0}, 2048
    s_add_u32 s{sT0}, s{sT0}, {XR}
    s_add_u32 s{sT1}, s{sT1}, {XR}
    v_add_u32 v{vXR}, s{sT0}, v{t}
    v_add_u32 v{vXR+2}, s{sT1}, v{t}
    v_add_u32 v{vXR+4}, {XR + 8192}, v{t}""")
    for k in range(3): A(f"v_xor_b32 v{vXR+2*k+1}, 64, v{vXR+2*k}")
    A(f"""v_lshlrev_b32 v3, 4, v2
    v_mov_b32 v1, 0
    s_mov_b32 s{sQS}, {QSCALE}
    s_mov_b32 s{sQS+1}, {QSCALE}
    s_mov_b32 s{sSAFE}, 1
    v_mov_b32 v{vNEG+2}, 0
    v_mov_b32 v{t}, 0x3f803f80""")
    for i in range(4): A(f"v_accvgpr_write_b32 a{aONE+i}, v{t}")
    A(f"s_mul_i32 s{sT0}, s{sHG}, {1024*1152}")
    srd(A, SWO, 12, f"s{sT0}", 1024 * 1152)
    srd(A, SOUT, 14, None, 1280 * 1152)
    srd(A, SDBG, 16, None, 256)

def touches(A, C, vm, first, mid):
    x, w = vQ + 8, vQ + 9
    A(f"s_movk_i32 s{sX0}, 224")
    A(f"""v_lshlrev_b32 v{x}, 7, v0
    v_cmp_gt_u32 vcc, 180, v0
    v_mov_b32 v{vT+1}, {OOB}
    s_lshr_b32 s{sT0}, s{sJ}, 1
    s_mul_i32 s{sT0}, s{sT0}, 46080
    v_cndmask_b32 v{x}, v{vT+1}, v{x}, vcc
    s_mul_i32 s{sT1}, s{sB}, 92160
    s_add_u32 s{sT0}, s{sT0}, s{sT1}
    v_lshrrev_b32 v{w}, 2, v0
    v_and_b32 v{vT+1}, 3, v0
    s_and_b32 s{sT1}, s{sB}, 7
    v_lshl_add_u32 v{w}, v{w}, 3, s{sT1}
    v_lshlrev_b32 v{w}, 13, v{w}
    v_lshl_add_u32 v{w}, v{vT+1}, 7, v{w}""")
    if "K" in C.touch:
        k = vQ + 10
        A(f"""v_mul_u32_u24 v{k}, 21846, v0
        v_lshrrev_b32 v{k}, 16, v{k}
        v_mul_u32_u24 v{k}, {1152 - 384}, v{k}
        v_lshl_add_u32 v{k}, v0, 7, v{k}
        v_subrev_u32 v{k+1}, {256*8192}, v{w}
        v_cmp_gt_u32 vcc, 128, v0
        v_cmp_gt_u32 s[{sQS}:{sQS+1}], s{sX0}, v0
        v_mov_b32 v{vT+1}, {OOB}
        v_cndmask_b32 v{k}, v{k+1}, v{k}, vcc
        s_xor_b32 s{sT1}, s{sHKV}, 1
        s_lshl_b32 s{sT1}, s{sT1}, 9
        v_cndmask_b32 v{k}, v{vT+1}, v{k}, s[{sQS}:{sQS+1}]""")
    A("s_waitcnt lgkmcnt(0)")
    if C.sg == 4: stamp(A, C, 5)
    first()
    srd(A, SOUT, 4, f"s{sT0}", 46080)
    srd(A, SWO, 10, None, 576 * 8192)
    for ch in C.touch:
        if ch == "K":
            A(f"""s_cmp_lt_u32 s{sW}, 2
            s_cselect_b32 s{SX}, s{SOUT}, s{SWO}
            s_cselect_b32 s{SX+1}, s{SOUT+1}, s{SWO+1}
            s_cselect_b32 s{SX+2}, s{SOUT+2}, s{SWO+2}
            s_cselect_b32 s{sT1}, 0, s{sT1}
            s_cselect_b32 s{sT0}, 1, 4096
            s_mov_b32 s{SX+3}, 0x20000
            s_mul_i32 s{sT0}, s{sT0}, 384""")
            for r in range(3):
                A(f"buffer_load_dword v255, v{vQ+10}, s[{SX}:{SX+3}], s{sT1} offen\ns_add_u32 s{sT1}, s{sT1}, s{sT0}"); vm.add("touch")
        if ch == "X":
            A(f"buffer_load_dword v255, v{x}, s[{SOUT}:{SOUT+3}], 0 offen\ns_mov_b32 s{sT0}, 23040\nbuffer_load_dword v255, v{x}, s[{SOUT}:{SOUT+3}], s{sT0} offen"); vm.add("touch", 2)
        if ch in "oW":
            A(f"""s_xor_b32 s{sT0}, s{sHKV}, {1 if ch == 'o' else 0}
            s_lshl_b32 s{sT0}, s{sT0}, 9
            buffer_load_dword v255, v{w}, s[{SWO}:{SWO+3}], s{sT0} offen
            s_add_u32 s{sT0}, s{sT0}, {512*8192}
            buffer_load_dword v255, v{w}, s[{SWO}:{SWO+3}], s{sT0} offen"""); vm.add("touch", 2)
        if ch in "hl":
            A(f"""s_lshl_b32 s{sT0}, s{sHKV}, 9
            s_cmp_{'lt' if ch == 'h' else 'ge'}_u32 s{sW}, 2
            s_cselect_b32 s{sT2}, s{sT0}, {OOB}
            buffer_load_dword v255, v{w}, s[{SWO}:{SWO+3}], s{sT2} offen"""); vm.add("touch")
            if ch == "l": A(f"s_add_u32 s{sT0}, s{sT0}, {512*8192}\nbuffer_load_dword v255, v{w}, s[{SWO}:{SWO+3}], s{sT0} offen"); vm.add("touch")
        if ch == "m":
            if C.sg == 4: stamp(A, C, 6)
            mid()

def wo_touches(A, C, vm):
    if not C.wpre: return
    t = vT
    A(f"s_mul_i32 s{sT0}, s{sHG}, {1024*1152}")
    srd(A, SWO, 12, f"s{sT0}", 1024 * 1152)
    A(f"""v_lshrrev_b32 v{t}, 2, v0
    v_mul_u32_u24 v{t}, 1152, v{t}
    v_and_b32 v{t+1}, 3, v0
    v_lshl_add_u32 v{t+2}, v{t+1}, 7, v{t}
    s_and_b32 s{sT0}, s{sB}, 7
    s_lshl_b32 s{sT0}, s{sT0}, 1
    s_lshr_b32 s{sT2}, s{sJ}, 1
    s_add_u32 s{sT0}, s{sT0}, s{sT2}
    s_mul_i32 s{sT0}, s{sT0}, 73728
    v_cmp_eq_u32 vcc, 0, v{t+1}
    v_mov_b32 v{t+1}, {OOB}
    s_nop 0
    v_cndmask_b32 v{t}, v{t+1}, v{t}, vcc""")
    if "b" in C.wpre: A(f"buffer_load_dword v255, v{t+2}, s[{SWO}:{SWO+3}], s{sT0} offen"); vm.add("touch")
    if "a" in C.wpre:
        A(f"buffer_load_dword v255, v{t+2}, s[{SWO}:{SWO+3}], s{sT0} offen offset:512\nbuffer_load_dword v255, v{t}, s[{SWO}:{SWO+3}], s{sT0} offen offset:1024"); vm.add("touch", 2)

def dma_kv(name, slot=None, so=None):
    i = int(name[1:])
    if name[0] == "V": sr, sl, va = SV, vslot(i), [vVD, vVD + 1, vVD, vVD + 1]
    else: sr, sl, va = SK, kslot(i), [vKD + a for a in range(4)]
    o = [f"s_add_u32 m0, s{sW4K}, {sl if slot is None else slot}", f"s_add_u32 s{sT1}, s{sW4K}, {i*16384 if so is None else so}"]
    return o + [f"buffer_load_dwordx4 v{va[a]}, s[{sr}:{sr+3}], s{sT1} offen offset:{a*1024} nt lds" for a in range(4)]
def dma_wq(j):
    o = [f"s_add_u32 m0, s{sW4K}, {WQR + (j % 3)*16384}", f"s_mov_b32 s{sT1}, {j*262144}"]
    return o + [f"buffer_load_dwordx4 v{vWD+a}, s[{SWQ}:{SWQ+3}], s{sT1} offen offset:{a*1024} lds" for a in range(4)]
def dma_x(t):
    o = [f"s_add_u32 m0, s{sX0}, {((t + 1) % 2)*10240}", f"s_mov_b32 s{sT0}, {t*128}"]
    o += [f"buffer_load_dwordx4 v{vXD+i}, s[{SX}:{SX+3}], s{sT0} offen offset:{i*1024} lds" for i in range(2)]
    o += [f"s_mov_b32 exec_hi, 0\nbuffer_load_dwordx4 v{vXD+2}, s[{SX}:{SX+3}], s{sT0} offen offset:2048 lds\ns_mov_b32 exec_hi, -1"]
    return o
def w_reads(j):
    p = j & 1
    o = [("D", f"ds_read_b128 {r4('a', aWB+12*p+4*k)}, v{vXR+2*k+p} offset:{(((j >> 1) + 1) % 2)*10240}") for k in range(3)]
    for t in range(8):
        for u in range(2): o.append(("d", f"ds_read_b64_tr_b16 a[{aWA+32*p+4*t+2*u}:{aWA+32*p+4*t+2*u+1}], v{vWR+t} offset:{(j % 3)*16384 + u*1024}"))
    return o
def k_reads(i, buf=None, slot=None):
    b = aK + 64 * (i & 1 if buf is None else buf); sl = kslot(i) if slot is None else slot
    return [f"ds_read_b128 {r4('a', b+32*z+16*kt+4*p)}, v{vKR+4*z+p} offset:{sl + kt*4096}" for z in range(2) for kt in range(2) for p in range(4)]
def v_reads(i, slot=None):
    sl = (vslot(i) if slot is None else slot) - vslot(0)
    return [f"ds_read_b64_tr_b16 a[{aV+32*z+4*m+2*u}:{aV+32*z+4*m+2*u+1}], v{vVR+8*z+m} offset:{sl + u*4096}" for z in range(2) for m in range(8) for u in range(2)]

def qproj(A, C, vm, issued, grp):
    mf = []; ops = []; ch = Chain()
    for j in range(18):
        G = 20 * j; p = j & 1; nxt = j + 1
        for t in range(8):
            for k in range(3 if t < 4 else 2):
                d = vO + 32 * k + 4 * t
                mf.append(f"{MF} {r4('v', d)}, {r4('a', aWA+32*p+4*t)}, {r4('a', aWB+12*p+4*k)}, {'0' if j == 0 else r4('v', d)}")
        b0 = G + C.wg + 1
        bar = None
        if nxt < 18:
            wv = waitop([("wq", nxt)] + ([("x", nxt >> 1)] if p else []), "lgkmcnt(0)", lo=b0 - 1, dl=b0 - 1)
            bar = Op("s_barrier", "b", lo=b0, dl=b0, after=[wv]); ops += [wv, bar]
            last = bar
            need = [0, 1, 2] + [x for t in range(8) for x in [3 * t if t < 4 else 4 + 2 * t] * 2]
            rds = sorted(zip(need, range(19), w_reads(nxt)), key=lambda x: (x[0] + (0.5 if x[1] in (3, 4) else 0), x[1])) if C.wp else zip(need, range(19), w_reads(nxt))
            for n, (nd, _, (kind, t)) in enumerate(rds):
                last = Op(t, kind if C.wp else "d", lo=b0 + int(n * C.wp), dl=G + 20 + min(nd - 3, C.wg - 2), pri=G, same=[last]); ops.append(last)
        t = (nxt >> 1) + 1
        gaps = [b0 + 10, b0 + 13, b0 + 16, b0 + 19] if p and t < 9 else [b0 + 3, b0 + 8, b0 + 13, b0 + 18]
        if p and t < 9: ch.group(ops, dma_x(t), ("x", t), [b0 + 1, b0 + 4, b0 + 7], first=[bar])
        gaps = [min(g, 356 + k) for k, g in enumerate(gaps)]
        if j + 3 < 18: ch.group(ops, dma_wq(j + 3), ("wq", j + 3), gaps, first=[bar])
        elif issued < (C.be if grp == "b" and C.NB else 5):
            assert issued < 6 or j == 17
            ch.group(ops, dma_kv(ORDER[issued]), ORDER[issued], gaps); issued += 1
        if grp == "b" and C.NB and j == 0:
            for n, t in enumerate(k_reads(0)):
                g = 20 * (2 + n // 2) + C.wg - 6 + (n & 1); ops.append(Op(t, "D", lo=g, dl=g + 2))
    out, over, idle = schedule(mf, ops)
    print(f"qproj: overflow {over} idle {idle}", file=sys.stderr)
    for o in out:
        if isinstance(o, str): continue
        if "x" in C.abl0 and o.txt.startswith("s_mov_b32 exec_hi"): o.txt = "s_nop 0"; o.tag = None
        if "B" in C.abl0 and o.txt == "s_barrier": o.txt = "s_nop 0"
        if "L" in C.abl0 and o.kind == "L" and not isinstance(o.tag, str): o.txt = "s_nop 0"; o.tag = None
        if "d" in C.abl0 and o.kind == "d": o.txt = "s_nop 0"
    emit(A, vm, fine(C, "w", out))
    return issued

def pack(A, x, y, d, scale, swap):
    if scale:
        for r in (x, x + 2, y, y + 2): A(f"v_pk_mul_f32 v[{r}:{r+1}], v[{r}:{r+1}], {scale}")
    A(f"""v_cvt_pk_bf16_f32 v{d}, v{x}, v{x+1}
    v_cvt_pk_bf16_f32 v{d+1}, v{x+2}, v{x+3}
    v_cvt_pk_bf16_f32 v{d+2}, v{y}, v{y+1}
    v_cvt_pk_bf16_f32 v{d+3}, v{y+2}, v{y+3}""")
    return [f"v_permlane16_swap_b32 v{d}, v{d+2}", f"v_permlane16_swap_b32 v{d+1}, v{d+3}"] if swap else []

def q_epilogue(A, C, vm, issued, grp):
    w = vT
    A(f"s_lshl_b32 s{sT0}, s{sW}, 11\ns_add_u32 s{sT0}, s{sT0}, {QX}\nv_add_u32 v{w}, s{sT0}, v3\nv_xor_b32 v{w+1}, 2048, v{w}")
    pend = []
    todo = [(2, 0), (2, 1)] + [(k, p) for k in range(2) for p in range(4)]
    for n, (k, p) in enumerate(todo):
        x = vO + 32 * k + 8 * p
        sw = pack(A, x, x + 4, vQ + 16 * k + 4 * p, f"s[{sQS}:{sQS+1}]", True)
        for t in pend: A(t)
        pend = sw
        if k == 2: pend = pend + [f"ds_write_b128 v{w}, {r4('v', vQ+32+4*p)} offset:{p*1024}"]
        if n >= 2 and issued < C.qi and n % 3 == 2:
            for t in dma_kv(ORDER[issued]): A(t)
            vm.add(ORDER[issued], 4); issued += 1
    for t in pend: A(t)
    pre = grp == "b" and C.NB >= 3
    if C.hop in (1, 3) and grp == "a": A(";hop")
    n = vm.wait("K0", *(("K1", "V0") if pre else ()))
    A((f"s_waitcnt vmcnt({n}) lgkmcnt(0)" if n is not None else "s_waitcnt lgkmcnt(0)") + "\ns_barrier")
    if not (grp == "b" and C.NB):
        for t in k_reads(0): A(t)
    for p in range(2): A(f"ds_read_b128 {r4('v', vQ+40+4*p)}, v{w+1} offset:{p*1024}")
    return pre, issued

def qk(i, jb, c0="0"):
    o = []
    for kt in range(2):
        for p in range(4):
            d = vS + 8 * jb + 4 * kt
            o.append(f"{MF} {r4('v', d)}, {r4('a', aK+64*(i&1)+32*JSET[jb]+16*kt+4*p)}, {r4('v', vQ+16*JSLOT[jb]+4*p)}, {c0 if p == 0 else r4('v', d)}")
    return o
def pv(jb, first, lead=False):
    k = JSLOT[jb]; pp = r4("v", vS + 8 * jb)
    o = [f"{MF} {r4('v', vO+32*k+4*m)}, {r4('a', aV+32*JSET[jb]+4*m)}, {pp}, {'0' if first else r4('v', vO+32*k+4*m)}" for m in range(8)]
    l = [f"{MF} {r4('a', aL+4*k)}, {r4('a', aONE)}, {pp}, {'0' if first else r4('a', aL+4*k)}"]
    return l + o if lead else o + l

def attention(A, C, vm, pre, issued, extra, lag):
    mf = []; ops = []; ch = Chain()
    xg = 20 if pre else C.xg
    wx = waitop(["K1", "V0"], "lgkmcnt(0)", lo=xg, dl=xg)
    bx = Op("s_barrier", "b", lo=xg + 1, dl=xg + 1, after=[wx])
    if pre: bx = None
    else: ops += [wx, bx]
    g0 = 2 if issued < 5 else C.g0 if pre else xg + 4; sp = min((72 - g0) / (4 * max(1, 7 - issued)), 6)
    while issued < (5 if lag else 7):
        ch.group(ops, dma_kv(ORDER[issued]), ORDER[issued], [int(g0 + sp * a) for a in range(4)], first=[bx] if issued >= 5 else []); issued += 1; g0 += 4 * sp
    gate = None if pre else bx
    for i in range(8):
        G = 85 * i
        for jb in range(5): mf += qk(i, jb)
        for jb in range(5): mf += pv(jb, i == 0 and jb < 3, i == 7)
        for jb in range(5):
            s0 = vS + 8 * jb; dl = G + 38 + 9 * jb
            ex = [Op(f"v_exp_f32 v{s0+k}, v{s0+k}", "e", lo=G + 8 * jb + (7 if k < 4 else 11), dl=dl - 12 + k + k // 2) for k in range(8)]
            prev = None
            for k in range(4):
                prev = Op(f"v_cvt_pk_bf16_f32 v{s0+k}, v{s0+2*k}, v{s0+2*k+1}", "v", dl=dl - 9 + 3 * k, after=[ex[2*k], ex[2*k+1]], same=[prev]); ops.append(prev)
            ops += ex
        last = gate
        if i == 7 and C.latev:
            wv = waitop(["V7"], lo=G + C.latev, dl=G + C.latev)
            last = Op("s_barrier", "b", lo=G + C.latev + 1, dl=G + C.latev + 1, after=[wv]); ops += [wv, last]
        for k, t in enumerate(v_reads(i)):
            z, m = k >> 4, (k >> 1) & 7
            if z == 0: lo, dl = G - 27 + m, G + 28 + m
            elif m < C.vz: lo, dl = G - 9 + m, G + 30 + m
            else: lo, dl = G + C.v0 + C.v1 * (m - C.vz), G + C.v0 + 2 + C.v1 * (m - C.vz)
            if i == 0 and not pre: lo, dl = (0, xg + 3 + (34 - xg) * m // 8) if z == 0 else (0, 40 + 3 * m)
            if i == 7 and C.latev: lo, dl = (G + C.latev + 1 + 2 * m, G + 33 + m) if z == 0 else (G + 40 + 2 * m, G + 42 + 2 * m)
            last = Op(t, "d", lo=lo, dl=dl, pri=dl if (z and m >= C.vz) or (i == 0 and not pre) else G - 60, same=[last]); ops.append(last)
        if i < 7:
            last = gate
            for t in k_reads(i + 1):
                last = Op(t, "D", lo=G + 9, dl=G + C.kd, pri=G - 50, same=[last]); ops.append(last)
            wv = waitop([f"K{i+2}", f"V{i+1}"] if i < 6 or not C.latev else [], "lgkmcnt(0)", lo=G + 74, dl=G + 74, after=[last])
            gate = Op("s_barrier", "b", lo=G + 75, dl=G + 75, after=[wv]); ops += [wv, gate]
            for n in range(2):
                if issued < 16:
                    ch.group(ops, dma_kv(ORDER[issued]), ORDER[issued], [G + g for g in C.dg[4*n:4*n+4]], first=[gate]); issued += 1
            if lag and i == lag - 1:
                for n in range(2):
                    ch.group(ops, dma_kv(ORDER[issued]), ORDER[issued], [G + 105 + 24 * n + 6 * a for a in range(4)], first=[gate]); issued += 1
        extra(ops, ch, i, G, gate)
        if i == 7:
            w = Op("s_waitcnt lgkmcnt(0)", "s", lo=G + 62, dl=G + 64, after=[last])
            sb = Op("s_barrier", "b", lo=G + 63, dl=G + 68, after=[w]); ops += [w, sb]
            prev = None
            for lo, t in norm_pre():
                kind = "L" if t.startswith("ds_") else "e" if t.startswith("v_rcp") else t[0]
                prev = Op(t, kind, lo=G + lo, dl=G + (min(84, lo + 2) if lo > 0 else 55), same=[prev] + ([sb] if kind == "L" else []), after=[prev] if prev and ORD[prev.kind] > ORD[kind] else [])
                ops.append(prev)
        if C.sg == 2 and i in (4, 5, 6): ops.append(Op(stamp_txt(C, i - 3), "s", lo=G + 71, dl=G + 73))
        if i == 3 and C.stamps and not C.fine: ops.append(Op(stamp_txt(C, 4), "s", lo=G + 71, dl=G + 73))
    out, over, idle = schedule(mf, ops, 6)
    print(f"attention: overflow {over} idle {idle}", file=sys.stderr)
    for o in out:
        if isinstance(o, str): continue
        if "B" in C.abl and o.txt == "s_barrier": o.txt = "s_nop 0"
        if "L" in C.abl and o.kind == "L": o.txt = "s_nop 0"
        if "d" in C.abl and o.kind in "dD": o.txt = "s_nop 0"
    emit(A, vm, fine(C, "a", out))

def safe_attention(A, name):
    t, u = vT + 4, vT + 5
    A(f"""{name}_safe:
    s_nop 7
    s_mov_b32 s{sCNT}, 0
    v_lshrrev_b32 v{t}, 5, v2
    v_bfe_u32 v{u}, v2, 4, 1
    v_lshl_add_u32 v{t}, v{u}, 1, v{t}
    v_and_b32 v{u}, 15, v2
    v_xor_b32 v{t}, v{t}, v{u}
    v_lshlrev_b32 v{t}, 4, v{t}
    s_lshl_b32 s{sT1}, s{sS}, 7
    v_xor_b32 v{t}, s{sT1}, v{t}
    v_lshl_add_u32 v{t}, v{u}, 8, v{t}
    s_lshl_b32 s{sT1}, s{sS}, 13
    s_add_u32 s{sT1}, s{sT1}, s{sT2}
    v_add_u32 v{vKR}, s{sT1}, v{t}""")
    for k in range(1, 8): A(f"v_xor_b32 v{vKR+k}, {64*(k & 3) + 8192*(k >> 2)}, v{vKR}")
    for k in range(3): A(f"v_mov_b32 v{vNEG+k}, 0x7f800000")
    for r in range(96): A(f"v_mov_b32 v{vO+r}, 0")
    for r in range(12): A(f"v_accvgpr_write_b32 a{aL+r}, 0")
    A(f"{name}_sl:\ns_barrier")
    for nm, slot in (("K0", f"s{sT2}"), ("V0", vslot(1))):
        x = dma_kv(nm, slot, f"s{sCNT}")
        A("\n".join([x[0], x[1]] + x[2:]))
    A("s_waitcnt vmcnt(0)\ns_barrier")
    for x in k_reads(0, 0, 0) + v_reads(0, vslot(1)): A(x)
    A("s_waitcnt lgkmcnt(0)")
    for jb in range(5):
        s0 = vS + 8 * jb; k = JSLOT[jb]
        for m in qk(0, jb): A(m)
        A(f"""s_nop 7
        v_max3_f32 v{t}, v{s0}, v{s0+1}, v{s0+2}
        v_max3_f32 v{t}, v{t}, v{s0+3}, v{s0+4}
        v_max3_f32 v{t}, v{t}, v{s0+5}, v{s0+6}
        v_max_f32 v{t}, v{t}, v{s0+7}
        v_mov_b32 v{u}, v{t}
        s_nop 1
        v_permlane32_swap_b32 v{t}, v{u}
        s_nop 1
        v_max_f32 v{t}, v{t}, v{u}
        v_mov_b32 v{u}, v{t}
        s_nop 1
        v_permlane16_swap_b32 v{t}, v{u}
        s_nop 1
        v_min3_f32 v{t}, -v{t}, -v{u}, v{vNEG+k}
        v_sub_f32 v{u}, v{t}, v{vNEG+k}
        v_exp_f32 v{u}, v{u}
        v_mov_b32 v{vNEG+k}, v{t}""")
        for r in range(8): A(f"v_add_f32 v{s0+r}, v{s0+r}, v{t}")
        for r in range(8): A(f"v_exp_f32 v{s0+r}, v{s0+r}")
        for r in range(32): A(f"v_mul_f32 v{vO+32*k+r}, v{vO+32*k+r}, v{u}")
        for r in range(4): A(f"v_accvgpr_read_b32 v{t}, a{aL+4*k+r}\nv_mul_f32 v{t}, v{t}, v{u}\nv_accvgpr_write_b32 a{aL+4*k+r}, v{t}")
        for r in range(4): A(f"v_cvt_pk_bf16_f32 v{s0+r}, v{s0+2*r}, v{s0+2*r+1}")
        A("s_nop 1")
        for m in pv(jb, False): A(m)
    A(f"s_nop 7\ns_add_u32 s{sCNT}, s{sCNT}, 16384\ns_cmp_lt_u32 s{sCNT}, 131072\ns_cbranch_scc1 {name}_sl\ns_barrier")
    for k in range(8): A(f"v_xor_b32 v{vKR+k}, 8192, v{vWR+k}")
    A(f"s_setpc_b64 s[{sRET}:{sRET+1}]")

EXB = 0
SAFEK = 0
def ob(k, p): return vO + 32 * k + 8 * p
def norm_pre():
    w, r, fa, l = vT, vT + 1, vT + 2, vE
    o = [(-160, t.strip()) for t in f"""s_mul_i32 s{sT0}, s{sW}, 5120
    s_add_u32 s{sT0}, s{sT0}, {EXB}
    v_add_u32 v{w}, s{sT0}, v3
    s_xor_b32 s{sT0}, s{sW}, 1
    s_mul_i32 s{sT0}, s{sT0}, 5120
    s_add_u32 s{sT0}, s{sT0}, {EXB}
    v_add_u32 v{r}, s{sT0}, v3
    s_lshl_b32 s{sT0}, s{sW}, 2
    s_add_u32 s{sT0}, s{sT0}, {EXB + 20480}
    v_mov_b32 v{fa}, s{sT0}
    v_mov_b32 v{l+3}, v{vNEG+2}""".split("\n")]
    o += [(63, f"v_accvgpr_read_b32 v{l+2}, a{aL+8}"), (63, f"v_subrev_u32 v{fa+3}, {LLO}, v{l+2}"), (66, f"ds_write_b64 v{w}, v[{l+2}:{l+3}] offset:4096")]
    o += [(70, f"ds_write_b128 v{w}, {r4('v', vO+80)} offset:0"), (72, f"v_accvgpr_read_b32 v{l}, a{aL}"), (72, f"v_subrev_u32 v{fa+1}, {LLO}, v{l}")]
    o += [(72 + 2 * m, f"ds_write_b128 v{w}, {r4('v', vO+80+4*m)} offset:{m*1024}") for m in range(1, 4)]
    o += [(79, f"v_rcp_f32 v{l}, v{l}"), (80, f"v_accvgpr_read_b32 v{l+1}, a{aL+4}"), (80, f"v_subrev_u32 v{fa+2}, {LLO}, v{l+1}"),
          (81, f"v_max3_u32 v{fa+1}, v{fa+1}, v{fa+2}, v{fa+3}"), (81, f"v_cmp_lt_u32 vcc, {LHI - LLO}, v{fa+1}"), (82, f"v_rcp_f32 v{fa+5}, v{l+1}"),
          (83, f"s_cmp_lg_u64 vcc, 0\ns_cselect_b32 s{sT0}, s{sSAFE}, 0"), (83, f"v_mov_b32 v{fa+1}, s{sT0}"), (84, f"ds_write_b32 v{fa}, v{fa+1}")]
    return o

def normalise(A, C, tag, name, store, prebar=lambda: "", checked=lambda: None):
    w, r, fa = vT, vT + 1, vT + 2
    l = vE
    A(f"{tag}_x:")
    for p in range(2):
        pack(A, ob(0, p), ob(0, p) + 4, ob(0, p), f"v[{l}:{l+1}] op_sel_hi:[1,0]", False); store(0, p)
    A(f"""v_mov_b32 v{fa}, {EXB + 20480}
    s_waitcnt {prebar()}lgkmcnt(0)
    s_barrier
    ds_read_b128 {r4('v', vS+16)}, v{fa}
    ds_read_b64 v[{vS+20}:{vS+21}], v{r} offset:4096""")
    for m in range(4): A(f"ds_read_b128 {r4('v', vS+4*m)}, v{r} offset:{m*1024}")
    for p in range(2, 4):
        pack(A, ob(0, p), ob(0, p) + 4, ob(0, p), f"v[{l}:{l+1}] op_sel_hi:[1,0]", False); store(0, p)
    if not C.cl: checked()
    lo, no, lp, np_, t = l + 2, l + 3, vS + 20, vS + 21, fa
    sc = f"v[{fa+5}:{fa+6}] op_sel_hi:[1,0]"
    A(f"""v_or3_b32 v{vS+16}, v{vS+16}, v{vS+17}, v{vS+18}
    v_or_b32 v{vS+16}, v{vS+16}, v{vS+19}
    v_cmp_ne_u32 vcc, 0, v{vS+16}
    v_min_f32 v{t}, v{no}, v{np_}
    v_sub_f32 v{no}, v{t}, v{no}
    v_sub_f32 v{np_}, v{t}, v{np_}
    v_exp_f32 v{no}, v{no}
    v_exp_f32 v{np_}, v{np_}
    s_cbranch_vccnz {tag}_fb""")
    pack(A, ob(1, 0), ob(1, 0) + 4, ob(1, 0), sc, False); store(1, 0)
    A(f"v_mul_f32 v{lo}, v{lo}, v{no}\nv_fma_f32 v{lo}, v{lp}, v{np_}, v{lo}\nv_rcp_f32 v{t}, v{lo}")
    pack(A, ob(1, 1), ob(1, 1) + 4, ob(1, 1), sc, False); store(1, 1)
    A(f"v_mul_f32 v{lo}, v{no}, v{t}\nv_mul_f32 v{lp}, v{np_}, v{t}")
    for p in range(2):
        for k in range(8 * p, 8 * p + 8, 2): A(f"v_pk_mul_f32 v[{vO+64+k}:{vO+65+k}], v[{vO+64+k}:{vO+65+k}], v[{lo}:{lo+1}] op_sel_hi:[1,0]")
        for k in range(8 * p, 8 * p + 8, 2): A(f"v_pk_fma_f32 v[{vO+64+k}:{vO+65+k}], v[{vS+k}:{vS+k+1}], v[{lp}:{lp+1}], v[{vO+64+k}:{vO+65+k}] op_sel_hi:[1,0,1]")
        pack(A, ob(2, p), ob(2, p) + 4, ob(2, p), None, False); store(2, p)
        pack(A, ob(1, 2 + p), ob(1, 2 + p) + 4, ob(1, 2 + p), sc, False); store(1, 2 + p)
    if C.cl: checked()
    redo = "\ns_nop 1\n".join(t for _, t in norm_pre())
    return f"{tag}_fb:\ns_waitcnt vmcnt(0) lgkmcnt(0)\ns_mov_b32 s{sSAFE}, 0\ns_mov_b32 s{sT2}, {SAFEK}\ns_call_b64 s[{sRET}:{sRET+1}], {name}_safe\n{redo}\ns_nop 1\ns_branch {tag}_x"

def dump_setup(A):
    A(f"""v_and_b32 v{vXR}, 15, v2
    v_lshrrev_b32 v{vXR+1}, 4, v2
    v_lshlrev_b32 v{vXR}, 13, v{vXR}
    v_lshl_add_u32 v{vXR}, v{vXR+1}, 3, v{vXR}
    s_lshl_b32 s{sT0}, s{sS}, 7
    v_add_u32 v{vXR}, s{sT0}, v{vXR}
    v_xor_b32 v{vXR+1}, 128, v{vXR}
    s_mul_i32 s{sU+2}, s{sB}, {80*8192}
    s_lshl_b32 s{sT1}, s{sHKV}, 9
    s_add_u32 s{sU+2}, s{sU+2}, s{sT1}
    s_lshl_b32 s{sT1}, s{sH}, 8
    s_add_u32 s{sU+2}, s{sU+2}, s{sT1}
    s_add_u32 s{sU+2}, s{sU+2}, {1280*8192}
    s_lshl_b32 s{sT0}, s{sS}, 1
    s_add_u32 s{sT0}, s{sT0}, s{sH}
    s_lshl_b32 s{sT0}, s{sT0}, 17
    s_xor_b32 s{sT1}, s{sT0}, {1 << 17}
    s_add_u32 s{sU}, s{sU+2}, s{sT0}
    s_add_u32 s{sU+1}, s{sU+2}, s{sT1}
    s_add_u32 s{sU+2}, s{sU+2}, {4 << 17}""")

def flush(A, C, name):
    if not C.stamps: return
    A(f"s_waitcnt lgkmcnt(0)\ns_lshl_b32 s{sT0}, s2, 6\ns_add_u32 s{sT0}, s{sT0}, {STAMP}\ns_cmp_lg_u32 s{sW}, 0\ns_cbranch_scc1 {name}_end\ns_mov_b64 exec, 1")
    for i in range(C.stamps): A(f"v_mov_b32 v4, s{sST+2*i}\nbuffer_store_dword v4, v1, s[{SWS}:{SWS+3}], s{sT0} offen offset:{4*i}")

MID = dict(vz=4, v0=20, v1=10, dg=(78, 82, 86, 90, 104, 116, 128, 140))
MID2 = dict(vz=4, v0=14, v1=8, dg=(78, 82, 86, 90, 128, 136, 144, 152))
def path(C, name, grp, stubs):
    import copy
    C = copy.copy(C)
    if grp in C.l2: C.of = ""
    if grp in C.mid:
        for k, val in (MID2 if "2" in C.mid else MID).items(): setattr(C, k, val)
    A = Asm(); vm = VM(); tag = f"{name}_{grp}"
    T = None
    if C.tail == "h":
        import tail2
        T = tail2.Tail(C, name, grp, A, vm, stubs)
    issued = 0
    if grp == "b":
        code_touch(A, name)
        def mid():
            kv_setup(A)
            if T: T.start()
        def first():
            srd(A, SWS, 18, None, 128 << 20)
            if T: T.clear()
        if T: T.clear_prepare()
        touches(A, C, vm, first, mid)
        wo_touches(A, C, vm)
        w_srds(A)
        A(";hot")
        w_addresses(A)
        late_addresses(A, C)
        if T: A("\n".join(T.touch_setup()))
        if C.hop: A(";hop")
        for n in range(C.NB):
            for t in dma_kv(ORDER[n]): A(t)
            vm.add(ORDER[n], 4)
            if n == min(C.NB - 1, C.rn) and T: T.ready()
        issued = C.NB
    else:
        w_addresses(A)
        if C.sg == 4: stamp(A, C, 5)
        A("s_waitcnt lgkmcnt(0)")
        if C.sg == 4: stamp(A, C, 6)
        w_srds(A)
    first = [(dma_x(0), ("x", 0), 3), (dma_wq(0), ("wq", 0), 4), (dma_wq(1), ("wq", 1), 4), (dma_x(1), ("x", 1), 3), (dma_wq(2), ("wq", 2), 4)]
    for n, (x, tg, cnt) in enumerate(first + [([], None, 0)]):
        if n == C.f0 and grp == "a":
            if C.sg == 4: stamp(A, C, 7)
            kv_setup(A)
            srd(A, SWS, 18, None, 128 << 20)
            A(";hot")
            late_addresses(A, C)
            if T: A("\n".join(T.touch_setup()))
            if C.hop: A(";hop")
        for t in x: A(t)
        vm.add(tg, cnt)
    if C.sg == 4: stamp(A, C, 8)
    A(f"s_waitcnt vmcnt({vm.wait(('x', 0), ('wq', 0))})\ns_barrier")
    stamp(A, C, 1)
    for _, t in w_reads(0): A(t)
    issued = qproj(A, C, vm, issued, grp)
    stamp(A, C, 2)
    pre, issued = q_epilogue(A, C, vm, issued, grp)
    if T: T.before_attention()
    stamp(A, C, 3)
    attention(A, C, vm, pre, issued, T.hook if T else lambda *a: None, C.lagb if grp == "b" else C.laga)
    stamp(A, C, 5)
    if T: T.run()
    else:
        dump_setup(A)
        def store(k, p):
            for e in range(2): A(f"buffer_store_dwordx2 v[{ob(k, p)+2*e}:{ob(k, p)+2*e+1}], v{vXR + (p >> 1)}, s[{SWS}:{SWS+3}], s{sU+k} offen offset:{(p & 1)*64 + e*32}")
        stubs.append(normalise(A, C, tag, name, store))
        stamp(A, C, 6)
        flush(A, C, name)
        A("s_endpgm")
    return A

def isins(l):
    t = l.strip(); return t and not t.endswith(":") and not t.startswith((";", "."))
def sizes(lines):
    import subprocess, re
    src = '.amdgcn_target "amdgcn-amd-amdhsa--gfx950"\n.text\nT:\n' + "\n".join(re.sub(r"(s_c?branch\S*) \S+", r"\1 T", l) for l in lines if isins(l)) + "\ns_endpgm\n"
    open("sz.s", "w").write(src)
    subprocess.run(["clang", "-x", "assembler", "-target", "amdgcn-amd-amdhsa", "-mcpu=gfx950", "-c", "sz.s", "-o", "sz.o"], check=True)
    d = subprocess.run(["llvm-objdump", "-d", "--mcpu=gfx950", "sz.o"], capture_output=True, text=True).stdout
    ad = [int(m.group(1), 16) for m in re.finditer(r"// ([0-9A-F]+):", d)]
    return [b - a for a, b in zip(ad, ad[1:])]
HOPLEN = 36
def page_hops(lines, tag):
    sz = iter(sizes(lines)); ad = 0; page = 1; out = []; marks = []
    for i, l in enumerate(lines):
        if l.strip() == ";hop": marks.append([len(out), []]); out.append(l); ad += HOPLEN; continue
        out.append(l)
        if not isins(l): continue
        ad += next(sz)
        if ad >= page * 4096 and ("v_mfma" in l or ad >= page * 4096 + 40):
            if marks: marks[-1][1].append(len(out)); out.append(None); ad += 4
            page += 1
    for k, (pos, st) in enumerate(marks):
        lab = lambda n: f"{tag}_h{k}_{n}" if n < len(st) else f"{tag}_h{k}_r"
        for n, p in enumerate(st): out[p] = f"{lab(n)}:\n    s_cbranch_execz {lab(n + 4)}"
        out[pos] = "    s_mov_b64 exec, 0\n" + "".join(f"    s_cmp_eq_u32 s{sW}, {w}\n    s_cbranch_scc1 {lab(w)}\n" for w in range(3)) + f"    s_branch {lab(3)}\n{lab(99)}:\n    s_mov_b64 exec, -1"
    return out

def kernel(C, name):
    hazard.IGNORE_STAMPS = bool(C.fine)
    P = Asm(); prologue(P, C, name)
    stubs = []
    pa = path(C, name, "a", stubs); pb = path(C, name, "b", stubs)
    for p_ in (pa, pb):
        p_.L, paid = hazard.autowait(p_.L)
        p_.L, forced = hazard.fix(p_.L)
        print("forced pads:", forced, "paid waits:", paid, file=sys.stderr)
    R = Asm(); safe_attention(R, name)
    bad = hazard.check(P.L + pa.L, "a") + hazard.check(P.L + pb.L, "b") + hazard.check(R.L, "safe")
    S = Asm()
    for t in stubs: S(t)
    bad += hazard.check(S.L, "stubs")
    assert not bad, f"{bad} hazards"
    mid = Asm(); mid(f"s_bitcmp1_b32 s{sJ}, 0\ns_cbranch_scc1 {name}_pb0")
    txt = P.text() + mid.text(); hot = ""
    for p_, gname in ((pa, "a"), (pb, "b")):
        n = next(i for i, l in enumerate(p_.L) if l.strip() == ";hot")
        txt += f"{name}_p{gname}0:\n" + "\n".join(p_.L[:n]) + f"\n    s_branch {name}_p{gname}\n"
        hot += f".p2align 12\n{name}_p{gname}:\n" + "\n".join(page_hops(p_.L[n + 1:], f"{name}_{gname}")) + "\n"
    return txt + S.text() + hot + f"{name}_hot:\n" + R.text() + f"{name}_end:\n    s_endpgm\n"

def main():
    from gen_naive import naive_parts
    cfgs = json.loads(sys.argv[1]); names = []
    for c in cfgs:
        n = "j" + "".join(f"_{kk}{vv}" for kk, vv in c.items()); names.append(n)
        C = Cfg(**c)
        l, k = naive_parts()
        if C.tail == "dump": txt = build([("fa_kernel", 256, 256, 163840), l[2]], [("fa_kernel", kernel(C, "fa"), 256, 256), k[2]])
        elif C.stamps == 11:
            from emu3 import after
            txt = build([("fa_kernel", 256, 256, 163840), ("af_kernel", 256, 64, 0)], [("fa_kernel", kernel(C, "fa"), 256, 256), ("af_kernel", after("af", 11), 32, 0)])
        else: txt = build([(KN + "_kernel", 256, 256, 163840)], [(KN + "_kernel", kernel(C, KN), 256, 256)])
        open(n + ".s", "w").write(txt)
    open("list.txt", "w").write(" ".join(x + ".s" for x in names))

if __name__ == "__main__":
    import gen2
    gen2.main()
```

```python
import sys, math, struct, json
from asmlib import *
from sched import Op, schedule, ORDER as ORD
import hazard
QSCALE = struct.unpack("<I", struct.pack("<f", math.log2(math.e) / math.sqrt(128.0)))[0]
STAMP = 64 << 20
OOB = 0x7fff0000
SPIN = 200000
MF = "v_mfma_f32_16x16x32_bf16"
LLO, LHI = (127 - 60) << 23, (127 + 60) << 23

SDBG, SX, SK, SV, SWQ, SWO, SWS, SOUT = 4, 20, 24, 28, 32, 36, 40, 44
sW, sH, sS, sJ, sHG, sB, sHKV, sW4K, sX0, sT0, sT1, sT2, sQS, sRET, sSAFE, sCNT = 48, 49, 50, 51, 52, 53, 54, 55, 56, 57, 58, 59, 60, 62, 64, 65
sU = 8
sST = 76
vWD, vXD, vKD, vVD, vWR, vXR, vKR, vVR, vT = 4, 8, 11, 15, 17, 25, 31, 39, 55
vQ, vO, vS, vE = 64, 112, 208, 248
vNEG = 252
aK, aV, aL, aONE = 0, 128, 192, 204
aWA, aWB = 64, 208
XR, WQR, QX = 94208, 114688, 114688
def kslot(i): return (i % 3) * 16384
def vslot(i): return 49152 + (i % 3) * 16384
ORDER = ["K0"] + [x for i in range(7) for x in (f"K{i+1}", f"V{i}")] + ["V7"]
JSLOT, JSET = [0, 1, 2, 0, 1], [0, 0, 0, 1, 1]

class Cfg:
    nact = 256; abl = ""; abl0 = ""; fine = ""; abl2 = ""; wg = 7; cyc = 0; NB = 5; lagb = 0; laga = 0; latev = 0; tlb = 0; wpre = ""; tsh = 16; stamps = 0; tail = "h"; split = 3; touch = "KWm"; outf = ""; wsp = 0; wp = 0; vz = 0; v0 = 10; v1 = 6; kd = 70; sr = 0; s0 = 1; fga = 40; pc = 14; am = 0; a3 = 25; ea = ""; eb = "01"; va = ""; vb = ""; l0 = 2.6; p1 = 45; hop = 2; da = "540-4.5"; db = "560-4.5"
    dg = (76, 78, 80, 82, 85, 87, 89, 91); of = "sc1"; dual = 1; f0 = 3; qi = 3; xg = 18; two = "b"; f1 = 8; f1a = 20; q2 = 30; nost = ""; be = 6; g0 = 2; bpre = 4; r7 = 4; l1e = 44; cl = 1; f2s = 2; p0 = 0; pl = 0; c7 = 2; c6 = 4; sw = 1; s3 = 4; s4 = 6; l2 = ""; mid = "ab"; taa = "a433"; tba = "b436"; tab = "b433"; tbb = "a150"; wbb = 460; rn = 1; tf = ""; apre = 3; wa = 540; wb = -1; lf = "sc1"; fg = 50; lr = 4.2; la = 3.4; pd = 1; ps = 4; na = 7; rush = 3; pg = 140; aq = 62; lead = 12; no = 7; sg = 0
    def __init__(self, **kw):
        for k, val in kw.items(): setattr(self, k, val)
        if isinstance(self.dg, str): self.dg = tuple(int(x) for x in self.dg.split('-'))

class VM:
    def __init__(self): self.q = []
    def add(self, tag, n=1): self.q += [tag] * n
    def wait(self, *tags):
        idx = [i for i, t in enumerate(self.q) if t in tags]
        if not idx: return None
        n = len(self.q) - 1 - max(idx)
        self.q = self.q[max(idx) + 1:]
        assert n <= 63
        return n

def srd(A, d, base, off, size):
    if off is None: A(f"s_mov_b32 s{d}, s{base}\ns_mov_b32 s{d+1}, s{base+1}")
    else: A(f"s_add_u32 s{d}, s{base}, {off}\ns_addc_u32 s{d+1}, s{base+1}, 0")
    A(f"s_mov_b32 s{d+2}, {size}\ns_mov_b32 s{d+3}, 0x20000")
def stamp_txt(C, i): return f"{'s_memtime' if C.cyc else 's_memrealtime'} s[{sST+2*i}:{sST+2*i+1}]"
def stamp(A, C, i):
    if C.sg == 4 and 5 <= i <= 8 and any(f's[{sST+2*i}:' in l for l in A.L): return
    if C.stamps and not C.fine: A(stamp_txt(C, i))
def fine(C, phase, out):
    if not C.fine or C.fine[0] != phase: return out
    g0, dg = (int(x) for x in C.fine[1:].split("-")); res = []; n = 0
    for i, o in enumerate(out):
        res.append(o)
        if isinstance(o, str) and o.startswith(MF):
            if n >= g0 and (n - g0) % dg == 0 and (n - g0) // dg < 13:
                res.append(stamp_txt(C, (n - g0) // dg))
                if out[i + 1] == ";sfree": out[i + 1] = ";"
            n += 1
    return res
def r4(p, i): return f"{p}[{i}:{i+3}]"

def emit(A, vm, out):
    for o in out:
        if isinstance(o, str): A(o); continue
        if getattr(o, "want", None) is not None:
            n = vm.wait(*o.want)
            if n is None: A(f"s_waitcnt {o.txt}" if o.txt else ";sfree")
            else: A(f"s_waitcnt vmcnt({n}) {o.txt}")
        else: A(o.txt)
        if getattr(o, "tag", None) is not None: vm.add(o.tag, getattr(o, "cnt", 1))
def waitop(tags, extra="", **kw):
    o = Op(extra, "s", **kw); o.want = tags; return o
class Chain:
    def __init__(self): self.last = None
    def group(self, ops, x, tag, gaps, first=(), nscal=2):
        prev = self.last
        for t in reversed(x[:nscal]):
            o = Op(t, "s", lo=gaps[0] - 2, dl=gaps[0], pri=gaps[0] - 2, after=[prev] if prev and prev.kind == "L" else [], same=[prev] if prev and prev.kind == "s" else [])
            ops.append(o); prev = o
        for t, gp in zip(x[len(x) - len(gaps):] if nscal == 1 else x[2:], gaps):
            o = Op(t, "L", lo=gp, dl=gp, after=[prev] + list(first))
            o.tag = tag; ops.append(o); prev = o
        self.last = prev
        return prev

def prologue(A, C, name):
    A(f"""s_load_dwordx16 s[4:19], s[0:1], 0
    s_cmp_ge_u32 s2, {C.nact}
    s_cbranch_scc1 {name}_end""")
    stamp(A, C, 0)
    A(f"""v_lshrrev_b32 v1, 6, v0
    v_and_b32 v2, 63, v0
    v_readfirstlane_b32 s{sW}, v1
    s_and_b32 s{sHG}, s2, 3
    s_bfe_u32 s{sJ}, s2, 0x20003
    s_lshr_b32 s{sB}, s2, 5
    s_bfe_u32 s{sT0}, s2, 0x10002
    s_lshl_b32 s{sT0}, s{sT0}, 3
    s_add_u32 s{sB}, s{sB}, s{sT0}
    s_lshl_b32 s{sHKV}, s{sHG}, 2
    s_add_u32 s{sHKV}, s{sHKV}, s{sJ}
    s_lshr_b32 s{sH}, s{sW}, 1
    s_and_b32 s{sS}, s{sW}, 1
    s_lshl_b32 s{sW4K}, s{sW}, 12""")

def code_touch(A, name):
    A(f"""s_getpc_b64 s[{sRET}:{sRET+1}]
    {name}_pc:
    s_sub_u32 s{sRET}, s{sRET}, {name}_pc-{name}_kernel
    s_subb_u32 s{sRET+1}, s{sRET+1}, 0
    s_lshr_b32 s{sT0}, s2, 4
    v_lshl_add_u32 v1, v0, 4, s{sT0}
    v_lshlrev_b32 v1, 7, v1
    v_min_u32 v1, {name}_hot-{name}_kernel-4, v1
    s_cmp_lg_u32 s{sW}, 0
    s_cbranch_scc1 {name}_nc
    global_load_dword v255, v1, s[{sRET}:{sRET+1}]
    {name}_nc:""")

def w_addresses(A):
    t = vT
    A(f"""s_mul_i32 s{sX0}, s{sW}, 2560
    s_add_u32 s{sX0}, s{sX0}, {XR}
    v_lshrrev_b32 v{t}, 4, v2
    v_and_b32 v{t+1}, 15, v2
    v_lshlrev_b32 v{t+2}, 1, v{t}
    v_xor_b32 v{t+2}, v{t+1}, v{t+2}
    v_lshlrev_b32 v{t+2}, 4, v{t+2}
    v_lshl_add_u32 v{vWD}, v{t}, 13, v{t+2}
    v_xor_b32 v{vWD+2}, 128, v{vWD}
    v_add_u32 v{vWD+1}, {4*8192-1024}, v{vWD}
    v_add_u32 v{vWD+3}, {12*8192-3072}, v{vWD+2}
    v_add_u32 v{vWD+2}, {8*8192-2048}, v{vWD+2}
    v_lshrrev_b32 v{t}, 3, v2
    v_and_b32 v{t+1}, 7, v2
    s_mul_i32 s{sT0}, s{sW}, 20
    v_add_u32 v{t+2}, s{sT0}, v{t}
    v_bfe_u32 v{t+3}, v{t+2}, 1, 3
    v_xor_b32 v{t+3}, v{t+1}, v{t+3}
    v_mul_u32_u24 v{t+2}, 1152, v{t+2}
    v_lshl_add_u32 v{vXD}, v{t+3}, 4, v{t+2}
    v_xor_b32 v{vXD+1}, 64, v{vXD}
    v_add_u32 v{vXD+1}, {8*1152-1024}, v{vXD+1}
    v_add_u32 v{vXD+2}, {16*1152-2048}, v{vXD}""")
def w_srds(A):
    A(f"s_mul_i32 s{sT0}, s{sB}, 92160")
    srd(A, SX, 4, f"s{sT0}", 92160)
    A(f"""s_lshl_b32 s{sT0}, s{sHKV}, 9
    s_lshl_b32 s{sT2}, s{sH}, 8
    s_add_u32 s{sT0}, s{sT0}, s{sT2}
    s_lshl_b32 s{sT2}, s{sS}, 17
    s_add_u32 s{sT0}, s{sT0}, s{sT2}
    s_sub_u32 s{sT2}, {576*8192}, s{sT0}""")
    srd(A, SWQ, 10, f"s{sT0}", f"s{sT2}")
def kv_setup(A):
    t = vT
    A(f"""v_lshrrev_b32 v{t}, 4, v2
    v_and_b32 v{t+1}, 15, v2
    v_lshlrev_b32 v{t+2}, 1, v{t}
    v_xor_b32 v{t+2}, v{t+1}, v{t+2}
    v_lshlrev_b32 v{t+2}, 4, v{t+2}
    v_lshl_add_u32 v{vVD}, v{t}, 8, v{t+2}
    v_xor_b32 v{vVD+1}, 128, v{vVD}
    v_xor_b32 v{t+2}, v{t+1}, v{t}
    v_lshlrev_b32 v{t+2}, 4, v{t+2}
    v_lshl_add_u32 v{vKD}, v{t}, 8, v{t+2}
    v_xor_b32 v{vKD+1}, 64, v{vKD}
    v_xor_b32 v{vKD+2}, 128, v{vKD}
    v_xor_b32 v{vKD+3}, 192, v{vKD}
    s_lshl_b32 s{sT1}, s{sB}, 4
    s_add_u32 s{sT1}, s{sT1}, s{sHKV}
    s_lshl_b32 s{sT1}, s{sT1}, 17""")
    srd(A, SK, 6, f"s{sT1}", 131072)
    srd(A, SV, 8, f"s{sT1}", 131072)

def late_addresses(A, C):
    g, q, r, cc, t = vT, vT + 1, vT + 2, vT + 3, vT + 4
    A(f"""v_lshrrev_b32 v{g}, 4, v2
    v_and_b32 v{q}, 15, v2
    v_bfe_u32 v{r}, v2, 2, 2
    v_and_b32 v{cc}, 3, v2
    v_and_b32 v{t+2}, 1, v{g}
    v_lshl_add_u32 v{t+1}, v{t+2}, 2, v{r}
    v_lshlrev_b32 v{t+1}, 5, v{t+1}
    v_lshl_add_u32 v{t+1}, v{cc}, 3, v{t+1}
    s_lshl_b32 s{sT1}, s{sS}, 7
    v_xor_b32 v{t+1}, s{sT1}, v{t+1}
    v_lshl_add_u32 v{t}, v{g}, 3, v{r}
    v_lshl_add_u32 v{t}, v{t}, 8, v{t+1}
    s_lshl_b32 s{sT0}, s{sH}, 13
    s_add_u32 s{sT0}, s{sT0}, {WQR}
    v_add_u32 v{vWR}, s{sT0}, v{t}""")
    for k in range(1, 8): A(f"v_xor_b32 v{vWR+k}, {32*k}, v{vWR}")
    A(f"""v_lshl_add_u32 v{t}, v{g}, 2, v{r}
    v_lshl_add_u32 v{t}, v{t}, 8, v{t+1}
    s_lshl_b32 s{sT0}, s{sS}, 13
    s_add_u32 s{sT2}, s{sT0}, {vslot(0)}
    v_add_u32 v{vVR}, s{sT2}, v{t}""")
    for k in range(1, 16): A(f"v_xor_b32 v{vVR+k}, {32*(k & 7) + 8192*(k >> 3)}, v{vVR}")
    A(f"""v_lshrrev_b32 v{t}, 1, v{g}
    v_lshl_add_u32 v{t}, v{t+2}, 1, v{t}
    v_xor_b32 v{t}, v{t}, v{q}
    v_lshlrev_b32 v{t}, 4, v{t}
    v_xor_b32 v{t}, s{sT1}, v{t}
    v_lshl_add_u32 v{t}, v{q}, 8, v{t}
    v_add_u32 v{vKR}, s{sT0}, v{t}""")
    for k in range(1, 8): A(f"v_xor_b32 v{vKR+k}, {64*(k & 3) + 8192*(k >> 2)}, v{vKR}")
    A(f"""v_lshrrev_b32 v{t}, 1, v{q}
    v_xor_b32 v{t}, v{t}, v{g}
    v_lshlrev_b32 v{t}, 4, v{t}
    v_lshl_add_u32 v{t}, v{q}, 7, v{t}
    s_lshl_b32 s{sT0}, s{sS}, 1
    s_add_u32 s{sT0}, s{sT0}, s{sH}
    s_lshl_b32 s{sT0}, s{sT0}, 11
    s_xor_b32 s{sT1}, s{sT0}, 2048
    s_add_u32 s{sT0}, s{sT0}, {XR}
    s_add_u32 s{sT1}, s{sT1}, {XR}
    v_add_u32 v{vXR}, s{sT0}, v{t}
    v_add_u32 v{vXR+2}, s{sT1}, v{t}
    v_add_u32 v{vXR+4}, {XR + 8192}, v{t}""")
    for k in range(3): A(f"v_xor_b32 v{vXR+2*k+1}, 64, v{vXR+2*k}")
    A(f"""v_lshlrev_b32 v3, 4, v2
    v_mov_b32 v1, 0
    s_mov_b32 s{sQS}, {QSCALE}
    s_mov_b32 s{sQS+1}, {QSCALE}
    s_mov_b32 s{sSAFE}, 1
    v_mov_b32 v{vNEG+2}, 0
    v_mov_b32 v{t}, 0x3f803f80""")
    for i in range(4): A(f"v_accvgpr_write_b32 a{aONE+i}, v{t}")
    A(f"s_mul_i32 s{sT0}, s{sHG}, {1024*1152}")
    srd(A, SWO, 12, f"s{sT0}", 1024 * 1152)
    srd(A, SOUT, 14, None, 1280 * 1152)
    srd(A, SDBG, 16, None, 256)

def touches(A, C, vm, first, mid):
    x, w = vQ + 8, vQ + 9
    A(f"s_movk_i32 s{sX0}, 224")
    A(f"""v_lshlrev_b32 v{x}, 7, v0
    v_cmp_gt_u32 vcc, 180, v0
    v_mov_b32 v{vT+1}, {OOB}
    s_lshr_b32 s{sT0}, s{sJ}, 1
    s_mul_i32 s{sT0}, s{sT0}, 46080
    v_cndmask_b32 v{x}, v{vT+1}, v{x}, vcc
    s_mul_i32 s{sT1}, s{sB}, 92160
    s_add_u32 s{sT0}, s{sT0}, s{sT1}
    v_lshrrev_b32 v{w}, 2, v0
    v_and_b32 v{vT+1}, 3, v0
    s_and_b32 s{sT1}, s{sB}, 7
    v_lshl_add_u32 v{w}, v{w}, 3, s{sT1}
    v_lshlrev_b32 v{w}, 13, v{w}
    v_lshl_add_u32 v{w}, v{vT+1}, 7, v{w}""")
    if "K" in C.touch:
        k = vQ + 10
        A(f"""v_mul_u32_u24 v{k}, 21846, v0
        v_lshrrev_b32 v{k}, 16, v{k}
        v_mul_u32_u24 v{k}, {1152 - 384}, v{k}
        v_lshl_add_u32 v{k}, v0, 7, v{k}
        v_subrev_u32 v{k+1}, {256*8192}, v{w}
        v_cmp_gt_u32 vcc, 128, v0
        v_cmp_gt_u32 s[{sQS}:{sQS+1}], s{sX0}, v0
        v_mov_b32 v{vT+1}, {OOB}
        v_cndmask_b32 v{k}, v{k+1}, v{k}, vcc
        s_xor_b32 s{sT1}, s{sHKV}, 1
        s_lshl_b32 s{sT1}, s{sT1}, 9
        v_cndmask_b32 v{k}, v{vT+1}, v{k}, s[{sQS}:{sQS+1}]""")
    A("s_waitcnt lgkmcnt(0)")
    if C.sg == 4: stamp(A, C, 5)
    first()
    srd(A, SOUT, 4, f"s{sT0}", 46080)
    srd(A, SWO, 10, None, 576 * 8192)
    for ch in C.touch:
        if ch == "K":
            A(f"""s_cmp_lt_u32 s{sW}, 2
            s_cselect_b32 s{SX}, s{SOUT}, s{SWO}
            s_cselect_b32 s{SX+1}, s{SOUT+1}, s{SWO+1}
            s_cselect_b32 s{SX+2}, s{SOUT+2}, s{SWO+2}
            s_cselect_b32 s{sT1}, 0, s{sT1}
            s_cselect_b32 s{sT0}, 1, 4096
            s_mov_b32 s{SX+3}, 0x20000
            s_mul_i32 s{sT0}, s{sT0}, 384""")
            for r in range(3):
                A(f"buffer_load_dword v255, v{vQ+10}, s[{SX}:{SX+3}], s{sT1} offen\ns_add_u32 s{sT1}, s{sT1}, s{sT0}"); vm.add("touch")
        if ch == "X":
            A(f"buffer_load_dword v255, v{x}, s[{SOUT}:{SOUT+3}], 0 offen\ns_mov_b32 s{sT0}, 23040\nbuffer_load_dword v255, v{x}, s[{SOUT}:{SOUT+3}], s{sT0} offen"); vm.add("touch", 2)
        if ch in "oW":
            A(f"""s_xor_b32 s{sT0}, s{sHKV}, {1 if ch == 'o' else 0}
            s_lshl_b32 s{sT0}, s{sT0}, 9
            buffer_load_dword v255, v{w}, s[{SWO}:{SWO+3}], s{sT0} offen
            s_add_u32 s{sT0}, s{sT0}, {512*8192}
            buffer_load_dword v255, v{w}, s[{SWO}:{SWO+3}], s{sT0} offen"""); vm.add("touch", 2)
        if ch in "hl":
            A(f"""s_lshl_b32 s{sT0}, s{sHKV}, 9
            s_cmp_{'lt' if ch == 'h' else 'ge'}_u32 s{sW}, 2
            s_cselect_b32 s{sT2}, s{sT0}, {OOB}
            buffer_load_dword v255, v{w}, s[{SWO}:{SWO+3}], s{sT2} offen"""); vm.add("touch")
            if ch == "l": A(f"s_add_u32 s{sT0}, s{sT0}, {512*8192}\nbuffer_load_dword v255, v{w}, s[{SWO}:{SWO+3}], s{sT0} offen"); vm.add("touch")
        if ch == "m":
            if C.sg == 4: stamp(A, C, 6)
            mid()

def wo_touches(A, C, vm):
    if not C.wpre: return
    t = vT
    A(f"s_mul_i32 s{sT0}, s{sHG}, {1024*1152}")
    srd(A, SWO, 12, f"s{sT0}", 1024 * 1152)
    A(f"""v_lshrrev_b32 v{t}, 2, v0
    v_mul_u32_u24 v{t}, 1152, v{t}
    v_and_b32 v{t+1}, 3, v0
    v_lshl_add_u32 v{t+2}, v{t+1}, 7, v{t}
    s_and_b32 s{sT0}, s{sB}, 7
    s_lshl_b32 s{sT0}, s{sT0}, 1
    s_lshr_b32 s{sT2}, s{sJ}, 1
    s_add_u32 s{sT0}, s{sT0}, s{sT2}
    s_mul_i32 s{sT0}, s{sT0}, 73728
    v_cmp_eq_u32 vcc, 0, v{t+1}
    v_mov_b32 v{t+1}, {OOB}
    s_nop 0
    v_cndmask_b32 v{t}, v{t+1}, v{t}, vcc""")
    if "b" in C.wpre: A(f"buffer_load_dword v255, v{t+2}, s[{SWO}:{SWO+3}], s{sT0} offen"); vm.add("touch")
    if "a" in C.wpre:
        A(f"buffer_load_dword v255, v{t+2}, s[{SWO}:{SWO+3}], s{sT0} offen offset:512\nbuffer_load_dword v255, v{t}, s[{SWO}:{SWO+3}], s{sT0} offen offset:1024"); vm.add("touch", 2)

def dma_kv(name, slot=None, so=None):
    i = int(name[1:])
    if name[0] == "V": sr, sl, va = SV, vslot(i), [vVD, vVD + 1, vVD, vVD + 1]
    else: sr, sl, va = SK, kslot(i), [vKD + a for a in range(4)]
    o = [f"s_add_u32 m0, s{sW4K}, {sl if slot is None else slot}", f"s_add_u32 s{sT1}, s{sW4K}, {i*16384 if so is None else so}"]
    return o + [f"buffer_load_dwordx4 v{va[a]}, s[{sr}:{sr+3}], s{sT1} offen offset:{a*1024} nt lds" for a in range(4)]
def dma_wq(j):
    o = [f"s_add_u32 m0, s{sW4K}, {WQR + (j % 3)*16384}", f"s_mov_b32 s{sT1}, {j*262144}"]
    return o + [f"buffer_load_dwordx4 v{vWD+a}, s[{SWQ}:{SWQ+3}], s{sT1} offen offset:{a*1024} lds" for a in range(4)]
def dma_x(t):
    o = [f"s_add_u32 m0, s{sX0}, {((t + 1) % 2)*10240}", f"s_mov_b32 s{sT0}, {t*128}"]
    o += [f"buffer_load_dwordx4 v{vXD+i}, s[{SX}:{SX+3}], s{sT0} offen offset:{i*1024} lds" for i in range(2)]
    o += [f"s_mov_b32 exec_hi, 0\nbuffer_load_dwordx4 v{vXD+2}, s[{SX}:{SX+3}], s{sT0} offen offset:2048 lds\ns_mov_b32 exec_hi, -1"]
    return o
def w_reads(j):
    p = j & 1
    o = [("D", f"ds_read_b128 {r4('a', aWB+12*p+4*k)}, v{vXR+2*k+p} offset:{(((j >> 1) + 1) % 2)*10240}") for k in range(3)]
    for t in range(8):
        for u in range(2): o.append(("d", f"ds_read_b64_tr_b16 a[{aWA+32*p+4*t+2*u}:{aWA+32*p+4*t+2*u+1}], v{vWR+t} offset:{(j % 3)*16384 + u*1024}"))
    return o
def k_reads(i, buf=None, slot=None):
    b = aK + 64 * (i & 1 if buf is None else buf); sl = kslot(i) if slot is None else slot
    return [f"ds_read_b128 {r4('a', b+32*z+16*kt+4*p)}, v{vKR+4*z+p} offset:{sl + kt*4096}" for z in range(2) for kt in range(2) for p in range(4)]
def v_reads(i, slot=None):
    sl = (vslot(i) if slot is None else slot) - vslot(0)
    return [f"ds_read_b64_tr_b16 a[{aV+32*z+4*m+2*u}:{aV+32*z+4*m+2*u+1}], v{vVR+8*z+m} offset:{sl + u*4096}" for z in range(2) for m in range(8) for u in range(2)]

def qproj(A, C, vm, issued, grp):
    mf = []; ops = []; ch = Chain()
    for j in range(18):
        G = 20 * j; p = j & 1; nxt = j + 1
        for t in range(8):
            for k in range(3 if t < 4 else 2):
                d = vO + 32 * k + 4 * t
                mf.append(f"{MF} {r4('v', d)}, {r4('a', aWA+32*p+4*t)}, {r4('a', aWB+12*p+4*k)}, {'0' if j == 0 else r4('v', d)}")
        b0 = G + C.wg + 1
        bar = None
        if nxt < 18:
            wv = waitop([("wq", nxt)] + ([("x", nxt >> 1)] if p else []), "lgkmcnt(0)", lo=b0 - 1, dl=b0 - 1)
            bar = Op("s_barrier", "b", lo=b0, dl=b0, after=[wv]); ops += [wv, bar]
            last = bar
            need = [0, 1, 2] + [x for t in range(8) for x in [3 * t if t < 4 else 4 + 2 * t] * 2]
            rds = sorted(zip(need, range(19), w_reads(nxt)), key=lambda x: (x[0] + (0.5 if x[1] in (3, 4) else 0), x[1])) if C.wp else zip(need, range(19), w_reads(nxt))
            for n, (nd, _, (kind, t)) in enumerate(rds):
                last = Op(t, kind if C.wp else "d", lo=b0 + int(n * C.wp), dl=G + 20 + min(nd - 3, C.wg - 2), pri=G, same=[last]); ops.append(last)
        t = (nxt >> 1) + 1
        gaps = [b0 + 10, b0 + 13, b0 + 16, b0 + 19] if p and t < 9 else [b0 + 3, b0 + 8, b0 + 13, b0 + 18]
        if p and t < 9: ch.group(ops, dma_x(t), ("x", t), [b0 + 1, b0 + 4, b0 + 7], first=[bar])
        gaps = [min(g, 356 + k) for k, g in enumerate(gaps)]
        if j + 3 < 18: ch.group(ops, dma_wq(j + 3), ("wq", j + 3), gaps, first=[bar])
        elif issued < (C.be if grp == "b" and C.NB else 5):
            assert issued < 6 or j == 17
            ch.group(ops, dma_kv(ORDER[issued]), ORDER[issued], gaps); issued += 1
        if grp == "b" and C.NB and j == 0:
            for n, t in enumerate(k_reads(0)):
                g = 20 * (2 + n // 2) + C.wg - 6 + (n & 1); ops.append(Op(t, "D", lo=g, dl=g + 2))
    out, over, idle = schedule(mf, ops)
    print(f"qproj: overflow {over} idle {idle}", file=sys.stderr)
    for o in out:
        if isinstance(o, str): continue
        if "x" in C.abl0 and o.txt.startswith("s_mov_b32 exec_hi"): o.txt = "s_nop 0"; o.tag = None
        if "B" in C.abl0 and o.txt == "s_barrier": o.txt = "s_nop 0"
        if "L" in C.abl0 and o.kind == "L" and not isinstance(o.tag, str): o.txt = "s_nop 0"; o.tag = None
        if "d" in C.abl0 and o.kind == "d": o.txt = "s_nop 0"
    emit(A, vm, fine(C, "w", out))
    return issued

def pack(A, x, y, d, scale, swap):
    if scale:
        for r in (x, x + 2, y, y + 2): A(f"v_pk_mul_f32 v[{r}:{r+1}], v[{r}:{r+1}], {scale}")
    A(f"""v_cvt_pk_bf16_f32 v{d}, v{x}, v{x+1}
    v_cvt_pk_bf16_f32 v{d+1}, v{x+2}, v{x+3}
    v_cvt_pk_bf16_f32 v{d+2}, v{y}, v{y+1}
    v_cvt_pk_bf16_f32 v{d+3}, v{y+2}, v{y+3}""")
    return [f"v_permlane16_swap_b32 v{d}, v{d+2}", f"v_permlane16_swap_b32 v{d+1}, v{d+3}"] if swap else []

def q_epilogue(A, C, vm, issued, grp):
    w = vT
    A(f"s_lshl_b32 s{sT0}, s{sW}, 11\ns_add_u32 s{sT0}, s{sT0}, {QX}\nv_add_u32 v{w}, s{sT0}, v3\nv_xor_b32 v{w+1}, 2048, v{w}")
    pend = []
    todo = [(2, 0), (2, 1)] + [(k, p) for k in range(2) for p in range(4)]
    for n, (k, p) in enumerate(todo):
        x = vO + 32 * k + 8 * p
        sw = pack(A, x, x + 4, vQ + 16 * k + 4 * p, f"s[{sQS}:{sQS+1}]", True)
        for t in pend: A(t)
        pend = sw
        if k == 2: pend = pend + [f"ds_write_b128 v{w}, {r4('v', vQ+32+4*p)} offset:{p*1024}"]
        if n >= 2 and issued < C.qi and n % 3 == 2:
            for t in dma_kv(ORDER[issued]): A(t)
            vm.add(ORDER[issued], 4); issued += 1
    for t in pend: A(t)
    pre = grp == "b" and C.NB >= 3
    if C.hop in (1, 3) and grp == "a": A(";hop")
    n = vm.wait("K0", *(("K1", "V0") if pre else ()))
    A((f"s_waitcnt vmcnt({n}) lgkmcnt(0)" if n is not None else "s_waitcnt lgkmcnt(0)") + "\ns_barrier")
    if not (grp == "b" and C.NB):
        for t in k_reads(0): A(t)
    for p in range(2): A(f"ds_read_b128 {r4('v', vQ+40+4*p)}, v{w+1} offset:{p*1024}")
    return pre, issued

def qk(i, jb, c0="0"):
    o = []
    for kt in range(2):
        for p in range(4):
            d = vS + 8 * jb + 4 * kt
            o.append(f"{MF} {r4('v', d)}, {r4('a', aK+64*(i&1)+32*JSET[jb]+16*kt+4*p)}, {r4('v', vQ+16*JSLOT[jb]+4*p)}, {c0 if p == 0 else r4('v', d)}")
    return o
def pv(jb, first, lead=False):
    k = JSLOT[jb]; pp = r4("v", vS + 8 * jb)
    o = [f"{MF} {r4('v', vO+32*k+4*m)}, {r4('a', aV+32*JSET[jb]+4*m)}, {pp}, {'0' if first else r4('v', vO+32*k+4*m)}" for m in range(8)]
    l = [f"{MF} {r4('a', aL+4*k)}, {r4('a', aONE)}, {pp}, {'0' if first else r4('a', aL+4*k)}"]
    return l + o if lead else o + l

def attention(A, C, vm, pre, issued, extra, lag):
    mf = []; ops = []; ch = Chain()
    xg = 20 if pre else C.xg
    wx = waitop(["K1", "V0"], "lgkmcnt(0)", lo=xg, dl=xg)
    bx = Op("s_barrier", "b", lo=xg + 1, dl=xg + 1, after=[wx])
    if pre: bx = None
    else: ops += [wx, bx]
    g0 = 2 if issued < 5 else C.g0 if pre else xg + 4; sp = min((72 - g0) / (4 * max(1, 7 - issued)), 6)
    while issued < (5 if lag else 7):
        ch.group(ops, dma_kv(ORDER[issued]), ORDER[issued], [int(g0 + sp * a) for a in range(4)], first=[bx] if issued >= 5 else []); issued += 1; g0 += 4 * sp
    gate = None if pre else bx
    for i in range(8):
        G = 85 * i
        for jb in range(5): mf += qk(i, jb)
        for jb in range(5): mf += pv(jb, i == 0 and jb < 3, i == 7)
        for jb in range(5):
            s0 = vS + 8 * jb; dl = G + 38 + 9 * jb
            ex = [Op(f"v_exp_f32 v{s0+k}, v{s0+k}", "e", lo=G + 8 * jb + (7 if k < 4 else 11), dl=dl - 12 + k + k // 2) for k in range(8)]
            prev = None
            for k in range(4):
                prev = Op(f"v_cvt_pk_bf16_f32 v{s0+k}, v{s0+2*k}, v{s0+2*k+1}", "v", dl=dl - 9 + 3 * k, after=[ex[2*k], ex[2*k+1]], same=[prev]); ops.append(prev)
            ops += ex
        last = gate
        if i == 7 and C.latev:
            wv = waitop(["V7"], lo=G + C.latev, dl=G + C.latev)
            last = Op("s_barrier", "b", lo=G + C.latev + 1, dl=G + C.latev + 1, after=[wv]); ops += [wv, last]
        for k, t in enumerate(v_reads(i)):
            z, m = k >> 4, (k >> 1) & 7
            if z == 0: lo, dl = G - 27 + m, G + 28 + m
            elif m < C.vz: lo, dl = G - 9 + m, G + 30 + m
            else: lo, dl = G + C.v0 + C.v1 * (m - C.vz), G + C.v0 + 2 + C.v1 * (m - C.vz)
            if i == 0 and not pre: lo, dl = (0, xg + 3 + (34 - xg) * m // 8) if z == 0 else (0, 40 + 3 * m)
            if i == 7 and C.latev: lo, dl = (G + C.latev + 1 + 2 * m, G + 33 + m) if z == 0 else (G + 40 + 2 * m, G + 42 + 2 * m)
            last = Op(t, "d", lo=lo, dl=dl, pri=dl if (z and m >= C.vz) or (i == 0 and not pre) else G - 60, same=[last]); ops.append(last)
        if i < 7:
            last = gate
            for t in k_reads(i + 1):
                last = Op(t, "D", lo=G + 9, dl=G + C.kd, pri=G - 50, same=[last]); ops.append(last)
            wv = waitop([f"K{i+2}", f"V{i+1}"] if i < 6 or not C.latev else [], "lgkmcnt(0)", lo=G + 74, dl=G + 74, after=[last])
            gate = Op("s_barrier", "b", lo=G + 75, dl=G + 75, after=[wv]); ops += [wv, gate]
            for n in range(2):
                if issued < 16:
                    ch.group(ops, dma_kv(ORDER[issued]), ORDER[issued], [G + g for g in C.dg[4*n:4*n+4]], first=[gate]); issued += 1
            if lag and i == lag - 1:
                for n in range(2):
                    ch.group(ops, dma_kv(ORDER[issued]), ORDER[issued], [G + 105 + 24 * n + 6 * a for a in range(4)], first=[gate]); issued += 1
        extra(ops, ch, i, G, gate)
        if i == 7:
            w = Op("s_waitcnt lgkmcnt(0)", "s", lo=G + 62, dl=G + 64, after=[last])
            sb = Op("s_barrier", "b", lo=G + 63, dl=G + 68, after=[w]); ops += [w, sb]
            prev = None
            for lo, t in norm_pre():
                kind = "L" if t.startswith("ds_") else "e" if t.startswith("v_rcp") else t[0]
                prev = Op(t, kind, lo=G + lo, dl=G + (min(84, lo + 2) if lo > 0 else 55), same=[prev] + ([sb] if kind == "L" else []), after=[prev] if prev and ORD[prev.kind] > ORD[kind] else [])
                ops.append(prev)
        if C.sg == 2 and i in (4, 5, 6): ops.append(Op(stamp_txt(C, i - 3), "s", lo=G + 71, dl=G + 73))
        if i == 3 and C.stamps and not C.fine: ops.append(Op(stamp_txt(C, 4), "s", lo=G + 71, dl=G + 73))
    out, over, idle = schedule(mf, ops, 6)
    print(f"attention: overflow {over} idle {idle}", file=sys.stderr)
    for o in out:
        if isinstance(o, str): continue
        if "B" in C.abl and o.txt == "s_barrier": o.txt = "s_nop 0"
        if "L" in C.abl and o.kind == "L": o.txt = "s_nop 0"
        if "d" in C.abl and o.kind in "dD": o.txt = "s_nop 0"
    emit(A, vm, fine(C, "a", out))

def safe_attention(A, name):
    t, u = vT + 4, vT + 5
    A(f"""{name}_safe:
    s_nop 7
    s_mov_b32 s{sCNT}, 0
    v_lshrrev_b32 v{t}, 5, v2
    v_bfe_u32 v{u}, v2, 4, 1
    v_lshl_add_u32 v{t}, v{u}, 1, v{t}
    v_and_b32 v{u}, 15, v2
    v_xor_b32 v{t}, v{t}, v{u}
    v_lshlrev_b32 v{t}, 4, v{t}
    s_lshl_b32 s{sT1}, s{sS}, 7
    v_xor_b32 v{t}, s{sT1}, v{t}
    v_lshl_add_u32 v{t}, v{u}, 8, v{t}
    s_lshl_b32 s{sT1}, s{sS}, 13
    s_add_u32 s{sT1}, s{sT1}, s{sT2}
    v_add_u32 v{vKR}, s{sT1}, v{t}""")
    for k in range(1, 8): A(f"v_xor_b32 v{vKR+k}, {64*(k & 3) + 8192*(k >> 2)}, v{vKR}")
    for k in range(3): A(f"v_mov_b32 v{vNEG+k}, 0x7f800000")
    for r in range(96): A(f"v_mov_b32 v{vO+r}, 0")
    for r in range(12): A(f"v_accvgpr_write_b32 a{aL+r}, 0")
    A(f"{name}_sl:\ns_barrier")
    for nm, slot in (("K0", f"s{sT2}"), ("V0", vslot(1))):
        x = dma_kv(nm, slot, f"s{sCNT}")
        A("\n".join([x[0], x[1]] + x[2:]))
    A("s_waitcnt vmcnt(0)\ns_barrier")
    for x in k_reads(0, 0, 0) + v_reads(0, vslot(1)): A(x)
    A("s_waitcnt lgkmcnt(0)")
    for jb in range(5):
        s0 = vS + 8 * jb; k = JSLOT[jb]
        for m in qk(0, jb): A(m)
        A(f"""s_nop 7
        v_max3_f32 v{t}, v{s0}, v{s0+1}, v{s0+2}
        v_max3_f32 v{t}, v{t}, v{s0+3}, v{s0+4}
        v_max3_f32 v{t}, v{t}, v{s0+5}, v{s0+6}
        v_max_f32 v{t}, v{t}, v{s0+7}
        v_mov_b32 v{u}, v{t}
        s_nop 1
        v_permlane32_swap_b32 v{t}, v{u}
        s_nop 1
        v_max_f32 v{t}, v{t}, v{u}
        v_mov_b32 v{u}, v{t}
        s_nop 1
        v_permlane16_swap_b32 v{t}, v{u}
        s_nop 1
        v_min3_f32 v{t}, -v{t}, -v{u}, v{vNEG+k}
        v_sub_f32 v{u}, v{t}, v{vNEG+k}
        v_exp_f32 v{u}, v{u}
        v_mov_b32 v{vNEG+k}, v{t}""")
        for r in range(8): A(f"v_add_f32 v{s0+r}, v{s0+r}, v{t}")
        for r in range(8): A(f"v_exp_f32 v{s0+r}, v{s0+r}")
        for r in range(32): A(f"v_mul_f32 v{vO+32*k+r}, v{vO+32*k+r}, v{u}")
        for r in range(4): A(f"v_accvgpr_read_b32 v{t}, a{aL+4*k+r}\nv_mul_f32 v{t}, v{t}, v{u}\nv_accvgpr_write_b32 a{aL+4*k+r}, v{t}")
        for r in range(4): A(f"v_cvt_pk_bf16_f32 v{s0+r}, v{s0+2*r}, v{s0+2*r+1}")
        A("s_nop 1")
        for m in pv(jb, False): A(m)
    A(f"s_nop 7\ns_add_u32 s{sCNT}, s{sCNT}, 16384\ns_cmp_lt_u32 s{sCNT}, 131072\ns_cbranch_scc1 {name}_sl\ns_barrier")
    for k in range(8): A(f"v_xor_b32 v{vKR+k}, 8192, v{vWR+k}")
    A(f"s_setpc_b64 s[{sRET}:{sRET+1}]")

EXB = 0
SAFEK = 0
def ob(k, p): return vO + 32 * k + 8 * p
def norm_pre():
    w, r, fa, l = vT, vT + 1, vT + 2, vE
    o = [(-160, t.strip()) for t in f"""s_mul_i32 s{sT0}, s{sW}, 5120
    s_add_u32 s{sT0}, s{sT0}, {EXB}
    v_add_u32 v{w}, s{sT0}, v3
    s_xor_b32 s{sT0}, s{sW}, 1
    s_mul_i32 s{sT0}, s{sT0}, 5120
    s_add_u32 s{sT0}, s{sT0}, {EXB}
    v_add_u32 v{r}, s{sT0}, v3
    s_lshl_b32 s{sT0}, s{sW}, 2
    s_add_u32 s{sT0}, s{sT0}, {EXB + 20480}
    v_mov_b32 v{fa}, s{sT0}
    v_mov_b32 v{l+3}, v{vNEG+2}""".split("\n")]
    o += [(63, f"v_accvgpr_read_b32 v{l+2}, a{aL+8}"), (63, f"v_subrev_u32 v{fa+3}, {LLO}, v{l+2}"), (66, f"ds_write_b64 v{w}, v[{l+2}:{l+3}] offset:4096")]
    o += [(70, f"ds_write_b128 v{w}, {r4('v', vO+80)} offset:0"), (72, f"v_accvgpr_read_b32 v{l}, a{aL}"), (72, f"v_subrev_u32 v{fa+1}, {LLO}, v{l}")]
    o += [(72 + 2 * m, f"ds_write_b128 v{w}, {r4('v', vO+80+4*m)} offset:{m*1024}") for m in range(1, 4)]
    o += [(79, f"v_rcp_f32 v{l}, v{l}"), (80, f"v_accvgpr_read_b32 v{l+1}, a{aL+4}"), (80, f"v_subrev_u32 v{fa+2}, {LLO}, v{l+1}"),
          (81, f"v_max3_u32 v{fa+1}, v{fa+1}, v{fa+2}, v{fa+3}"), (81, f"v_cmp_lt_u32 vcc, {LHI - LLO}, v{fa+1}"), (82, f"v_rcp_f32 v{fa+5}, v{l+1}"),
          (83, f"s_cmp_lg_u64 vcc, 0\ns_cselect_b32 s{sT0}, s{sSAFE}, 0"), (83, f"v_mov_b32 v{fa+1}, s{sT0}"), (84, f"ds_write_b32 v{fa}, v{fa+1}")]
    return o

def normalise(A, C, tag, name, store, prebar=lambda: "", checked=lambda: None):
    w, r, fa = vT, vT + 1, vT + 2
    l = vE
    lo, no, lp, np_, t = l + 2, l + 3, vS + 20, vS + 21, fa
    sc = [f"v[{l}:{l+1}] op_sel_hi:[1,0]", f"v[{fa+5}:{fa+6}] op_sel_hi:[1,0]"]
    def own(k, p): pack(A, ob(k, p), ob(k, p) + 4, ob(k, p), sc[k], False); store(k, p)
    def shared(p):
        for k in range(8 * p, 8 * p + 8, 2): A(f"v_pk_mul_f32 v[{vO+64+k}:{vO+65+k}], v[{vO+64+k}:{vO+65+k}], v[{lo}:{lo+1}] op_sel_hi:[1,0]")
        for k in range(8 * p, 8 * p + 8, 2): A(f"v_pk_fma_f32 v[{vO+64+k}:{vO+65+k}], v[{vS+k}:{vS+k+1}], v[{lp}:{lp+1}], v[{vO+64+k}:{vO+65+k}] op_sel_hi:[1,0,1]")
        pack(A, ob(2, p), ob(2, p) + 4, ob(2, p), None, False); store(2, p)
    A(f"{tag}_x:")
    own(0, 0)
    A(f"""v_mov_b32 v{fa}, {EXB + 20480}
    s_waitcnt {prebar()}lgkmcnt(0)
    s_barrier
    ds_read_b128 {r4('v', vS+16)}, v{fa}
    ds_read_b64 v[{vS+20}:{vS+21}], v{r} offset:4096""")
    for m in range(4): A(f"ds_read_b128 {r4('v', vS+4*m)}, v{r} offset:{m*1024}")
    own(0, 2); own(1, 0)
    A(f"""v_or3_b32 v{vS+16}, v{vS+16}, v{vS+17}, v{vS+18}
    v_or_b32 v{vS+16}, v{vS+16}, v{vS+19}
    v_cmp_ne_u32 vcc, 0, v{vS+16}
    v_min_f32 v{t}, v{no}, v{np_}
    v_sub_f32 v{no}, v{t}, v{no}
    v_sub_f32 v{np_}, v{t}, v{np_}
    v_exp_f32 v{no}, v{no}
    v_exp_f32 v{np_}, v{np_}
    s_cbranch_vccnz {tag}_fb
    v_mul_f32 v{lo}, v{lo}, v{no}
    v_fma_f32 v{lo}, v{lp}, v{np_}, v{lo}
    v_rcp_f32 v{t}, v{lo}""")
    own(1, 2)
    A(f"v_mul_f32 v{lo}, v{no}, v{t}\nv_mul_f32 v{lp}, v{np_}, v{t}")
    shared(0); own(0, 1); own(1, 1); shared(1); own(0, 3); own(1, 3)
    if C.cl: checked()
    redo = "\ns_nop 1\n".join(t for _, t in norm_pre())
    return f"{tag}_fb:\ns_waitcnt vmcnt(0) lgkmcnt(0)\ns_mov_b32 s{sSAFE}, 0\ns_mov_b32 s{sT2}, {SAFEK}\ns_call_b64 s[{sRET}:{sRET+1}], {name}_safe\n{redo}\ns_nop 1\ns_branch {tag}_x"

def dump_setup(A):
    A(f"""v_and_b32 v{vXR}, 15, v2
    v_lshrrev_b32 v{vXR+1}, 4, v2
    v_lshlrev_b32 v{vXR}, 13, v{vXR}
    v_lshl_add_u32 v{vXR}, v{vXR+1}, 3, v{vXR}
    s_lshl_b32 s{sT0}, s{sS}, 7
    v_add_u32 v{vXR}, s{sT0}, v{vXR}
    v_xor_b32 v{vXR+1}, 128, v{vXR}
    s_mul_i32 s{sU+2}, s{sB}, {80*8192}
    s_lshl_b32 s{sT1}, s{sHKV}, 9
    s_add_u32 s{sU+2}, s{sU+2}, s{sT1}
    s_lshl_b32 s{sT1}, s{sH}, 8
    s_add_u32 s{sU+2}, s{sU+2}, s{sT1}
    s_add_u32 s{sU+2}, s{sU+2}, {1280*8192}
    s_lshl_b32 s{sT0}, s{sS}, 1
    s_add_u32 s{sT0}, s{sT0}, s{sH}
    s_lshl_b32 s{sT0}, s{sT0}, 17
    s_xor_b32 s{sT1}, s{sT0}, {1 << 17}
    s_add_u32 s{sU}, s{sU+2}, s{sT0}
    s_add_u32 s{sU+1}, s{sU+2}, s{sT1}
    s_add_u32 s{sU+2}, s{sU+2}, {4 << 17}""")

def flush(A, C, name):
    if not C.stamps: return
    A(f"s_waitcnt lgkmcnt(0)\ns_lshl_b32 s{sT0}, s2, 6\ns_add_u32 s{sT0}, s{sT0}, {STAMP}\ns_cmp_lg_u32 s{sW}, 0\ns_cbranch_scc1 {name}_end\ns_mov_b64 exec, 1")
    for i in range(C.stamps): A(f"v_mov_b32 v4, s{sST+2*i}\nbuffer_store_dword v4, v1, s[{SWS}:{SWS+3}], s{sT0} offen offset:{4*i}")

MID = dict(vz=4, v0=20, v1=10, dg=(78, 82, 86, 90, 104, 116, 128, 140))
MID2 = dict(vz=4, v0=14, v1=8, dg=(78, 82, 86, 90, 128, 136, 144, 152))
def path(C, name, grp, stubs):
    import copy
    C = copy.copy(C)
    if grp in C.l2: C.of = ""
    if grp in C.mid:
        for k, val in (MID2 if "2" in C.mid else MID).items(): setattr(C, k, val)
    A = Asm(); vm = VM(); tag = f"{name}_{grp}"
    T = None
    if C.tail == "h":
        import tail2
        T = tail2.Tail(C, name, grp, A, vm, stubs)
    issued = 0
    if grp == "b":
        code_touch(A, name)
        def mid():
            kv_setup(A)
            if T: T.start()
        def first():
            srd(A, SWS, 18, None, 128 << 20)
            if T: T.clear()
        if T: T.clear_prepare()
        touches(A, C, vm, first, mid)
        wo_touches(A, C, vm)
        w_srds(A)
        A(";hot")
        w_addresses(A)
        late_addresses(A, C)
        if T: A("\n".join(T.touch_setup()))
        if C.hop: A(";hop")
        for n in range(C.NB):
            for t in dma_kv(ORDER[n]): A(t)
            vm.add(ORDER[n], 4)
            if n == min(C.NB - 1, C.rn) and T: T.ready()
        issued = C.NB
    else:
        w_addresses(A)
        if C.sg == 4: stamp(A, C, 5)
        A("s_waitcnt lgkmcnt(0)")
        if C.sg == 4: stamp(A, C, 6)
        w_srds(A)
    first = [(dma_x(0), ("x", 0), 3), (dma_wq(0), ("wq", 0), 4), (dma_wq(1), ("wq", 1), 4), (dma_x(1), ("x", 1), 3), (dma_wq(2), ("wq", 2), 4)]
    for n, (x, tg, cnt) in enumerate(first + [([], None, 0)]):
        if n == C.f0 and grp == "a":
            if C.sg == 4: stamp(A, C, 7)
            kv_setup(A)
            srd(A, SWS, 18, None, 128 << 20)
            A(";hot")
            late_addresses(A, C)
            if T: A("\n".join(T.touch_setup()))
            if C.hop: A(";hop")
        for t in x: A(t)
        vm.add(tg, cnt)
    if C.sg == 4: stamp(A, C, 8)
    A(f"s_waitcnt vmcnt({vm.wait(('x', 0), ('wq', 0))})\ns_barrier")
    stamp(A, C, 1)
    for _, t in w_reads(0): A(t)
    issued = qproj(A, C, vm, issued, grp)
    stamp(A, C, 2)
    pre, issued = q_epilogue(A, C, vm, issued, grp)
    if T: T.before_attention()
    stamp(A, C, 3)
    attention(A, C, vm, pre, issued, T.hook if T else lambda *a: None, C.lagb if grp == "b" else C.laga)
    stamp(A, C, 5)
    if T: T.run()
    else:
        dump_setup(A)
        def store(k, p):
            for e in range(2): A(f"buffer_store_dwordx2 v[{ob(k, p)+2*e}:{ob(k, p)+2*e+1}], v{vXR + (p >> 1)}, s[{SWS}:{SWS+3}], s{sU+k} offen offset:{(p & 1)*64 + e*32}")
        stubs.append(normalise(A, C, tag, name, store))
        stamp(A, C, 6)
        flush(A, C, name)
        A("s_endpgm")
    return A

def isins(l):
    t = l.strip(); return t and not t.endswith(":") and not t.startswith((";", "."))
def sizes(lines):
    import subprocess, re
    src = '.amdgcn_target "amdgcn-amd-amdhsa--gfx950"\n.text\nT:\n' + "\n".join(re.sub(r"(s_c?branch\S*) \S+", r"\1 T", l) for l in lines if isins(l)) + "\ns_endpgm\n"
    open("sz.s", "w").write(src)
    subprocess.run(["clang", "-x", "assembler", "-target", "amdgcn-amd-amdhsa", "-mcpu=gfx950", "-c", "sz.s", "-o", "sz.o"], check=True)
    d = subprocess.run(["llvm-objdump", "-d", "--mcpu=gfx950", "sz.o"], capture_output=True, text=True).stdout
    ad = [int(m.group(1), 16) for m in re.finditer(r"// ([0-9A-F]+):", d)]
    return [b - a for a, b in zip(ad, ad[1:])]
HOPLEN = 36
def page_hops(lines, tag):
    sz = iter(sizes(lines)); ad = 0; page = 1; out = []; marks = []
    for i, l in enumerate(lines):
        if l.strip() == ";hop": marks.append([len(out), []]); out.append(l); ad += HOPLEN; continue
        out.append(l)
        if not isins(l): continue
        ad += next(sz)
        if ad >= page * 4096 and ("v_mfma" in l or ad >= page * 4096 + 40):
            if marks: marks[-1][1].append(len(out)); out.append(None); ad += 4
            page += 1
    for k, (pos, st) in enumerate(marks):
        lab = lambda n: f"{tag}_h{k}_{n}" if n < len(st) else f"{tag}_h{k}_r"
        for n, p in enumerate(st): out[p] = f"{lab(n)}:\n    s_cbranch_execz {lab(n + 4)}"
        out[pos] = "    s_mov_b64 exec, 0\n" + "".join(f"    s_cmp_eq_u32 s{sW}, {w}\n    s_cbranch_scc1 {lab(w)}\n" for w in range(3)) + f"    s_branch {lab(3)}\n{lab(99)}:\n    s_mov_b64 exec, -1"
    return out

def kernel(C, name):
    hazard.IGNORE_STAMPS = bool(C.fine)
    P = Asm(); prologue(P, C, name)
    stubs = []
    pa = path(C, name, "a", stubs); pb = path(C, name, "b", stubs)
    for p_ in (pa, pb):
        p_.L, paid = hazard.autowait(p_.L)
        p_.L, forced = hazard.fix(p_.L)
        print("forced pads:", forced, "paid waits:", paid, file=sys.stderr)
    R = Asm(); safe_attention(R, name)
    bad = hazard.check(P.L + pa.L, "a") + hazard.check(P.L + pb.L, "b") + hazard.check(R.L, "safe")
    S = Asm()
    for t in stubs: S(t)
    bad += hazard.check(S.L, "stubs")
    assert not bad, f"{bad} hazards"
    mid = Asm(); mid(f"s_bitcmp1_b32 s{sJ}, 0\ns_cbranch_scc1 {name}_pb0")
    txt = P.text() + mid.text(); hot = ""
    for p_, gname in ((pa, "a"), (pb, "b")):
        n = next(i for i, l in enumerate(p_.L) if l.strip() == ";hot")
        txt += f"{name}_p{gname}0:\n" + "\n".join(p_.L[:n]) + f"\n    s_branch {name}_p{gname}\n"
        hot += f".p2align 12\n{name}_p{gname}:\n" + "\n".join(page_hops(p_.L[n + 1:], f"{name}_{gname}")) + "\n"
    return txt + S.text() + hot + f"{name}_hot:\n" + R.text() + f"{name}_end:\n    s_endpgm\n"

def main():
    from gen_naive import naive_parts
    cfgs = json.loads(sys.argv[1]); names = []
    for c in cfgs:
        n = "j" + "".join(f"_{kk}{vv}" for kk, vv in c.items()); names.append(n)
        C = Cfg(**c)
        l, k = naive_parts()
        if C.tail == "dump": txt = build([("fa_kernel", 256, 256, 163840), l[2]], [("fa_kernel", kernel(C, "fa"), 256, 256), k[2]])
        elif C.stamps == 11:
            from emu3 import after
            txt = build([("fa_kernel", 256, 256, 163840), ("af_kernel", 256, 64, 0)], [("fa_kernel", kernel(C, "fa"), 256, 256), ("af_kernel", after("af", 11), 32, 0)])
        else: txt = build([(KN + "_kernel", 256, 256, 163840)], [(KN + "_kernel", kernel(C, KN), 256, 256)])
        open(n + ".s", "w").write(txt)
    open("list.txt", "w").write(" ".join(x + ".s" for x in names))

if __name__ == "__main__":
    import gen2
    gen2.main()
```

```python
import sys
from gen2 import *
import gen2
BLK, PART, FL, BAT = 66816, 41088, 16 * 66816, 1310720
W0, W1, XB = 98304, 0, 65536
vOR0, vOR1, vXO, vXDM = vWR, vKR, vXR, vXD
vRDY, vPOL, vPA, vFA = 29, 30, 10, 61
sSRC, sOP, sOS, sF1, sDX, sOK, sRB, sW8K = 8, 12, 66, 15, 16, 17, 18, 19
sPS = 69
sSEL = 3
sTA = 73
aF = 128
PRE = 6
vRW, vRR, vPSA, vF = vT, vT + 1, vT + 4, vVR
sF2 = sRET
vSEL = 48

class Tail:
    def __init__(self, C, name, grp, A, vm, stubs):
        self.C, self.name, self.grp, self.A, self.vm, self.stubs = C, name, grp, A, vm, stubs
        self.tag = f"{name}_{grp}"
        self.NT = 10 if grp == "a" else 8
        self.X = [0, 2, 1, 3] if grp == "a" else [0, 1, 3, 2]
        self.pre = 3 if grp == "a" else 4
        self.nl = 0
        self.early = C.ea if grp == "a" else C.eb
        gen2.EXB = 0 if grp == "a" else 65536
        gen2.SAFEK = 0 if grp == "a" else 81920

    def clear_prepare(self):
        self.A(f"""s_cmp_eq_u32 s{sHKV}, 1
        s_cselect_b32 s{sCNT}, 0, {OOB}
        v_lshrrev_b32 v{vQ}, 2, v0
        v_add_u32 v{vQ}, 12, v{vQ}
        v_and_b32 v{vQ+1}, 3, v0
        v_lshl_add_u32 v{vQ}, v{vQ}, 3, v{vQ+1}
        v_lshlrev_b32 v{vQ+1}, 3, v0
        v_min_u32 v{vQ}, v{vQ}, v{vQ+1}
        v_lshrrev_b32 v{vQ+5}, 5, v0
        v_lshlrev_b32 v{vQ+5}, 27, v{vQ+5}
        v_lshl_add_u32 v{vQ+5}, v{vQ}, 8, v{vQ+5}
        v_or_b32 v{vQ+5}, s{sCNT}, v{vQ+5}
        v_mov_b32 v{vQ}, 0
        v_mov_b32 v{vQ+1}, 0
        v_mov_b32 v{vQ+2}, 0
        v_mov_b32 v{vQ+3}, 0
        s_mul_i32 s{sT2}, s{sB}, {BAT}
        s_add_u32 s{sT2}, s{sT2}, {FL}""")
    def clear(self):
        for k in range(1 + self.C.dual):
            self.A(f"buffer_store_dwordx4 {r4('v', vQ)}, v{vQ+5}, s[{SWS}:{SWS+3}], s{sT2} offen offset:{1024*k} sc1")
            self.vm.add("clr0")
    def start(self):
        self.A(f"""v_mov_b32 v{vT+1}, {OOB}
        s_mul_i32 s{sT1}, s{sB}, {BAT}
        v_lshlrev_b32 v{vQ+4}, 20, v0
        v_or_b32 v{vQ+4}, s{sCNT}, v{vQ+4}""")
        if self.C.tlb:
            self.A(f"""v_lshrrev_b32 v{vT}, 1, v0
            v_mul_u32_u24 v{vT}, {BLK}, v{vT}
            v_and_b32 v{vT+2}, 1, v0
            v_mul_u32_u24 v{vT+2}, {BLK - 128 - 40960}, v{vT+2}
            v_cmp_gt_u32 vcc, 33, v0
            v_add_u32 v{vT}, v{vT}, v{vT+2}
            v_add_u32 v{vT}, 40960, v{vT}
            v_cndmask_b32 v{vT}, v{vT+1}, v{vT}, vcc
            buffer_load_dword v255, v{vT}, s[{SWS}:{SWS+3}], s{sT1} offen""")
            self.vm.add("clr")
        if self.C.tlb > 1:
            self.A(f"s_mul_i32 s{sT0}, s{sHG}, {1024*1152}")
            srd(self.A, SWO, 12, f"s{sT0}", 1024 * 1152)
            self.A(f"s_mul_i32 s{sT0}, s{sB}, 92160")
            srd(self.A, SOUT, 14, f"s{sT0}", 92160)
            self.A(f"""v_lshlrev_b32 v{vT}, {self.C.tsh}, v0
            buffer_load_dword v255, v{vT}, s[{SWO}:{SWO+3}], 0 offen
            buffer_load_dword v255, v{vT}, s[{SOUT}:{SOUT+3}], 0 offen""")
            self.vm.add("clr", 2)
    def ready(self):
        A = self.A
        srd(A, SDBG, 16, None, 256)
        A(f"""s_lshl_b32 s{sT0}, s{sB}, 4
        v_mov_b32 v{vQ+5}, 1
        s_waitcnt vmcnt({self.vm.wait("clr0")})
        buffer_store_dword v{vQ+5}, v{vQ+4}, s[{SDBG}:{SDBG+3}], s{sT0} offen sc1""")
        self.vm.add("clr")

    def setup_ops(self):
        t = vT + 2
        a = self.grp == "a"
        o = f"""v_lshrrev_b32 v{t}, 4, v2
        v_mul_u32_u24 v{t}, {1152 - 256}, v{t}
        v_add_u32 v{vWD}, v{vVD}, v{t}
        v_add_u32 v{vWD+1}, v{vVD+1}, v{t}
        v_add_u32 v{vWD+2}, {2*(4608-1024)}, v{vWD}
        v_add_u32 v{vWD+3}, {3*(4608-1024)}, v{vWD+1}
        v_add_u32 v{vWD+1}, {4608-1024}, v{vWD+1}
        s_lshl_b32 s{sW8K}, s{sW}, 13
        s_lshr_b32 s{sT2}, s{sJ}, 1
        s_mul_i32 s{sT2}, s{sT2}, {384 if a else 256}
        s_add_u32 s{sPS+6}, s{sT2}, {512 if a else 0}
        s_mul_i32 s{sT2}, s{sW}, {64*1152}
        s_add_u32 s{sT2}, s{sT2}, s{sPS+6}"""
        for k, x in enumerate(self.X):
            o += f"\ns_xor_b32 s{sSRC+k}, s{sJ}, {x}\ns_mul_i32 s{sSRC+k}, s{sSRC+k}, {256*1152}\ns_add_u32 s{sSRC+k}, s{sSRC+k}, s{sT2}"
        o += f"""
        s_mul_i32 s{sT2}, s{sB}, {BAT}
        s_mul_i32 s{sOP}, s{sW}, 10240
        s_add_u32 s{sT2}, s{sT2}, s{sOP}
        s_mul_i32 s{sOP}, s{sHKV}, {BLK}
        s_add_u32 s{sOP}, s{sOP}, s{sT2}
        s_add_u32 s{sOP+1}, s{sOP}, 4096
        s_add_u32 s{sOP+2}, s{sOP}, 8192"""
        for k in range(1, 4):
            o += f"\ns_xor_b32 s{sOS+k-1}, s{sHKV}, {self.X[k]}\ns_mul_i32 s{sOS+k-1}, s{sOS+k-1}, {BLK}\ns_add_u32 s{sOS+k-1}, s{sOS+k-1}, s{sT2}"
        o += f"""
        s_lshl_b32 s{sF1}, s{sHG}, 2
        s_add_u32 s{sF1}, s{sF1}, s{sW}
        s_lshl_b32 s{sF1}, s{sF1}, 11
        s_mul_i32 s{sT2}, s{sB}, {BAT}
        s_add_u32 s{sF1}, s{sF1}, s{sT2}
        s_add_u32 s{sF1}, s{sF1}, {FL}
        v_and_b32 v{vPA}, 7, v2
        v_xor_b32 v{vPA}, s{sJ}, v{vPA}
        v_lshlrev_b32 v{vPA}, 1, v{vPA}
        s_lshl_b32 s{sT2}, s{sS}, 7
        s_lshl_b32 s{sDX}, s{sW}, 6
        s_xor_b32 s{sT2}, s{sT2}, s{sDX}
        v_xor_b32 v{vOR0}, s{sT2}, v{vVR}
        s_lshl_b32 s{sT2}, s{sH}, 14
        s_add_u32 s{sT2}, s{sT2}, {W0 - vslot(0)}
        v_add_u32 v{vOR0}, s{sT2}, v{vOR0}"""
        for k in range(1, 8): o += f"\nv_xor_b32 v{vOR0+k}, {32*k}, v{vOR0}"
        if a:
            o += f"""
            s_lshr_b32 s{sDX}, s{sJ}, 1
            s_mul_i32 s{sDX}, s{sDX}, -320
            s_add_u32 s{sDX}, s{sDX}, 256
            v_lshrrev_b32 v{t}, 2, v2
            v_mul_u32_u24 v{t}, 1152, v{t}
            v_bfe_u32 v{t+1}, v2, 4, 1
            v_lshlrev_b32 v{t+1}, 1, v{t+1}
            v_and_b32 v{t+2}, 3, v2
            v_xor_b32 v{t+2}, v{t+2}, v{t+1}
            v_lshl_add_u32 v{vXDM}, v{t+2}, 4, v{t}
            v_add_u32 v{vXDM+1}, {16*1152-1024}, v{vXDM}
            v_lshrrev_b32 v{t}, 2, v2
            v_lshlrev_b32 v{t}, 6, v{t}
            v_lshl_add_u32 v{t}, v{t+1}, 4, v{t}
            v_and_b32 v{t+2}, 3, v2
            v_lshl_add_u32 v{t}, v{t+2}, 3, v{t}
            s_lshl_b32 s{sT2}, s{sW}, 11
            s_add_u32 s{sT2}, s{sT2}, {XB}
            v_add_u32 v{vXO}, s{sT2}, v{t}
            v_xor_b32 v{vXO+1}, 32, v{vXO}
            v_xor_b32 v{vXO+2}, 2048, v{vXO}
            v_xor_b32 v{vXO+3}, {2048+32}, v{vXO}"""
        return [x.strip() for x in o.split("\n") if x.strip()]

    def touch_setup(self):
        t = vT + 2
        o = f"""s_lshl_b32 s{sRB}, s{sB}, 4
        v_lshrrev_b32 v{t}, 3, v0
        v_mul_u32_u24 v{t}, 1152, v{t}
        v_and_b32 v{t+1}, 7, v0
        v_lshl_add_u32 v{t}, v{t+1}, 7, v{t}
        v_lshrrev_b32 v{vNEG}, 2, v{t+1}
        v_lshl_add_u32 v{vNEG}, v{vNEG}, 30, v{t}
        v_add_u32 v{t+1}, 3, v{t+1}
        v_lshrrev_b32 v{t+1}, 3, v{t+1}
        v_lshl_add_u32 v{vNEG+1}, v{t+1}, 30, v{t}
        s_bfe_u32 s74, s{sB}, 0x10002
        s_lshl_b32 s74, s74, 4
        s_and_b32 s73, s{sB}, 3
        s_lshl_b32 s73, s73, 1
        s_add_u32 s74, s74, s73
        s_lshr_b32 s73, s{sJ}, 1
        s_add_u32 s74, s74, s73
        s_mul_i32 s{sTA}, s74, {32*1152}
        s_add_u32 s{sTA+1}, s{sTA}, {256*1152}"""
        return [x.strip() for x in o.split("\n")]
    def touch_ops(self, ops, lo, hi, shift):
        for key in ("aa", "ab", "ba", "bb"):
            val = getattr(self.C, "t" + key)
            if val and val[0] == self.grp and lo <= int(val[1:]) < hi:
                g = int(val[1:]) - shift
                o = Op(f"buffer_load_dword v255, v{vNEG + (key[1] == 'a')}, s[{SWO}:{SWO+3}], s{sTA + (key[0] == 'b')} offen offset:{512 if key[1] == 'a' else 0}", "L", lo=g, dl=g + 4)
                o.tag = "touch"; ops.append(o)
    def before_attention(self): pass

    def loc(self, c):
        k, u = c >> 1, c & 1
        if k & 1: return (u ^ 1) * 32768, W1, u * 8192
        return u * 32768, W0, 16384 + u * 8192
    def dma(self, c):
        k, u = c >> 1, c & 1; off, win, xo = self.loc(c); gs = []
        for g in range(2):
            gs.append([f"s_add_u32 m0, s{sW8K}, {win + off + g*4096}", f"s_add_u32 s{sT1}, s{sSRC+k}, {(u*32 + 16*g)*1152}"]
                      + [f"buffer_load_dwordx4 v{vWD+a}, s[{SWO}:{SWO+3}], s{sT1} offen offset:{a*1024} lds" for a in range(4)])
        if self.grp == "a":
            gs.append([f"s_lshl_b32 m0, s{sW}, 11\ns_add_u32 m0, m0, {XB + xo}", f"s_add_u32 s{sT1}, s{sSRC+k}, {u*32*1152}\ns_add_u32 s{sT1}, s{sT1}, s{sDX}"]
                      + [f"buffer_load_dwordx4 v{vXDM+a}, s[{SWO}:{SWO+3}], s{sT1} offen offset:{a*1024} lds" for a in range(2)])
        return gs
    def oloads(self, k, sreg):
        return [f"buffer_load_dwordx4 {r4('a', 40*(k-1)+4*n)}, v{(3, vKD, vKD+1)[n >> 2]}, s[{SWS}:{SWS+3}], s{sreg} offen offset:{(n & 3)*1024} {self.C.lf}"
                for n in (0, 4, 8, 2, 6, 1, 5, 9, 3, 7)]
    def poll_txt(self, slow=False): return f"buffer_load_ushort v{vPOL}, v{vPA}, s[{SWS}:{SWS+3}], s{sF1} offen offset:{1024 if self.C.dual and not slow else 0} sc1"
    def flag_txt(self, half=False):
        st = f"buffer_store_short v{vRDY}, v{vPA}, s[{SWS}:{SWS+3}], s{sF1} offen"
        if half: return f"s_mov_b64 exec, 16\n{st} offset:1024\ns_mov_b64 exec, -1"
        return f"s_mov_b64 exec, 17\n{st} offset:1024\n{st} sc1\ns_mov_b64 exec, -1"
    def spin(self, lab, mask):
        one = lambda slow: f"""{self.poll_txt(slow)}
        s_add_u32 s{sCNT}, s{sCNT}, 1
        s_waitcnt vmcnt(0)
        v_cmp_ne_u32 vcc, 1, v{vPOL}
        s_nop 0
        s_and_b32 s{sT2}, vcc_lo, {mask}
        s_cbranch_scc0 {lab}_q"""
        fast = f"""{one(False)}
        s_and_b32 s{sT2}, s{sCNT}, 15
        s_cbranch_scc1 {lab}_p
        """ if self.C.dual else ""
        return f"""s_mov_b32 s{sCNT}, 0
        {lab}_p:
        {fast}{one(True)}
        s_cmp_lt_u32 s{sCNT}, {SPIN * (4 if self.C.dual else 1)}
        s_cbranch_scc1 {lab}_p
        {lab}_q:"""
    def acquire(self, ops, mask, gp, gc, first=()):
        self.nl += 1; lab = f"{self.tag}_aq{self.nl}"
        p = Op(self.poll_txt(), "L", lo=gp, dl=gp + 2, after=list(first)); p.tag = lab
        w = waitop([lab], lo=gc - 2, dl=gc - 2, after=[p])
        c = Op(f"v_cmp_ne_u32 vcc, 1, v{vPOL}", "v", lo=gc - 2, dl=gc - 2, same=[w])
        b = Op(f"s_and_b32 s{sT2}, vcc_lo, {mask}\ns_cbranch_scc1 {lab}\n{lab}_r:", "b", lo=gc, dl=gc, after=[c])
        ops += [p, w, c, b]
        self.stubs.append(f"{lab}:\n{self.spin(lab, mask)}\ns_branch {lab}_r")
        return b

    def hook(self, ops, ch, i, G, gate):
        C = self.C
        if i == 0:
            prev = None; su = self.setup_ops()
            for n, t in enumerate(su):
                prev = Op(t, "s" if t[0] == "s" else "v", lo=30, dl=(60 + 3 * n if n < 17 and self.early else 400 - 3 * (len(su) - n)), pri=10**5, after=[prev]); ops.append(prev)
                if n == 16: self.su16 = prev
        if i == 0: self.touch_ops(ops, 0, 680, 0)
        if i == 4:
            o = Op(f"buffer_load_dword v{vRDY}, v1, s[{SDBG}:{SDBG+3}], s{sRB} offen sc1", "L", lo=G - 30, dl=G - 14); o.tag = "rdy"; ops.append(o)
            lab = f"{self.tag}_rdy"
            w = waitop(["rdy"], lo=G + 161, dl=G + 163, after=[o])
            c = Op(f"v_cmp_ne_u32 vcc, 1, v{vRDY}", "v", lo=G + 162, dl=G + 170, after=[w])
            b = Op(f"s_cbranch_vccnz {lab}\n{lab}_r:", "b", lo=G + 164, dl=G + 178, after=[c], dist=2)
            ops += [w, c, b]; self.rdyok = b
            self.stubs.append(f"""{lab}:
            s_mov_b32 s{sCNT}, 0
            {lab}_p:
            buffer_load_dword v{vRDY}, v1, s[{SDBG}:{SDBG+3}], s{sRB} offen sc1
            s_add_u32 s{sCNT}, s{sCNT}, 1
            s_waitcnt vmcnt(0)
            v_cmp_ne_u32 vcc, 1, v{vRDY}
            s_cmp_ge_u32 s{sCNT}, {SPIN}
            s_cbranch_scc1 {lab}_r
            s_cbranch_vccnz {lab}_p
            s_branch {lab}_r""")
        if str(i) in self.early:
            n = self.early.index(str(i))
            ch.group(ops, self.dma(n >> 1)[n & 1], ("wo", n >> 1), [G + 144 + 4 * k for k in range(4)], first=[self.su16])
        if i == 5: self.gate5 = gate
        if i == 6:
            a = self.grp == "a"
            d0, d1 = (C.da if a else C.db).split("-"); pos = float(d0); rate = float(d1)
            plan = [(0, 0, None), (0, 1, None), (1, 0, None), (1, 1, None)][len(self.early):]
            if a: plan += [(0, 2, self.gate5), (1, 2, self.gate5)] + ([(2, 0, gate), (2, 1, gate)] if C.apre > 2 else [])
            else: plan += [(c, p, gate) for c in range(2, C.bpre) for p in range(2)]
            quiet = [85 * s_ + g for s_ in (4, 5, 6) for g in C.dg]
            for c, part, dep in plan:
                x = self.dma(c)[part]; gaps = []
                if dep: pos = max(pos, dep.lo + 1)
                if dep is gate: rate = min(rate, 4.6) if a or C.bpre == 4 else C.r7
                for _ in x[2:]:
                    near = [q for q in quiet if pos - 1 <= q <= pos + 1]
                    gaps.append(near[0] if near else int(pos)); pos = max(pos + rate, gaps[-1] + 2)
                ch.group(ops, x, ("wo", c), gaps, first=[dep])
            assert pos - rate < 678, pos
            prev = None
            for k in range(8):
                prev = Op(f"v_xor_b32 v{vOR1+k}, 8192, v{vOR0+k}", "v", lo=G + 76, dl=G + 165, after=[gate]); ops.append(prev)
        if i == 7 and self.grp == "b":
            p = Op(self.poll_txt(), "L", lo=G + C.p1, dl=G + C.p1, after=[self.rdyok]); p.tag = "pol1"; ops.append(p)

    def run(self):
        A, C, vm, NT, tag = self.A, self.C, self.vm, self.NT, self.tag
        a = self.grp == "a"
        def store(k, p):
            if a and C.sr or self.grp in C.nost and (k, p) != (0, 0): return
            A(f"buffer_store_dwordx4 {r4('v', ob(k, p))}, v3, s[{SWS}:{SWS+3}], s{sOP+k} offen offset:{p*1024} {C.of}"); vm.add("ost" if p & 1 else "ost0")
        def prebar():
            n = vm.wait(("wo", 0), ("wo", 1))
            return f"vmcnt({n}) " if n is not None else ""
        def checked():
            for n in range(PRE):
                for uu in range(2): A(self.rd((0, 0, 0, n), n, uu))
        self.stubs.append(normalise(A, C, tag, self.name, store, prebar, checked))
        A(f"v_add_u32 v{vKD}, 4096, v3\nv_add_u32 v{vKD+1}, 8192, v3\ns_mov_b32 s{sSAFE}, s{sOP}")
        stamp(A, C, 6)
        kept = lambda k, t: (k == 0) if t >= 8 else (t < 4 if k < 2 else t < 2)
        pool = [vS + 4*i for i in range(10)] + [vO + 80 + 4*i for i in range(4)] + [vO + 8*i + 4 for i in range(4)]
        areg = {}
        for t in range(NT):
            for k in range(3):
                if kept(k, t): areg[(k, t)] = vQ + 40 + 4*(t-8) if t >= 8 else vQ + 16*k + 4*t
                else: areg[(k, t)] = pool.pop(0)
        acc = lambda k, t: r4("v", areg[(k, t)])
        def bfr(s_, k, p): return r4("v", ob(k, p)) if s_ == 0 else r4("a", 40*(s_-1) + 4*(4*k + p))
        frags = []
        NO = C.na if a else C.no
        swap = a and C.sw
        sh = 4 if swap and "b" in C.two else 0
        if swap: NO = 7
        for c in ([0, 1, 2, 3, 4, 6, 5] if swap else range(NO)):
            for z in range(2):
                for t in range(NT): frags.append((c >> 1, c & 1, z, t))
        us = range(NO - 6, 2)
        frags += [(3, u, 0, t) for t in (3, 2) for u in us]
        frags += [(3, u, z, t) for t in reversed(range(4, NT)) for u in us for z in range(2)]
        frags += [(3, u, 1, t) for t in (3, 2) for u in us]
        frags += [(3, u, z, t) for t in (1, 0) for u in us for z in range(2)]
        NR = 32
        mf = []; first = []; lastuse = []; done = {}
        for n, (s_, u, z, t) in enumerate(frags):
            first.append(len(mf))
            for k in range(3 - z):
                d = acc(k, t)
                mf.append(f"{MF} {d}, {r4('a', aF + 4*(n % NR))}, {bfr(s_, k, 2*z + u)}, {'0' if n < NT else d}")
                done[(k, t)] = len(mf) - 1
            lastuse.append(len(mf) - 1)
        E = len(mf); CH = 5 * NT
        ops = []; ch = Chain(); bars = {}; vis = {}
        LEAD = C.lead
        latevis = {int(x) for x in (C.va if a else C.vb)}
        b1 = Op("s_barrier", "b", lo=6, dl=8)
        if a: ops.append(b1)
        for c in (1, 2, 3, 4, 7 if swap else 6):
            g = CH * c - 1
            need = [c + 1] if c + 1 < 6 and c + 1 not in latevis else []
            if swap and c == 4: need = []
            w = waitop([("wo", x) for x in need], lo=g - 1, dl=g - 1)
            bars[c] = Op("s_barrier", "b", lo=g, dl=g, after=[w]); ops += [w, bars[c]]
            for x in need: vis[x] = bars[c]
        if swap: bars[6] = bars[7]
        for c in sorted(({5, 7} if swap else {6, NO}) | latevis):
            g = CH * c - LEAD - 1; need = [5, 6] if c == 5 and swap else [6, 7] if NO == 6 and c == 6 else [c]
            w = waitop([("wo", x) for x in need], lo=g - 1, dl=g - 1)
            o = Op("s_barrier", "b", lo=g, dl=g, after=[w]); ops += [w, o]
            for x in need: vis[x] = o
        last = None; lastrd = {}
        for n in range(PRE, len(frags)):
            s_, u, z, t = frags[n]
            dep = []
            if t < 8 and s_ and lastrd[(z, t)][1] != s_:
                r = (vOR1 if z else vOR0) + t
                tg = Op(f"v_add_u32 v{r}, {(W1 - W0) & 0xffffffff if s_ & 1 else W0 - W1}, v{r}", "v", dl=first[n] - LEAD - 1, after=[lastrd[(z, t)][0]]); ops.append(tg); dep = [tg]
            ld = LEAD + (C.rush if s_ == 3 and first[n] >= NO * CH else 0) * (first[n] - NO * CH) // 10
            for uu in range(2):
                last = Op(self.rd(frags[n], n % NR, uu), "d", lo=max(lastuse[n - NR] if n >= NR else 0, first[n] - ld), dl=first[n] - 7, pri=first[n] - 30, same=[last, vis.get(2*s_ + u)], after=dep); ops.append(last)
            lastrd[(z, t)] = (last, s_)
        fg = C.fga if a else C.fg
        if a and C.sr:
            for n in range(10):
                g = int(C.s0 + C.sr * n)
                o = Op(f"buffer_store_dwordx4 {r4('v', ob(n >> 2, n & 3))}, v{(3, vKD, vKD+1)[n >> 2]}, s[{SWS}:{SWS+3}], s{sSAFE} offen offset:{(n & 3)*1024} {C.of}", "L", lo=g, dl=g + 1); o.tag = "ost"; ops.append(o)
            assert g + 2 < fg
        f1 = C.f1a if a else C.f1; fh = None
        if self.grp in C.two:
            w1 = waitop(["ost0"], lo=f1, dl=f1)
            fh = Op(self.flag_txt(True), "L", lo=f1 + 1, dl=f1 + 1, after=[w1]); fh.tag = "flag0"; ops += [w1, fh]
        hg_ = (f1 if fh and C.hop == 2 else fg) - 1
        if C.hop > 1: ops.append(Op(";hop", "s", lo=hg_, dl=hg_))
        wst = waitop(["ost"], lo=fg, dl=fg)
        fl = Op(self.flag_txt(), "L", lo=fg + 1, dl=fg + 1, after=[wst]); fl.tag = "flag"; fl.cnt = 1 + C.dual; ops += [wst, fl]
        if C.sg == 3 and not a: ops += [Op(stamp_txt(C, 1), "s", lo=fg - 2, dl=fg - 2), Op(stamp_txt(C, 2), "s", lo=fg + 2, dl=fg + 2)]
        pos = [1.0]
        def place(n, rate):
            g = []
            for _ in range(n): g.append(int(pos[0])); pos[0] += rate
            return g
        def chunk(c, after, lo, rate):
            pos[0] = max(pos[0], lo)
            for x in self.dma(c): ch.group(ops, x, ("wo", c), place(len(x) - 2, rate), first=after)
        def loads(k, after, lo, rate, sreg=None, part=slice(0, 10), waits=True):
            pos[0] = max(pos[0], lo); prev = after
            x = list(enumerate(self.oloads(k, sOS + k - 1 if sreg is None else sreg)))[part]
            for (n, t), g in zip(x, place(len(x), rate)):
                prev = Op(t, "L", lo=g, dl=g, after=[prev]); prev.tag = ("o", k, n); ops.append(prev)
                nd = {2: 0, 4: 3*NT, 7: CH, 9: CH + 3*NT}.get(n)
                if k == 3: nd = {9: 0}.get(n) if NO == 6 else {2: 0, 4: 3*NT, 9: CH}.get(n)
                if waits and nd is not None:
                    assert g < 2*k*CH + nd - 3, (k, n, g)
                    ops.append(waitop([prev.tag], lo=2*k*CH + nd - 3, dl=2*k*CH + nd - 3, after=[prev]))
            return prev
        R = C.lr
        if a:
            if C.apre > 2:
                x = self.dma(2)[2]; pos[0] = 3; ch.group(ops, x, ("wo", 2), place(2, R))
                chunk(3, [b1], 10, R)
            else:
                chunk(2, [], 2, C.l0); chunk(3, [b1], 10, C.l0)
            if fh:
                q = self.acquire(ops, 64, max(C.aq - 16, f1 + 2), C.aq, first=[fh])
                p = loads(1, q, C.aq + 2, R, part=slice(0, 5))
                chunk(4, [bars[1]], 0, C.la)
                g = max(int(pos[0]) - 2, fg + 8)
                p = q = self.acquire(ops, 4, max(g - 16, fg + 2), g, first=[fl, q])
                pos[0] = max(pos[0], g + 2)
            else:
                q = self.acquire(ops, 4, max(C.aq - 22, fg + 2), C.aq, first=[fl])
                p = loads(1, q, C.aq + 2, min(R, (2*CH - 6 - C.aq) / 2), part=slice(0, 5))
                chunk(4, [bars[1]], 0, C.la)
            loads(1, p, 0, C.la, part=slice(5, 10))
            chunk(5, [bars[2]], 0, C.la)
            def soft(k, mask, gp, gc, gate_gap, n1, after):
                lab = f"{tag}_s{k}"
                p = Op(self.poll_txt(), "L", lo=gp, dl=gp + 1, after=after); p.tag = lab
                w = waitop([lab], lo=gc, dl=gc, after=[p])
                c = Op(f"v_cmp_ne_u32 vcc, 1, v{vPOL}", "v", lo=gc, dl=gc, same=[w])
                sl = Op(f"s_and_b32 s{sOK}, vcc_lo, {mask}\ns_cselect_b32 s{sSEL}, {OOB}, s{sOS+k-1}", "b", lo=gc + 2, dl=gc + 2, after=[c])
                l = loads(k, sl, gc + 3, min(R, (gate_gap - gc - 5) / n1), sSEL, part=slice(0, n1), waits=False)
                g = Op(f"s_cmp_lg_u32 s{sOK}, 0\ns_cbranch_scc1 {lab}\n{lab}_r:", "b", lo=gate_gap, dl=gate_gap, after=[l])
                x = self.oloads(k, sOS + k - 1)[:n1]
                self.stubs.append(f"{lab}:\n{self.spin(lab, mask)}\n" + "\n".join(x) + f"\ns_branch {lab}_r")
                ops.extend([p, w, c, sl, g])
                return l, g
            if swap:
                chunk(6, [bars[3]], 0, min(R, (4*CH - C.c6 - max(pos[0], 3*CH + 1)) / 10))
                assert pos[0] < 4*CH
                lab = f"{tag}_late"
                pos[0] = 4*CH
                l3 = loads(3, None, 0, C.s3, sSEL, part=slice(0, 5), waits=False)
                ops.append(waitop([("o", 2, 4)], lo=4*CH + 3*NT - 3, dl=4*CH + 3*NT - 3))
                lg = int(pos[0]) + C.s4
                b = Op(f"s_cmp_lg_u32 s{sOK}, 0\ns_cbranch_scc1 {lab}\n{lab}_r:", "b", lo=lg, dl=lg, after=[l3]); ops.append(b)
                self.stubs.append(f"{lab}:\n{self.spin(lab, 8 << sh)}\n" + "\n".join(self.oloads(3, sOS + 2)[:5]) + f"\ns_branch {lab}_r")
                ops.append(waitop([l3.tag], lo=5*CH - 3, dl=5*CH - 3, after=[b]))
                q = self.acquire(ops, 10, max(4*CH + C.q2, lg + 1), 4*CH + C.q2 + 14, first=[b])
                l2 = loads(2, q, 4*CH + C.q2 + 16, C.s3, part=slice(5, 10), waits=False)
                l = loads(3, l2, 0, C.s3, part=slice(5, 10), waits=False)
                chunk(7, [bars[4], l], 0, C.s3)
                assert pos[0] < 7*CH - LEAD - 6, pos[0]
                ops.append(waitop([l2.tag], lo=6*CH - 3, dl=6*CH - 3))
                ops.append(waitop([l.tag], lo=7*CH - 4, dl=7*CH - 4))
            elif C.am:
                g0 = max(int(pos[0]), 4*CH - C.am)
                l, g = soft(2, 2, g0 - C.a3, g0, 4*CH - 4, 5, [q])
                ops.append(waitop([l.tag], lo=4*CH - 3, dl=4*CH - 3, after=[g]))
                pos[0] = 4*CH
                loads(2, g, 0, 3, part=slice(5, 10))
                chunk(6, [bars[3]], 0, C.la)
                g1 = int(pos[0])
                l, g = soft(3, 8, g1 - C.a3, g1, g1 + 24, 5, [g])
                ops.append(waitop([l.tag], lo=6*CH - 4, dl=6*CH - 4, after=[g]))
                pos[0] = g1 + 26
                chunk(7, [bars[4], g], 0, C.la)
                loads(3, g, 0, C.la, part=slice(5, 10))
            else:
                chunk(6, [bars[3]], 0, min(R, (4*CH - C.c6 - max(pos[0], 3*CH + 1)) / 10))
                assert pos[0] < 4*CH
                lab = f"{tag}_late"
                pos[0] = 4*CH
                loads(2, None, 0, 3, part=slice(5, 10))
                ops.append(waitop([("o", 2, 4)], lo=4*CH + 3*NT - 3, dl=4*CH + 3*NT - 3))
                if C.c7 == 1: chunk(7, [bars[4]], 0, C.s3)
                l3 = loads(3, None, 0, C.s3 if C.c7 else R, sSEL, waits=False)
                lg = int(pos[0])
                b = Op(f"s_cmp_lg_u32 s{sOK}, 0\ns_cbranch_scc1 {lab}\n{lab}_r:", "b", lo=lg, dl=lg, after=[l3]); ops.append(b)
                self.stubs.append(f"{lab}:\n{self.spin(lab, 8)}\n" + "\n".join(self.oloads(3, sOS + 2)) + f"\ns_branch {lab}_r")
                if C.c7 == 2:
                    chunk(7, [bars[4], b], lg + 3, R)
                    ops.append(waitop([l3.tag], lo=6*CH - 4, dl=6*CH - 4, after=[b]))
                else: ops.append(Op("s_waitcnt vmcnt(0)", "s", lo=6*CH - 4, dl=6*CH - 4, after=[b]))
        else:
            lab = f"{tag}_late"
            w = waitop(["pol1"], lo=C.pc, dl=C.pc)
            c = Op(f"v_cmp_ne_u32 vcc, 1, v{vPOL}", "v", lo=C.pc, dl=C.pc, same=[w])
            sl = Op(f"s_and_b32 s{sOK}, vcc_lo, 10\ns_cselect_b32 s{sSEL}, {OOB}, s{sOS}", "b", lo=C.pc + 2, dl=C.pc + 2, after=[c]); ops += [w, c, sl]
            if C.bpre < 3: chunk(2, [], 2, (C.pc + 1) / 8)
            l1 = loads(1, sl, C.pc + 3, min(R, (C.l1e - C.pc - 3) / 10), sSEL, waits=False)
            lg = int(pos[0]) - 2
            assert not l1.lo <= fg + 1 <= lg
            b = Op(f"s_cmp_lg_u32 s{sOK}, 0\ns_cbranch_scc1 {lab}\n{lab}_r:", "b", lo=lg, dl=lg, after=[l1]); ops.append(b)
            self.stubs.append(f"{lab}:\ns_waitcnt vmcnt(0)\n{self.flag_txt()}\n{self.spin(lab, 10)}\n" + "\n".join(self.oloads(1, sOS)) + f"\ns_branch {lab}_r")
            ops.append(waitop([l1.tag], lo=2*CH - 3, dl=2*CH - 3, after=[b]))
            if C.bpre < 4: chunk(3, [b], lg + 2, R)
            chunk(4, [bars[1], b], lg + 2, R)
            chunk(5, [bars[2]], 2*CH + 1, R)
            p = loads(2, b, 0, R)
            q = self.acquire(ops, 4, C.pg, C.pg + 30, first=[b, fl])
            chunk(6, [bars[3]], 0, R)
            p = loads(3, q, C.pg + 32, R, part=slice(0, 5))
            chunk(7, [bars[4]], 0, R)
            loads(3, p, 0, R, part=slice(5, 10))
        print(f"{self.grp} last load gap", pos[0], file=sys.stderr)
        if C.sg == 1:
            for n, c in enumerate((2, 4, 6)): ops.append(Op(stamp_txt(C, 1 + n), "s", lo=c*CH - 30, dl=c*CH - 26))
            ops.append(Op(stamp_txt(C, 4), "s", lo=E - 14, dl=E - 12))
        prev = None
        for t in self.reduce_setup() + self.final_setup():
            prev = Op(t, "s" if t[0] == "s" else "v", lo=9, pri=10**4, after=[prev]); ops.append(prev)
        sent = [(2, 1, 4)] + ([(2, 4, 8), (1, 4, 7)] if a else []) + [(2, 3, 6), (0, 3, 1), (1, 3, 3), (2, 2, 5), (0, 2, 0), (1, 2, 2)]
        wr = []
        for k, P, idx in sent:
            x, y = areg[(k, 2*P)], areg[(k, 2*P + 1)]
            p = prev
            for d, s0, tt in ((y + 3, y + 2, 1), (y + 2, y, 1), (y, x, 0), (y + 1, x + 2, 0)):
                lo = done[(k, 2*P + tt)] + 4
                p = Op(f"v_cvt_pk_bf16_f32 v{d}, v{s0}, v{s0+1}", "v", lo=lo, dl=lo + 2, pri=lo - 40, same=[p]); ops.append(p)
            o = Op(f"ds_write_b128 v{vRW}, {r4('v', y)} offset:{idx*1024}", "L", lo=lo + 1, dl=lo + 4, pri=lo - 40, after=[p, bars[6]]); ops.append(o); wr.append(o)
        ww = Op("s_waitcnt lgkmcnt(0)", "s", dl=E - 2, pri=0, after=wr + [last], dist=2)
        bw = Op("s_barrier", "b", dl=E - 1, pri=0, after=[ww]); ops += [ww, bw]
        units = [(0, 1, sPS + 1, [(2, 3)]), (1, 1, sPS + 3, [(2, 1)])] + ([(0, 4, sOP, [(2, 7)])] if a else [])
        units += [(0, 0, sPS, [(2, 2)]), (1, 0, sPS + 2, [(2, 0)]), (2, 0, sPS + 4, [(1, 4), (2, 5), (3, 6)])]
        if a: units.insert(0, (2, 4, sOP + 1, [(1, 8), (2, 8), (3, 8)]))
        prev = bw; n = 0
        for k, P, so, fr in units:
            x, y = areg[(k, 2*P)], areg[(k, 2*P + 1)]
            if (k, P) == (2, 4): x, y = vO, vO + 8; fr = [(0, 8)] + fr
            for j, (xw, idx) in enumerate(fr):
                prev = Op(f"ds_read_b128 {r4('a', 4*n)}, v{vRW + xw} offset:{idx*1024}", "d", dl=E - 1, same=[prev]); ops.append(prev)
                for e, d in enumerate((x, y)):
                    mf.append(f"{MF} {r4('v', d)}, {r4('v', vSEL + 2 - 2*e)}, {r4('a', 4*n)}, {'0' if (k, P, j) == (2, 4, 0) else r4('v', d)}")
                n += 1
            lo = len(mf) + 3; p = None
            for d, s0 in ((x, x), (x + 1, x + 2), (x + 2, y), (x + 3, y + 2)):
                p = Op(f"v_cvt_pk_bf16_f32 v{d}, v{s0}, v{s0+1}", "v", lo=lo, same=[p]); ops.append(p)
            for d in (x, x + 1):
                p = Op(f"v_permlane16_swap_b32 v{d}, v{d+2}", "e", after=[p]); ops.append(p)
            p = Op(f"buffer_store_dwordx4 {r4('v', x)}, v{vPSA}, s[{SWS}:{SWS+3}], s{so} offen sc1", "L", after=[p]); ops.append(p)
        out, over, idle = schedule(mf, ops, 60)
        print(f"outproj {self.grp}: overflow {over} idle {idle}", file=sys.stderr)
        k0 = max(i for i, o in enumerate(out) if isinstance(o, str) and o.startswith(MF)) + 1
        rest = [o for o in out[k0:] if not isinstance(o, str)]
        out = out[:k0] + sorted(rest, key=lambda o: ({"v": 0, "e": 1, "L": 1}[o.kind], o.id))
        if a and not C.am:
            class Raw:
                def __init__(s, txt, tag=None, want=None): s.txt = txt; s.tag = tag; s.want = want
            lab = f"{tag}_w2"
            st = lambda n: [stamp_txt(C, n)] if C.sg == 3 else []
            ins = st(1) + [Raw(self.poll_txt(), lab)]
            for x in ([] if C.c7 else self.dma(7)): ins += [Raw(x[0]), Raw(x[1])] + [Raw(y, ("wo", 7)) for y in x[2:]]
            ins += st(2) + [Raw("", None, [lab]), Raw(f"v_cmp_ne_u32 vcc, 1, v{vPOL}\ns_nop 0\ns_and_b32 s{sT2}, vcc_lo, {2 << sh}\ns_cbranch_scc1 {lab}\n{lab}_r:")]
            self.stubs.append(f"{lab}:\n{self.spin(lab, 2 << sh)}\ns_branch {lab}_r")
            ins += [Raw(f"s_and_b32 s{sOK}, vcc_lo, {8 << sh}\ns_cselect_b32 s{sSEL}, {OOB}, s{sOS+2}")]
            ins += st(3) + [Raw(t, ("o", 2, n)) for n, t in enumerate(self.oloads(2, sOS + 1)[:5])]
            ins += [Raw("", None, [("o", 2, 2)])] + st(4)
            i1 = [i for i, o in enumerate(out) if isinstance(o, str) and o.startswith(MF)][4*CH]
            out = out[:i1] + ins + out[i1:]
        for o in out:
            if isinstance(o, str) or not a: continue
            kill = ("X" in C.abl2 and o.txt.startswith((f"buffer_load_dwordx4 v{vXDM},", f"buffer_load_dwordx4 v{vXDM+1},"))
                    or "M" in C.abl2 and o.txt.startswith(tuple(f"buffer_load_dwordx4 v{vWD+i}," for i in range(4)))
                    or "O" in C.abl2 and o.txt.startswith("buffer_load_dwordx4 a"))
            if kill: o.txt = "s_nop 0"; o.tag = None
        emit(A, vm, fine(C, "o", out))
        self.final()

    def rd(self, fr, slot, uu):
        s_, u, z, t = fr; off, win, xo = self.loc(2*s_ + u); r = aF + 4*slot + 2*uu
        if t >= 8: return f"ds_read_b64_tr_b16 a[{r}:{r+1}], v{vXO + 2*z + t - 8} offset:{xo + uu*1024}"
        return f"ds_read_b64_tr_b16 a[{r}:{r+1}], v{(vOR1 if z else vOR0) + t} offset:{off + uu*4096}"

    def reduce_setup(self):
        o = ""
        for x in range(4):
            o += f"s_xor_b32 s{sX0}, s{sW}, {x}\ns_lshl_b32 s{sX0}, s{sX0}, 14\ns_add_u32 s{sX0}, s{sX0}, {W0}\nv_add_u32 v{vRW+x}, s{sX0}, v3\n"
        o += f"""v_bfe_u32 v{vPSA+1}, v2, 4, 1
        v_lshrrev_b32 v{vPSA}, 5, v2
        v_lshl_add_u32 v{vPSA}, v{vPSA+1}, 1, v{vPSA}
        v_lshlrev_b32 v{vPSA}, 4, v{vPSA}
        v_and_b32 v{vPSA+1}, 15, v2
        v_lshl_add_u32 v{vPSA}, v{vPSA+1}, 6, v{vPSA}
        s_mul_i32 s{sPS+5}, s{sB}, {BAT}
        s_mul_i32 s{sX0}, s{sHKV}, {BLK}
        s_add_u32 s{sPS+5}, s{sPS+5}, s{sX0}
        s_add_u32 s{sPS+5}, s{sPS+5}, {PART}
        s_mul_i32 s{sPS+4}, s{sW}, 5120
        s_add_u32 s{sPS+4}, s{sPS+4}, s{sPS+5}
        s_xor_b32 s{sPS+2}, s{sW}, 1
        s_mul_i32 s{sPS+2}, s{sPS+2}, 5120
        s_add_u32 s{sPS+2}, s{sPS+2}, s{sPS+5}
        s_lshl_b32 s{sX0}, s{sS}, 1
        s_add_u32 s{sX0}, s{sX0}, s{sH}
        s_lshl_b32 s{sX0}, s{sX0}, 10
        s_add_u32 s{sPS}, s{sPS+4}, s{sX0}
        s_add_u32 s{sPS+1}, s{sPS+2}, s{sX0}
        s_add_u32 s{sOP}, s{sPS+5}, s{sX0}
        s_add_u32 s{sOP}, s{sOP}, 20480
        s_xor_b32 s{sX0}, s{sX0}, 1024
        s_add_u32 s{sPS+3}, s{sPS+2}, s{sX0}
        s_add_u32 s{sPS+2}, s{sPS+4}, s{sX0}
        s_add_u32 s{sPS+4}, s{sPS+4}, 4096
        s_add_u32 s{sOP+1}, s{sPS+5}, {20480 + 4096}
        s_xor_b32 s{sX0}, s{sW}, 3
        s_min_u32 s{sX0}, s{sX0}, 1
        s_lshl_b32 s{sX0}, s{sX0}, 30
        s_or_b32 s{sOP+1}, s{sOP+1}, s{sX0}
        v_lshrrev_b32 v{vSEL}, 4, v2
        v_bfe_u32 v{vSEL+1}, v2, 2, 2
        v_xor_b32 v{vSEL}, v{vSEL}, v{vSEL+1}
        v_min_u32 v{vSEL}, 1, v{vSEL}
        v_sub_u32 v{vSEL}, 1, v{vSEL}
        v_mul_u32_u24 v{vSEL}, 0x3f80, v{vSEL}
        v_and_b32 v{vSEL+1}, 1, v2
        v_lshlrev_b32 v{vSEL+1}, 4, v{vSEL+1}
        v_lshlrev_b32 v{vSEL}, v{vSEL+1}, v{vSEL}
        v_bfe_u32 v{vSEL+1}, v2, 1, 1
        v_sub_u32 v{vSEL+1}, 0, v{vSEL+1}
        v_and_b32 v{vSEL+3}, v{vSEL}, v{vSEL+1}
        v_xor_b32 v{vSEL+2}, v{vSEL}, v{vSEL+3}
        v_mov_b32 v{vSEL}, 0
        v_mov_b32 v{vSEL+1}, 0
        v_mov_b32 v{vSEL+4}, 0
        v_mov_b32 v{vSEL+5}, 0"""
        return [x.strip() for x in o.split("\n") if x.strip()]

    def final_setup(self):
        a = self.grp == "a"; NP = 400 if a else 320
        t = vF + 5
        o = f"""s_mul_i32 s{sX0}, s{sHG}, {NP}
        v_add_u32 v{vF}, s{sX0}, v0
        v_add_u32 v{vF+1}, 256, v{vF}
        s_mov_b32 s{sX0}, 52429
        """
        for r in range(2):
            o += f"""v_mul_u32_u24 v{t}, s{sX0}, v{vF+r}
            v_lshrrev_b32 v{t}, 24, v{t}
            v_mul_u32_u24 v{t+1}, 320, v{t}
            v_sub_u32 v{t+1}, v{vF+r}, v{t+1}
            v_lshrrev_b32 v{t+1}, 2, v{t+1}
            v_mul_u32_u24 v{t+1}, 1152, v{t+1}
            v_lshl_add_u32 v{t+1}, v{t}, 6, v{t+1}
            v_add_u32 v{t+1}, s{sPS+6}, v{t+1}
            """
            if a: o += f"""v_lshrrev_b32 v{t}, 2, v{t}
            v_mul_u32_u24 v{t}, s{sJ}, v{t}
            v_mul_u32_u24 v{t}, 160, v{t}
            v_sub_u32 v{t+1}, v{t+1}, v{t}
            """
            o += f"""v_and_b32 v{t}, 3, v{vF+r}
            v_lshl_add_u32 v{vF+2+r}, v{t}, 4, v{t+1}
            v_lshlrev_b32 v{vF+r}, 4, v{vF+r}
            """
        o += f"""v_sub_u32 v{t}, {NP - 257}, v0
        v_and_b32 v{t}, 0x40000000, v{t}
        v_or_b32 v{vF+1}, v{vF+1}, v{t}
        v_or_b32 v{vF+3}, v{vF+3}, v{t}
        s_mul_i32 s{sF2}, s{sB}, {BAT}
        s_lshl_b32 s{sX0}, s{sJ}, 11
        s_add_u32 s{sF2}, s{sF2}, s{sX0}
        s_add_u32 s{sF2}, s{sF2}, {FL + 32768}
        v_and_b32 v{vF+4}, 3, v2
        v_xor_b32 v{vF+4}, s{sHG}, v{vF+4}
        v_lshlrev_b32 v{vF+4}, {self.C.f2s}, v{vF+4}
        s_mul_i32 s{sF2+1}, s{sB}, {BAT}
        s_mul_i32 s{sX0}, s{sJ}, {BLK}
        s_add_u32 s{sF2+1}, s{sF2+1}, s{sX0}
        s_add_u32 s{sF2+1}, s{sF2+1}, {PART}
        s_mul_i32 s{sOP+2}, s{sB}, 92160"""
        return [x.strip() for x in o.split("\n") if x.strip()]

    def final(self):
        A, C, tag = self.A, self.C, self.tag
        stamp(A, C, 7)
        A(f"""s_mov_b32 s{sCNT}, 0
        s_waitcnt vmcnt(0)
        s_barrier""")
        stamp(A, C, 8)
        A(f"""s_cmp_lg_u32 s{sW}, 0
        s_cbranch_scc1 {tag}_fq
        s_mov_b64 exec, 1
        buffer_store_dword v{vRDY}, v{vF+4}, s[{SWS}:{SWS+3}], s{sF2} offen sc1
        s_mov_b64 exec, 14""")
        pl = lambda k: f"buffer_load_dword v{vS+k}, v{vF+4}, s[{SWS}:{SWS+3}], s{sF2} offen sc1"
        D = C.pd
        for k in range(D - 1): A(pl(k) + f"\ns_sleep {C.ps}")
        if C.p0: A(f"s_sleep {C.p0}")
        A(f"{tag}_fp:")
        for k in range(D):
            A(f"""{pl((k + D - 1) % D)}
            s_waitcnt vmcnt({D - 1})
            v_cmp_ne_u32 vcc, 1, v{vS+k}
            s_add_u32 s{sCNT}, s{sCNT}, 1
            s_and_b32 s{sT2}, vcc_lo, 14
            s_cbranch_scc0 {tag}_fq""")
        if C.pl: A(f"s_sleep {C.pl}")
        A(f"s_cmp_lt_u32 s{sCNT}, {SPIN}\ns_cbranch_scc1 {tag}_fp\n{tag}_fq:\ns_mov_b64 exec, -1\ns_barrier")
        stamp(A, C, 9)
        for p in range(4):
            for r in range(2): A(f"buffer_load_dwordx4 {r4('a', 16*r+4*p)}, v{vF+r}, s[{SWS}:{SWS+3}], s{sF2+1} offen sc1")
            if p < 3: A(f"s_add_u32 s{sF2+1}, s{sF2+1}, {4*BLK}")
        for p in range(4):
            A(f"s_waitcnt vmcnt({(3-p)*2})")
            for r in range(2):
                for e in range(2):
                    d = r4("v", vO + 8*r + 4*e)
                    A(f"{MF} {d}, {r4('v', vSEL + 2 - 2*e)}, {r4('a', 16*r+4*p)}, {'0' if p == 0 else d}")
        for r in range(2):
            pack(A, vO + 8*r, vO + 8*r + 4, vO + 8*r, None, False)
            A(f"buffer_store_dwordx4 {r4('v', vO+8*r)}, v{vF+2+r}, s[{SOUT}:{SOUT+3}], s{sOP+2} offen {C.outf}")
        if C.stamps: A("s_waitcnt vmcnt(0)\ns_barrier")
        stamp(A, C, 10)
        flush(A, C, self.name)
        A("s_endpgm")
```

```python
import sys, math, struct, json
from asmlib import *
from sched import Op, schedule, ORDER as ORD
import hazard
QSCALE = struct.unpack("<I", struct.pack("<f", math.log2(math.e) / math.sqrt(128.0)))[0]
STAMP = 64 << 20
OOB = 0x7fff0000
SPIN = 200000
MF = "v_mfma_f32_16x16x32_bf16"
LLO, LHI = (127 - 60) << 23, (127 + 60) << 23

SDBG, SX, SK, SV, SWQ, SWO, SWS, SOUT = 4, 20, 24, 28, 32, 36, 40, 44
sW, sH, sS, sJ, sHG, sB, sHKV, sW4K, sX0, sT0, sT1, sT2, sQS, sRET, sSAFE, sCNT = 48, 49, 50, 51, 52, 53, 54, 55, 56, 57, 58, 59, 60, 62, 64, 65
sU = 8
sST = 76
vWD, vXD, vKD, vVD, vWR, vXR, vKR, vVR, vT = 4, 8, 11, 15, 17, 25, 31, 39, 55
vQ, vO, vS, vE = 64, 112, 208, 248
vNEG = 252
aK, aV, aL, aONE = 0, 128, 192, 204
aWA, aWB = 64, 208
XR, WQR, QX = 94208, 114688, 114688
def kslot(i): return (i % 3) * 16384
def vslot(i): return 49152 + (i % 3) * 16384
ORDER = ["K0"] + [x for i in range(7) for x in (f"K{i+1}", f"V{i}")] + ["V7"]
JSLOT, JSET = [0, 1, 2, 0, 1], [0, 0, 0, 1, 1]

class Cfg:
    nact = 256; abl = ""; abl0 = ""; fine = ""; abl2 = ""; wg = 7; cyc = 0; NB = 5; lagb = 0; laga = 0; latev = 0; tlb = 0; wpre = ""; tsh = 16; stamps = 0; tail = "h"; split = 3; touch = "KWm"; outf = ""; wsp = 0; wp = 0; vz = 0; v0 = 10; v1 = 6; kd = 70; sr = 0; s0 = 1; fga = 40; pc = 14; am = 0; a3 = 25; ea = ""; eb = "01"; va = ""; vb = ""; l0 = 2.6; p1 = 45; hop = 2; da = "540-4.5"; db = "550-4"
    dg = (76, 78, 80, 82, 85, 87, 89, 91); of = "sc1"; dual = 1; f0 = 3; qi = 3; xg = 18; two = "b"; f1 = 8; f1a = 20; q2 = 30; n7 = 1; nost = ""; be = 6; g0 = 2; bpre = 4; r7 = 4; l1e = 44; cl = 1; f2s = 2; p0 = 0; pl = 0; c7 = 2; c6 = 4; sw = 1; s3 = 4; s4 = 6; l2 = ""; mid = "ab"; taa = "a433"; tba = "b436"; tab = "b433"; tbb = "a150"; wbb = 460; rn = 1; tf = ""; apre = 3; wa = 540; wb = -1; lf = "sc1"; fg = 50; lr = 4.2; la = 3.4; pd = 1; ps = 4; na = 7; rush = 3; pg = 140; aq = 62; lead = 12; no = 7; sg = 0
    def __init__(self, **kw):
        for k, val in kw.items(): setattr(self, k, val)
        if isinstance(self.dg, str): self.dg = tuple(int(x) for x in self.dg.split('-'))

class VM:
    def __init__(self): self.q = []
    def add(self, tag, n=1): self.q += [tag] * n
    def wait(self, *tags):
        idx = [i for i, t in enumerate(self.q) if t in tags]
        if not idx: return None
        n = len(self.q) - 1 - max(idx)
        self.q = self.q[max(idx) + 1:]
        assert n <= 63
        return n

def srd(A, d, base, off, size):
    if off is None: A(f"s_mov_b32 s{d}, s{base}\ns_mov_b32 s{d+1}, s{base+1}")
    else: A(f"s_add_u32 s{d}, s{base}, {off}\ns_addc_u32 s{d+1}, s{base+1}, 0")
    A(f"s_mov_b32 s{d+2}, {size}\ns_mov_b32 s{d+3}, 0x20000")
def stamp_txt(C, i): return f"{'s_memtime' if C.cyc else 's_memrealtime'} s[{sST+2*i}:{sST+2*i+1}]"
def stamp(A, C, i):
    if C.sg == 4 and 5 <= i <= 8 and any(f's[{sST+2*i}:' in l for l in A.L): return
    if C.stamps and not C.fine: A(stamp_txt(C, i))
def fine(C, phase, out):
    if not C.fine or C.fine[0] != phase: return out
    g0, dg = (int(x) for x in C.fine[1:].split("-")); res = []; n = 0
    for i, o in enumerate(out):
        res.append(o)
        if isinstance(o, str) and o.startswith(MF):
            if n >= g0 and (n - g0) % dg == 0 and (n - g0) // dg < 13:
                res.append(stamp_txt(C, (n - g0) // dg))
                if out[i + 1] == ";sfree": out[i + 1] = ";"
            n += 1
    return res
def r4(p, i): return f"{p}[{i}:{i+3}]"

def emit(A, vm, out):
    for o in out:
        if isinstance(o, str): A(o); continue
        if getattr(o, "want", None) is not None:
            n = vm.wait(*o.want)
            if n is None: A(f"s_waitcnt {o.txt}" if o.txt else ";sfree")
            else: A(f"s_waitcnt vmcnt({n}) {o.txt}")
        else: A(o.txt)
        if getattr(o, "tag", None) is not None: vm.add(o.tag, getattr(o, "cnt", 1))
def waitop(tags, extra="", **kw):
    o = Op(extra, "s", **kw); o.want = tags; return o
class Chain:
    def __init__(self): self.last = None
    def group(self, ops, x, tag, gaps, first=(), nscal=2):
        prev = self.last
        for t in reversed(x[:nscal]):
            o = Op(t, "s", lo=gaps[0] - 2, dl=gaps[0], pri=gaps[0] - 2, after=[prev] if prev and prev.kind == "L" else [], same=[prev] if prev and prev.kind == "s" else [])
            ops.append(o); prev = o
        for t, gp in zip(x[len(x) - len(gaps):] if nscal == 1 else x[2:], gaps):
            o = Op(t, "L", lo=gp, dl=gp, after=[prev] + list(first))
            o.tag = tag; ops.append(o); prev = o
        self.last = prev
        return prev

def prologue(A, C, name):
    A(f"""s_load_dwordx16 s[4:19], s[0:1], 0
    s_cmp_ge_u32 s2, {C.nact}
    s_cbranch_scc1 {name}_end""")
    stamp(A, C, 0)
    A(f"""v_lshrrev_b32 v1, 6, v0
    v_and_b32 v2, 63, v0
    v_readfirstlane_b32 s{sW}, v1
    s_and_b32 s{sHG}, s2, 3
    s_bfe_u32 s{sJ}, s2, 0x20003
    s_lshr_b32 s{sB}, s2, 5
    s_bfe_u32 s{sT0}, s2, 0x10002
    s_lshl_b32 s{sT0}, s{sT0}, 3
    s_add_u32 s{sB}, s{sB}, s{sT0}
    s_lshl_b32 s{sHKV}, s{sHG}, 2
    s_add_u32 s{sHKV}, s{sHKV}, s{sJ}
    s_lshr_b32 s{sH}, s{sW}, 1
    s_and_b32 s{sS}, s{sW}, 1
    s_lshl_b32 s{sW4K}, s{sW}, 12""")

def code_touch(A, name):
    A(f"""s_getpc_b64 s[{sRET}:{sRET+1}]
    {name}_pc:
    s_sub_u32 s{sRET}, s{sRET}, {name}_pc-{name}_kernel
    s_subb_u32 s{sRET+1}, s{sRET+1}, 0
    s_lshr_b32 s{sT0}, s2, 4
    v_lshl_add_u32 v1, v0, 4, s{sT0}
    v_lshlrev_b32 v1, 7, v1
    v_min_u32 v1, {name}_hot-{name}_kernel-4, v1
    s_cmp_lg_u32 s{sW}, 0
    s_cbranch_scc1 {name}_nc
    global_load_dword v255, v1, s[{sRET}:{sRET+1}]
    {name}_nc:""")

def w_addresses(A):
    t = vT
    A(f"""s_mul_i32 s{sX0}, s{sW}, 2560
    s_add_u32 s{sX0}, s{sX0}, {XR}
    v_lshrrev_b32 v{t}, 4, v2
    v_and_b32 v{t+1}, 15, v2
    v_lshlrev_b32 v{t+2}, 1, v{t}
    v_xor_b32 v{t+2}, v{t+1}, v{t+2}
    v_lshlrev_b32 v{t+2}, 4, v{t+2}
    v_lshl_add_u32 v{vWD}, v{t}, 13, v{t+2}
    v_xor_b32 v{vWD+2}, 128, v{vWD}
    v_add_u32 v{vWD+1}, {4*8192-1024}, v{vWD}
    v_add_u32 v{vWD+3}, {12*8192-3072}, v{vWD+2}
    v_add_u32 v{vWD+2}, {8*8192-2048}, v{vWD+2}
    v_lshrrev_b32 v{t}, 3, v2
    v_and_b32 v{t+1}, 7, v2
    s_mul_i32 s{sT0}, s{sW}, 20
    v_add_u32 v{t+2}, s{sT0}, v{t}
    v_bfe_u32 v{t+3}, v{t+2}, 1, 3
    v_xor_b32 v{t+3}, v{t+1}, v{t+3}
    v_mul_u32_u24 v{t+2}, 1152, v{t+2}
    v_lshl_add_u32 v{vXD}, v{t+3}, 4, v{t+2}
    v_xor_b32 v{vXD+1}, 64, v{vXD}
    v_add_u32 v{vXD+1}, {8*1152-1024}, v{vXD+1}
    v_add_u32 v{vXD+2}, {16*1152-2048}, v{vXD}""")
def w_srds(A):
    A(f"s_mul_i32 s{sT0}, s{sB}, 92160")
    srd(A, SX, 4, f"s{sT0}", 92160)
    A(f"""s_lshl_b32 s{sT0}, s{sHKV}, 9
    s_lshl_b32 s{sT2}, s{sH}, 8
    s_add_u32 s{sT0}, s{sT0}, s{sT2}
    s_lshl_b32 s{sT2}, s{sS}, 17
    s_add_u32 s{sT0}, s{sT0}, s{sT2}
    s_sub_u32 s{sT2}, {576*8192}, s{sT0}""")
    srd(A, SWQ, 10, f"s{sT0}", f"s{sT2}")
def kv_setup(A):
    t = vT
    A(f"""v_lshrrev_b32 v{t}, 4, v2
    v_and_b32 v{t+1}, 15, v2
    v_lshlrev_b32 v{t+2}, 1, v{t}
    v_xor_b32 v{t+2}, v{t+1}, v{t+2}
    v_lshlrev_b32 v{t+2}, 4, v{t+2}
    v_lshl_add_u32 v{vVD}, v{t}, 8, v{t+2}
    v_xor_b32 v{vVD+1}, 128, v{vVD}
    v_xor_b32 v{t+2}, v{t+1}, v{t}
    v_lshlrev_b32 v{t+2}, 4, v{t+2}
    v_lshl_add_u32 v{vKD}, v{t}, 8, v{t+2}
    v_xor_b32 v{vKD+1}, 64, v{vKD}
    v_xor_b32 v{vKD+2}, 128, v{vKD}
    v_xor_b32 v{vKD+3}, 192, v{vKD}
    s_lshl_b32 s{sT1}, s{sB}, 4
    s_add_u32 s{sT1}, s{sT1}, s{sHKV}
    s_lshl_b32 s{sT1}, s{sT1}, 17""")
    srd(A, SK, 6, f"s{sT1}", 131072)
    srd(A, SV, 8, f"s{sT1}", 131072)

def late_addresses(A, C):
    g, q, r, cc, t = vT, vT + 1, vT + 2, vT + 3, vT + 4
    A(f"""v_lshrrev_b32 v{g}, 4, v2
    v_and_b32 v{q}, 15, v2
    v_bfe_u32 v{r}, v2, 2, 2
    v_and_b32 v{cc}, 3, v2
    v_and_b32 v{t+2}, 1, v{g}
    v_lshl_add_u32 v{t+1}, v{t+2}, 2, v{r}
    v_lshlrev_b32 v{t+1}, 5, v{t+1}
    v_lshl_add_u32 v{t+1}, v{cc}, 3, v{t+1}
    s_lshl_b32 s{sT1}, s{sS}, 7
    v_xor_b32 v{t+1}, s{sT1}, v{t+1}
    v_lshl_add_u32 v{t}, v{g}, 3, v{r}
    v_lshl_add_u32 v{t}, v{t}, 8, v{t+1}
    s_lshl_b32 s{sT0}, s{sH}, 13
    s_add_u32 s{sT0}, s{sT0}, {WQR}
    v_add_u32 v{vWR}, s{sT0}, v{t}""")
    for k in range(1, 8): A(f"v_xor_b32 v{vWR+k}, {32*k}, v{vWR}")
    A(f"""v_lshl_add_u32 v{t}, v{g}, 2, v{r}
    v_lshl_add_u32 v{t}, v{t}, 8, v{t+1}
    s_lshl_b32 s{sT0}, s{sS}, 13
    s_add_u32 s{sT2}, s{sT0}, {vslot(0)}
    v_add_u32 v{vVR}, s{sT2}, v{t}""")
    for k in range(1, 16): A(f"v_xor_b32 v{vVR+k}, {32*(k & 7) + 8192*(k >> 3)}, v{vVR}")
    A(f"""v_lshrrev_b32 v{t}, 1, v{g}
    v_lshl_add_u32 v{t}, v{t+2}, 1, v{t}
    v_xor_b32 v{t}, v{t}, v{q}
    v_lshlrev_b32 v{t}, 4, v{t}
    v_xor_b32 v{t}, s{sT1}, v{t}
    v_lshl_add_u32 v{t}, v{q}, 8, v{t}
    v_add_u32 v{vKR}, s{sT0}, v{t}""")
    for k in range(1, 8): A(f"v_xor_b32 v{vKR+k}, {64*(k & 3) + 8192*(k >> 2)}, v{vKR}")
    A(f"""v_lshrrev_b32 v{t}, 1, v{q}
    v_xor_b32 v{t}, v{t}, v{g}
    v_lshlrev_b32 v{t}, 4, v{t}
    v_lshl_add_u32 v{t}, v{q}, 7, v{t}
    s_lshl_b32 s{sT0}, s{sS}, 1
    s_add_u32 s{sT0}, s{sT0}, s{sH}
    s_lshl_b32 s{sT0}, s{sT0}, 11
    s_xor_b32 s{sT1}, s{sT0}, 2048
    s_add_u32 s{sT0}, s{sT0}, {XR}
    s_add_u32 s{sT1}, s{sT1}, {XR}
    v_add_u32 v{vXR}, s{sT0}, v{t}
    v_add_u32 v{vXR+2}, s{sT1}, v{t}
    v_add_u32 v{vXR+4}, {XR + 8192}, v{t}""")
    for k in range(3): A(f"v_xor_b32 v{vXR+2*k+1}, 64, v{vXR+2*k}")
    A(f"""v_lshlrev_b32 v3, 4, v2
    v_mov_b32 v1, 0
    s_mov_b32 s{sQS}, {QSCALE}
    s_mov_b32 s{sQS+1}, {QSCALE}
    s_mov_b32 s{sSAFE}, 1
    v_mov_b32 v{vNEG+2}, 0
    v_mov_b32 v{t}, 0x3f803f80""")
    for i in range(4): A(f"v_accvgpr_write_b32 a{aONE+i}, v{t}")
    A(f"s_mul_i32 s{sT0}, s{sHG}, {1024*1152}")
    srd(A, SWO, 12, f"s{sT0}", 1024 * 1152)
    srd(A, SOUT, 14, None, 1280 * 1152)
    srd(A, SDBG, 16, None, 256)

def touches(A, C, vm, first, mid):
    x, w = vQ + 8, vQ + 9
    A(f"s_movk_i32 s{sX0}, 224")
    A(f"""v_lshlrev_b32 v{x}, 7, v0
    v_cmp_gt_u32 vcc, 180, v0
    v_mov_b32 v{vT+1}, {OOB}
    s_lshr_b32 s{sT0}, s{sJ}, 1
    s_mul_i32 s{sT0}, s{sT0}, 46080
    v_cndmask_b32 v{x}, v{vT+1}, v{x}, vcc
    s_mul_i32 s{sT1}, s{sB}, 92160
    s_add_u32 s{sT0}, s{sT0}, s{sT1}
    v_lshrrev_b32 v{w}, 2, v0
    v_and_b32 v{vT+1}, 3, v0
    s_and_b32 s{sT1}, s{sB}, 7
    v_lshl_add_u32 v{w}, v{w}, 3, s{sT1}
    v_lshlrev_b32 v{w}, 13, v{w}
    v_lshl_add_u32 v{w}, v{vT+1}, 7, v{w}""")
    if "K" in C.touch:
        k = vQ + 10
        A(f"""v_mul_u32_u24 v{k}, 21846, v0
        v_lshrrev_b32 v{k}, 16, v{k}
        v_mul_u32_u24 v{k}, {1152 - 384}, v{k}
        v_lshl_add_u32 v{k}, v0, 7, v{k}
        v_subrev_u32 v{k+1}, {256*8192}, v{w}
        v_cmp_gt_u32 vcc, 128, v0
        v_cmp_gt_u32 s[{sQS}:{sQS+1}], s{sX0}, v0
        v_mov_b32 v{vT+1}, {OOB}
        v_cndmask_b32 v{k}, v{k+1}, v{k}, vcc
        s_xor_b32 s{sT1}, s{sHKV}, 1
        s_lshl_b32 s{sT1}, s{sT1}, 9
        v_cndmask_b32 v{k}, v{vT+1}, v{k}, s[{sQS}:{sQS+1}]""")
    A("s_waitcnt lgkmcnt(0)")
    if C.sg == 4: stamp(A, C, 5)
    first()
    srd(A, SOUT, 4, f"s{sT0}", 46080)
    srd(A, SWO, 10, None, 576 * 8192)
    for ch in C.touch:
        if ch == "K":
            A(f"""s_cmp_lt_u32 s{sW}, 2
            s_cselect_b32 s{SX}, s{SOUT}, s{SWO}
            s_cselect_b32 s{SX+1}, s{SOUT+1}, s{SWO+1}
            s_cselect_b32 s{SX+2}, s{SOUT+2}, s{SWO+2}
            s_cselect_b32 s{sT1}, 0, s{sT1}
            s_cselect_b32 s{sT0}, 1, 4096
            s_mov_b32 s{SX+3}, 0x20000
            s_mul_i32 s{sT0}, s{sT0}, 384""")
            for r in range(3):
                A(f"buffer_load_dword v255, v{vQ+10}, s[{SX}:{SX+3}], s{sT1} offen\ns_add_u32 s{sT1}, s{sT1}, s{sT0}"); vm.add("touch")
        if ch == "X":
            A(f"buffer_load_dword v255, v{x}, s[{SOUT}:{SOUT+3}], 0 offen\ns_mov_b32 s{sT0}, 23040\nbuffer_load_dword v255, v{x}, s[{SOUT}:{SOUT+3}], s{sT0} offen"); vm.add("touch", 2)
        if ch in "oW":
            A(f"""s_xor_b32 s{sT0}, s{sHKV}, {1 if ch == 'o' else 0}
            s_lshl_b32 s{sT0}, s{sT0}, 9
            buffer_load_dword v255, v{w}, s[{SWO}:{SWO+3}], s{sT0} offen
            s_add_u32 s{sT0}, s{sT0}, {512*8192}
            buffer_load_dword v255, v{w}, s[{SWO}:{SWO+3}], s{sT0} offen"""); vm.add("touch", 2)
        if ch in "hl":
            A(f"""s_lshl_b32 s{sT0}, s{sHKV}, 9
            s_cmp_{'lt' if ch == 'h' else 'ge'}_u32 s{sW}, 2
            s_cselect_b32 s{sT2}, s{sT0}, {OOB}
            buffer_load_dword v255, v{w}, s[{SWO}:{SWO+3}], s{sT2} offen"""); vm.add("touch")
            if ch == "l": A(f"s_add_u32 s{sT0}, s{sT0}, {512*8192}\nbuffer_load_dword v255, v{w}, s[{SWO}:{SWO+3}], s{sT0} offen"); vm.add("touch")
        if ch == "m":
            if C.sg == 4: stamp(A, C, 6)
            mid()

def wo_touches(A, C, vm):
    if not C.wpre: return
    t = vT
    A(f"s_mul_i32 s{sT0}, s{sHG}, {1024*1152}")
    srd(A, SWO, 12, f"s{sT0}", 1024 * 1152)
    A(f"""v_lshrrev_b32 v{t}, 2, v0
    v_mul_u32_u24 v{t}, 1152, v{t}
    v_and_b32 v{t+1}, 3, v0
    v_lshl_add_u32 v{t+2}, v{t+1}, 7, v{t}
    s_and_b32 s{sT0}, s{sB}, 7
    s_lshl_b32 s{sT0}, s{sT0}, 1
    s_lshr_b32 s{sT2}, s{sJ}, 1
    s_add_u32 s{sT0}, s{sT0}, s{sT2}
    s_mul_i32 s{sT0}, s{sT0}, 73728
    v_cmp_eq_u32 vcc, 0, v{t+1}
    v_mov_b32 v{t+1}, {OOB}
    s_nop 0
    v_cndmask_b32 v{t}, v{t+1}, v{t}, vcc""")
    if "b" in C.wpre: A(f"buffer_load_dword v255, v{t+2}, s[{SWO}:{SWO+3}], s{sT0} offen"); vm.add("touch")
    if "a" in C.wpre:
        A(f"buffer_load_dword v255, v{t+2}, s[{SWO}:{SWO+3}], s{sT0} offen offset:512\nbuffer_load_dword v255, v{t}, s[{SWO}:{SWO+3}], s{sT0} offen offset:1024"); vm.add("touch", 2)

def dma_kv(name, slot=None, so=None):
    i = int(name[1:])
    if name[0] == "V": sr, sl, va = SV, vslot(i), [vVD, vVD + 1, vVD, vVD + 1]
    else: sr, sl, va = SK, kslot(i), [vKD + a for a in range(4)]
    o = [f"s_add_u32 m0, s{sW4K}, {sl if slot is None else slot}", f"s_add_u32 s{sT1}, s{sW4K}, {i*16384 if so is None else so}"]
    return o + [f"buffer_load_dwordx4 v{va[a]}, s[{sr}:{sr+3}], s{sT1} offen offset:{a*1024} nt lds" for a in range(4)]
def dma_wq(j):
    o = [f"s_add_u32 m0, s{sW4K}, {WQR + (j % 3)*16384}", f"s_mov_b32 s{sT1}, {j*262144}"]
    return o + [f"buffer_load_dwordx4 v{vWD+a}, s[{SWQ}:{SWQ+3}], s{sT1} offen offset:{a*1024} lds" for a in range(4)]
def dma_x(t):
    o = [f"s_add_u32 m0, s{sX0}, {((t + 1) % 2)*10240}", f"s_mov_b32 s{sT0}, {t*128}"]
    o += [f"buffer_load_dwordx4 v{vXD+i}, s[{SX}:{SX+3}], s{sT0} offen offset:{i*1024} lds" for i in range(2)]
    o += [f"s_mov_b32 exec_hi, 0\nbuffer_load_dwordx4 v{vXD+2}, s[{SX}:{SX+3}], s{sT0} offen offset:2048 lds\ns_mov_b32 exec_hi, -1"]
    return o
def w_reads(j):
    p = j & 1
    o = [("D", f"ds_read_b128 {r4('a', aWB+12*p+4*k)}, v{vXR+2*k+p} offset:{(((j >> 1) + 1) % 2)*10240}") for k in range(3)]
    for t in range(8):
        for u in range(2): o.append(("d", f"ds_read_b64_tr_b16 a[{aWA+32*p+4*t+2*u}:{aWA+32*p+4*t+2*u+1}], v{vWR+t} offset:{(j % 3)*16384 + u*1024}"))
    return o
def k_reads(i, buf=None, slot=None):
    b = aK + 64 * (i & 1 if buf is None else buf); sl = kslot(i) if slot is None else slot
    return [f"ds_read_b128 {r4('a', b+32*z+16*kt+4*p)}, v{vKR+4*z+p} offset:{sl + kt*4096}" for z in range(2) for kt in range(2) for p in range(4)]
def v_reads(i, slot=None):
    sl = (vslot(i) if slot is None else slot) - vslot(0)
    return [f"ds_read_b64_tr_b16 a[{aV+32*z+4*m+2*u}:{aV+32*z+4*m+2*u+1}], v{vVR+8*z+m} offset:{sl + u*4096}" for z in range(2) for m in range(8) for u in range(2)]

def qproj(A, C, vm, issued, grp):
    mf = []; ops = []; ch = Chain()
    for j in range(18):
        G = 20 * j; p = j & 1; nxt = j + 1
        for t in range(8):
            for k in range(3 if t < 4 else 2):
                d = vO + 32 * k + 4 * t
                mf.append(f"{MF} {r4('v', d)}, {r4('a', aWA+32*p+4*t)}, {r4('a', aWB+12*p+4*k)}, {'0' if j == 0 else r4('v', d)}")
        b0 = G + C.wg + 1
        bar = None
        if nxt < 18:
            wv = waitop([("wq", nxt)] + ([("x", nxt >> 1)] if p else []), "lgkmcnt(0)", lo=b0 - 1, dl=b0 - 1)
            bar = Op("s_barrier", "b", lo=b0, dl=b0, after=[wv]); ops += [wv, bar]
            last = bar
            need = [0, 1, 2] + [x for t in range(8) for x in [3 * t if t < 4 else 4 + 2 * t] * 2]
            rds = sorted(zip(need, range(19), w_reads(nxt)), key=lambda x: (x[0] + (0.5 if x[1] in (3, 4) else 0), x[1])) if C.wp else zip(need, range(19), w_reads(nxt))
            for n, (nd, _, (kind, t)) in enumerate(rds):
                last = Op(t, kind if C.wp else "d", lo=b0 + int(n * C.wp), dl=G + 20 + min(nd - 3, C.wg - 2), pri=G, same=[last]); ops.append(last)
        t = (nxt >> 1) + 1
        gaps = [b0 + 10, b0 + 13, b0 + 16, b0 + 19] if p and t < 9 else [b0 + 3, b0 + 8, b0 + 13, b0 + 18]
        if p and t < 9: ch.group(ops, dma_x(t), ("x", t), [b0 + 1, b0 + 4, b0 + 7], first=[bar])
        gaps = [min(g, 356 + k) for k, g in enumerate(gaps)]
        if j + 3 < 18: ch.group(ops, dma_wq(j + 3), ("wq", j + 3), gaps, first=[bar])
        elif issued < (C.be if grp == "b" and C.NB else 5):
            assert issued < 6 or j == 17
            ch.group(ops, dma_kv(ORDER[issued]), ORDER[issued], gaps); issued += 1
        if grp == "b" and C.NB and j == 0:
            for n, t in enumerate(k_reads(0)):
                g = 20 * (2 + n // 2) + C.wg - 6 + (n & 1); ops.append(Op(t, "D", lo=g, dl=g + 2))
    out, over, idle = schedule(mf, ops)
    print(f"qproj: overflow {over} idle {idle}", file=sys.stderr)
    for o in out:
        if isinstance(o, str): continue
        if "x" in C.abl0 and o.txt.startswith("s_mov_b32 exec_hi"): o.txt = "s_nop 0"; o.tag = None
        if "B" in C.abl0 and o.txt == "s_barrier": o.txt = "s_nop 0"
        if "L" in C.abl0 and o.kind == "L" and not isinstance(o.tag, str): o.txt = "s_nop 0"; o.tag = None
        if "d" in C.abl0 and o.kind == "d": o.txt = "s_nop 0"
    emit(A, vm, fine(C, "w", out))
    return issued

def pack(A, x, y, d, scale, swap):
    if scale:
        for r in (x, x + 2, y, y + 2): A(f"v_pk_mul_f32 v[{r}:{r+1}], v[{r}:{r+1}], {scale}")
    A(f"""v_cvt_pk_bf16_f32 v{d}, v{x}, v{x+1}
    v_cvt_pk_bf16_f32 v{d+1}, v{x+2}, v{x+3}
    v_cvt_pk_bf16_f32 v{d+2}, v{y}, v{y+1}
    v_cvt_pk_bf16_f32 v{d+3}, v{y+2}, v{y+3}""")
    return [f"v_permlane16_swap_b32 v{d}, v{d+2}", f"v_permlane16_swap_b32 v{d+1}, v{d+3}"] if swap else []

def q_epilogue(A, C, vm, issued, grp):
    w = vT
    A(f"s_lshl_b32 s{sT0}, s{sW}, 11\ns_add_u32 s{sT0}, s{sT0}, {QX}\nv_add_u32 v{w}, s{sT0}, v3\nv_xor_b32 v{w+1}, 2048, v{w}")
    pend = []
    todo = [(2, 0), (2, 1)] + [(k, p) for k in range(2) for p in range(4)]
    for n, (k, p) in enumerate(todo):
        x = vO + 32 * k + 8 * p
        sw = pack(A, x, x + 4, vQ + 16 * k + 4 * p, f"s[{sQS}:{sQS+1}]", True)
        for t in pend: A(t)
        pend = sw
        if k == 2: pend = pend + [f"ds_write_b128 v{w}, {r4('v', vQ+32+4*p)} offset:{p*1024}"]
        if n >= 2 and issued < C.qi and n % 3 == 2:
            for t in dma_kv(ORDER[issued]): A(t)
            vm.add(ORDER[issued], 4); issued += 1
    for t in pend: A(t)
    pre = grp == "b" and C.NB >= 3
    if C.hop in (1, 3) and grp == "a": A(";hop")
    n = vm.wait("K0", *(("K1", "V0") if pre else ()))
    A((f"s_waitcnt vmcnt({n}) lgkmcnt(0)" if n is not None else "s_waitcnt lgkmcnt(0)") + "\ns_barrier")
    if not (grp == "b" and C.NB):
        for t in k_reads(0): A(t)
    for p in range(2): A(f"ds_read_b128 {r4('v', vQ+40+4*p)}, v{w+1} offset:{p*1024}")
    return pre, issued

def qk(i, jb, c0="0"):
    o = []
    for kt in range(2):
        for p in range(4):
            d = vS + 8 * jb + 4 * kt
            o.append(f"{MF} {r4('v', d)}, {r4('a', aK+64*(i&1)+32*JSET[jb]+16*kt+4*p)}, {r4('v', vQ+16*JSLOT[jb]+4*p)}, {c0 if p == 0 else r4('v', d)}")
    return o
def pv(jb, first, lead=False):
    k = JSLOT[jb]; pp = r4("v", vS + 8 * jb)
    o = [f"{MF} {r4('v', vO+32*k+4*m)}, {r4('a', aV+32*JSET[jb]+4*m)}, {pp}, {'0' if first else r4('v', vO+32*k+4*m)}" for m in range(8)]
    l = [f"{MF} {r4('a', aL+4*k)}, {r4('a', aONE)}, {pp}, {'0' if first else r4('a', aL+4*k)}"]
    return l + o if lead else o + l

def attention(A, C, vm, pre, issued, extra, lag):
    mf = []; ops = []; ch = Chain()
    xg = 20 if pre else C.xg
    wx = waitop(["K1", "V0"], "lgkmcnt(0)", lo=xg, dl=xg)
    bx = Op("s_barrier", "b", lo=xg + 1, dl=xg + 1, after=[wx])
    if pre: bx = None
    else: ops += [wx, bx]
    g0 = 2 if issued < 5 else C.g0 if pre else xg + 4; sp = min((72 - g0) / (4 * max(1, 7 - issued)), 6)
    while issued < (5 if lag else 7):
        ch.group(ops, dma_kv(ORDER[issued]), ORDER[issued], [int(g0 + sp * a) for a in range(4)], first=[bx] if issued >= 5 else []); issued += 1; g0 += 4 * sp
    gate = None if pre else bx
    for i in range(8):
        G = 85 * i
        for jb in range(5): mf += qk(i, jb)
        for jb in range(5): mf += pv(jb, i == 0 and jb < 3, i == 7)
        for jb in range(5):
            s0 = vS + 8 * jb; dl = G + 38 + 9 * jb
            ex = [Op(f"v_exp_f32 v{s0+k}, v{s0+k}", "e", lo=G + 8 * jb + (7 if k < 4 else 11), dl=dl - 12 + k + k // 2) for k in range(8)]
            prev = None
            for k in range(4):
                prev = Op(f"v_cvt_pk_bf16_f32 v{s0+k}, v{s0+2*k}, v{s0+2*k+1}", "v", dl=dl - 9 + 3 * k, after=[ex[2*k], ex[2*k+1]], same=[prev]); ops.append(prev)
            ops += ex
        last = gate
        if i == 7 and C.latev:
            wv = waitop(["V7"], lo=G + C.latev, dl=G + C.latev)
            last = Op("s_barrier", "b", lo=G + C.latev + 1, dl=G + C.latev + 1, after=[wv]); ops += [wv, last]
        for k, t in enumerate(v_reads(i)):
            z, m = k >> 4, (k >> 1) & 7
            if z == 0: lo, dl = G - 27 + m, G + 28 + m
            elif m < C.vz: lo, dl = G - 9 + m, G + 30 + m
            else: lo, dl = G + C.v0 + C.v1 * (m - C.vz), G + C.v0 + 2 + C.v1 * (m - C.vz)
            if i == 0 and not pre: lo, dl = (0, xg + 3 + (34 - xg) * m // 8) if z == 0 else (0, 40 + 3 * m)
            if i == 7 and C.latev: lo, dl = (G + C.latev + 1 + 2 * m, G + 33 + m) if z == 0 else (G + 40 + 2 * m, G + 42 + 2 * m)
            last = Op(t, "d", lo=lo, dl=dl, pri=dl if (z and m >= C.vz) or (i == 0 and not pre) else G - 60, same=[last]); ops.append(last)
        if i < 7:
            last = gate
            for t in k_reads(i + 1):
                last = Op(t, "D", lo=G + 9, dl=G + C.kd, pri=G - 50, same=[last]); ops.append(last)
            wv = waitop([f"K{i+2}", f"V{i+1}"] if i < 6 or not C.latev else [], "lgkmcnt(0)", lo=G + 74, dl=G + 74, after=[last])
            gate = Op("s_barrier", "b", lo=G + 75, dl=G + 75, after=[wv]); ops += [wv, gate]
            for n in range(2):
                if issued < 16:
                    ch.group(ops, dma_kv(ORDER[issued]), ORDER[issued], [G + g for g in C.dg[4*n:4*n+4]], first=[gate]); issued += 1
            if lag and i == lag - 1:
                for n in range(2):
                    ch.group(ops, dma_kv(ORDER[issued]), ORDER[issued], [G + 105 + 24 * n + 6 * a for a in range(4)], first=[gate]); issued += 1
        extra(ops, ch, i, G, gate)
        if i == 7:
            w = Op("s_waitcnt lgkmcnt(0)", "s", lo=G + 62, dl=G + 64, after=[last])
            sb = Op("s_barrier", "b", lo=G + 63, dl=G + 68, after=[w]); ops += [w, sb]
            prev = None
            for lo, t in norm_pre():
                kind = "L" if t.startswith("ds_") else "e" if t.startswith("v_rcp") else t[0]
                prev = Op(t, kind, lo=G + lo, dl=G + (min(84, lo + 2) if lo > 0 else 55), same=[prev] + ([sb] if kind == "L" else []), after=[prev] if prev and ORD[prev.kind] > ORD[kind] else [])
                ops.append(prev)
        if C.sg == 2 and i in (4, 5, 6): ops.append(Op(stamp_txt(C, i - 3), "s", lo=G + 71, dl=G + 73))
        if i == 3 and C.stamps and not C.fine: ops.append(Op(stamp_txt(C, 4), "s", lo=G + 71, dl=G + 73))
    out, over, idle = schedule(mf, ops, 6)
    print(f"attention: overflow {over} idle {idle}", file=sys.stderr)
    for o in out:
        if isinstance(o, str): continue
        if "B" in C.abl and o.txt == "s_barrier": o.txt = "s_nop 0"
        if "L" in C.abl and o.kind == "L": o.txt = "s_nop 0"
        if "d" in C.abl and o.kind in "dD": o.txt = "s_nop 0"
    emit(A, vm, fine(C, "a", out))

def safe_attention(A, name):
    t, u = vT + 4, vT + 5
    A(f"""{name}_safe:
    s_nop 7
    s_mov_b32 s{sCNT}, 0
    v_lshrrev_b32 v{t}, 5, v2
    v_bfe_u32 v{u}, v2, 4, 1
    v_lshl_add_u32 v{t}, v{u}, 1, v{t}
    v_and_b32 v{u}, 15, v2
    v_xor_b32 v{t}, v{t}, v{u}
    v_lshlrev_b32 v{t}, 4, v{t}
    s_lshl_b32 s{sT1}, s{sS}, 7
    v_xor_b32 v{t}, s{sT1}, v{t}
    v_lshl_add_u32 v{t}, v{u}, 8, v{t}
    s_lshl_b32 s{sT1}, s{sS}, 13
    s_add_u32 s{sT1}, s{sT1}, s{sT2}
    v_add_u32 v{vKR}, s{sT1}, v{t}""")
    for k in range(1, 8): A(f"v_xor_b32 v{vKR+k}, {64*(k & 3) + 8192*(k >> 2)}, v{vKR}")
    for k in range(3): A(f"v_mov_b32 v{vNEG+k}, 0x7f800000")
    for r in range(96): A(f"v_mov_b32 v{vO+r}, 0")
    for r in range(12): A(f"v_accvgpr_write_b32 a{aL+r}, 0")
    A(f"{name}_sl:\ns_barrier")
    for nm, slot in (("K0", f"s{sT2}"), ("V0", vslot(1))):
        x = dma_kv(nm, slot, f"s{sCNT}")
        A("\n".join([x[0], x[1]] + x[2:]))
    A("s_waitcnt vmcnt(0)\ns_barrier")
    for x in k_reads(0, 0, 0) + v_reads(0, vslot(1)): A(x)
    A("s_waitcnt lgkmcnt(0)")
    for jb in range(5):
        s0 = vS + 8 * jb; k = JSLOT[jb]
        for m in qk(0, jb): A(m)
        A(f"""s_nop 7
        v_max3_f32 v{t}, v{s0}, v{s0+1}, v{s0+2}
        v_max3_f32 v{t}, v{t}, v{s0+3}, v{s0+4}
        v_max3_f32 v{t}, v{t}, v{s0+5}, v{s0+6}
        v_max_f32 v{t}, v{t}, v{s0+7}
        v_mov_b32 v{u}, v{t}
        s_nop 1
        v_permlane32_swap_b32 v{t}, v{u}
        s_nop 1
        v_max_f32 v{t}, v{t}, v{u}
        v_mov_b32 v{u}, v{t}
        s_nop 1
        v_permlane16_swap_b32 v{t}, v{u}
        s_nop 1
        v_min3_f32 v{t}, -v{t}, -v{u}, v{vNEG+k}
        v_sub_f32 v{u}, v{t}, v{vNEG+k}
        v_exp_f32 v{u}, v{u}
        v_mov_b32 v{vNEG+k}, v{t}""")
        for r in range(8): A(f"v_add_f32 v{s0+r}, v{s0+r}, v{t}")
        for r in range(8): A(f"v_exp_f32 v{s0+r}, v{s0+r}")
        for r in range(32): A(f"v_mul_f32 v{vO+32*k+r}, v{vO+32*k+r}, v{u}")
        for r in range(4): A(f"v_accvgpr_read_b32 v{t}, a{aL+4*k+r}\nv_mul_f32 v{t}, v{t}, v{u}\nv_accvgpr_write_b32 a{aL+4*k+r}, v{t}")
        for r in range(4): A(f"v_cvt_pk_bf16_f32 v{s0+r}, v{s0+2*r}, v{s0+2*r+1}")
        A("s_nop 1")
        for m in pv(jb, False): A(m)
    A(f"s_nop 7\ns_add_u32 s{sCNT}, s{sCNT}, 16384\ns_cmp_lt_u32 s{sCNT}, 131072\ns_cbranch_scc1 {name}_sl\ns_barrier")
    for k in range(8): A(f"v_xor_b32 v{vKR+k}, 8192, v{vWR+k}")
    A(f"s_setpc_b64 s[{sRET}:{sRET+1}]")

EXB = 0
SAFEK = 0
def ob(k, p): return vO + 32 * k + 8 * p
def norm_pre():
    w, r, fa, l = vT, vT + 1, vT + 2, vE
    o = [(-160, t.strip()) for t in f"""s_mul_i32 s{sT0}, s{sW}, 5120
    s_add_u32 s{sT0}, s{sT0}, {EXB}
    v_add_u32 v{w}, s{sT0}, v3
    s_xor_b32 s{sT0}, s{sW}, 1
    s_mul_i32 s{sT0}, s{sT0}, 5120
    s_add_u32 s{sT0}, s{sT0}, {EXB}
    v_add_u32 v{r}, s{sT0}, v3
    s_lshl_b32 s{sT0}, s{sW}, 2
    s_add_u32 s{sT0}, s{sT0}, {EXB + 20480}
    v_mov_b32 v{fa}, s{sT0}
    v_mov_b32 v{l+3}, v{vNEG+2}""".split("\n")]
    o += [(63, f"v_accvgpr_read_b32 v{l+2}, a{aL+8}"), (63, f"v_subrev_u32 v{fa+3}, {LLO}, v{l+2}"), (66, f"ds_write_b64 v{w}, v[{l+2}:{l+3}] offset:4096")]
    o += [(70, f"ds_write_b128 v{w}, {r4('v', vO+80)} offset:0"), (72, f"v_accvgpr_read_b32 v{l}, a{aL}"), (72, f"v_subrev_u32 v{fa+1}, {LLO}, v{l}")]
    o += [(72 + 2 * m, f"ds_write_b128 v{w}, {r4('v', vO+80+4*m)} offset:{m*1024}") for m in range(1, 4)]
    o += [(79, f"v_rcp_f32 v{l}, v{l}"), (80, f"v_accvgpr_read_b32 v{l+1}, a{aL+4}"), (80, f"v_subrev_u32 v{fa+2}, {LLO}, v{l+1}"),
          (81, f"v_max3_u32 v{fa+1}, v{fa+1}, v{fa+2}, v{fa+3}"), (81, f"v_cmp_lt_u32 vcc, {LHI - LLO}, v{fa+1}"), (82, f"v_rcp_f32 v{fa+5}, v{l+1}"),
          (83, f"s_cmp_lg_u64 vcc, 0\ns_cselect_b32 s{sT0}, s{sSAFE}, 0"), (83, f"v_mov_b32 v{fa+1}, s{sT0}"), (84, f"ds_write_b32 v{fa}, v{fa+1}")]
    return o

def normalise(A, C, tag, name, store, prebar=lambda: "", checked=lambda: None):
    w, r, fa = vT, vT + 1, vT + 2
    l = vE
    lo, no, lp, np_, t = l + 2, l + 3, vS + 20, vS + 21, fa
    sc = [f"v[{l}:{l+1}] op_sel_hi:[1,0]", f"v[{fa+5}:{fa+6}] op_sel_hi:[1,0]"]
    def own(k, p): pack(A, ob(k, p), ob(k, p) + 4, ob(k, p), sc[k], False); store(k, p)
    def shared(p):
        for k in range(8 * p, 8 * p + 8, 2): A(f"v_pk_mul_f32 v[{vO+64+k}:{vO+65+k}], v[{vO+64+k}:{vO+65+k}], v[{lo}:{lo+1}] op_sel_hi:[1,0]")
        for k in range(8 * p, 8 * p + 8, 2): A(f"v_pk_fma_f32 v[{vO+64+k}:{vO+65+k}], v[{vS+k}:{vS+k+1}], v[{lp}:{lp+1}], v[{vO+64+k}:{vO+65+k}] op_sel_hi:[1,0,1]")
        pack(A, ob(2, p), ob(2, p) + 4, ob(2, p), None, False); store(2, p)
    A(f"{tag}_x:")
    own(0, 0)
    A(f"""v_mov_b32 v{fa}, {EXB + 20480}
    s_waitcnt {prebar()}lgkmcnt(0)
    s_barrier
    ds_read_b128 {r4('v', vS+16)}, v{fa}
    ds_read_b64 v[{vS+20}:{vS+21}], v{r} offset:4096""")
    for m in range(4): A(f"ds_read_b128 {r4('v', vS+4*m)}, v{r} offset:{m*1024}")
    own(0, 2); own(1, 0)
    A(f"""v_or3_b32 v{vS+16}, v{vS+16}, v{vS+17}, v{vS+18}
    v_or_b32 v{vS+16}, v{vS+16}, v{vS+19}
    v_cmp_ne_u32 vcc, 0, v{vS+16}
    v_min_f32 v{t}, v{no}, v{np_}
    v_sub_f32 v{no}, v{t}, v{no}
    v_sub_f32 v{np_}, v{t}, v{np_}
    v_exp_f32 v{no}, v{no}
    v_exp_f32 v{np_}, v{np_}
    s_cbranch_vccnz {tag}_fb
    v_mul_f32 v{lo}, v{lo}, v{no}
    v_fma_f32 v{lo}, v{lp}, v{np_}, v{lo}
    v_rcp_f32 v{t}, v{lo}""")
    own(1, 2)
    A(f"v_mul_f32 v{lo}, v{no}, v{t}\nv_mul_f32 v{lp}, v{np_}, v{t}")
    shared(0); own(0, 1); own(1, 1); shared(1); own(0, 3); own(1, 3)
    if C.cl: checked()
    redo = "\ns_nop 1\n".join(t for _, t in norm_pre())
    return f"{tag}_fb:\ns_waitcnt vmcnt(0) lgkmcnt(0)\ns_mov_b32 s{sSAFE}, 0\ns_mov_b32 s{sT2}, {SAFEK}\ns_call_b64 s[{sRET}:{sRET+1}], {name}_safe\n{redo}\ns_nop 1\ns_branch {tag}_x"

def dump_setup(A):
    A(f"""v_and_b32 v{vXR}, 15, v2
    v_lshrrev_b32 v{vXR+1}, 4, v2
    v_lshlrev_b32 v{vXR}, 13, v{vXR}
    v_lshl_add_u32 v{vXR}, v{vXR+1}, 3, v{vXR}
    s_lshl_b32 s{sT0}, s{sS}, 7
    v_add_u32 v{vXR}, s{sT0}, v{vXR}
    v_xor_b32 v{vXR+1}, 128, v{vXR}
    s_mul_i32 s{sU+2}, s{sB}, {80*8192}
    s_lshl_b32 s{sT1}, s{sHKV}, 9
    s_add_u32 s{sU+2}, s{sU+2}, s{sT1}
    s_lshl_b32 s{sT1}, s{sH}, 8
    s_add_u32 s{sU+2}, s{sU+2}, s{sT1}
    s_add_u32 s{sU+2}, s{sU+2}, {1280*8192}
    s_lshl_b32 s{sT0}, s{sS}, 1
    s_add_u32 s{sT0}, s{sT0}, s{sH}
    s_lshl_b32 s{sT0}, s{sT0}, 17
    s_xor_b32 s{sT1}, s{sT0}, {1 << 17}
    s_add_u32 s{sU}, s{sU+2}, s{sT0}
    s_add_u32 s{sU+1}, s{sU+2}, s{sT1}
    s_add_u32 s{sU+2}, s{sU+2}, {4 << 17}""")

def flush(A, C, name):
    if not C.stamps: return
    A(f"s_waitcnt lgkmcnt(0)\ns_lshl_b32 s{sT0}, s2, 6\ns_add_u32 s{sT0}, s{sT0}, {STAMP}\ns_cmp_lg_u32 s{sW}, 0\ns_cbranch_scc1 {name}_end\ns_mov_b64 exec, 1")
    for i in range(C.stamps): A(f"v_mov_b32 v4, s{sST+2*i}\nbuffer_store_dword v4, v1, s[{SWS}:{SWS+3}], s{sT0} offen offset:{4*i}")

MID = dict(vz=4, v0=20, v1=10, dg=(78, 82, 86, 90, 104, 116, 128, 140))
MID2 = dict(vz=4, v0=14, v1=8, dg=(78, 82, 86, 90, 128, 136, 144, 152))
def path(C, name, grp, stubs):
    import copy
    C = copy.copy(C)
    if grp in C.l2: C.of = ""
    if grp in C.mid:
        for k, val in (MID2 if "2" in C.mid else MID).items(): setattr(C, k, val)
    A = Asm(); vm = VM(); tag = f"{name}_{grp}"
    T = None
    if C.tail == "h":
        import tail2
        T = tail2.Tail(C, name, grp, A, vm, stubs)
    issued = 0
    if grp == "b":
        code_touch(A, name)
        def mid():
            kv_setup(A)
            if T: T.start()
        def first():
            srd(A, SWS, 18, None, 128 << 20)
            if T: T.clear()
        if T: T.clear_prepare()
        touches(A, C, vm, first, mid)
        wo_touches(A, C, vm)
        w_srds(A)
        A(";hot")
        w_addresses(A)
        late_addresses(A, C)
        if T: A("\n".join(T.touch_setup()))
        if C.hop: A(";hop")
        for n in range(C.NB):
            for t in dma_kv(ORDER[n]): A(t)
            vm.add(ORDER[n], 4)
            if n == min(C.NB - 1, C.rn) and T: T.ready()
        issued = C.NB
    else:
        w_addresses(A)
        if C.sg == 4: stamp(A, C, 5)
        A("s_waitcnt lgkmcnt(0)")
        if C.sg == 4: stamp(A, C, 6)
        w_srds(A)
    first = [(dma_x(0), ("x", 0), 3), (dma_wq(0), ("wq", 0), 4), (dma_wq(1), ("wq", 1), 4), (dma_x(1), ("x", 1), 3), (dma_wq(2), ("wq", 2), 4)]
    for n, (x, tg, cnt) in enumerate(first + [([], None, 0)]):
        if n == C.f0 and grp == "a":
            if C.sg == 4: stamp(A, C, 7)
            kv_setup(A)
            srd(A, SWS, 18, None, 128 << 20)
            A(";hot")
            late_addresses(A, C)
            if T: A("\n".join(T.touch_setup()))
            if C.hop: A(";hop")
        for t in x: A(t)
        vm.add(tg, cnt)
    if C.sg == 4: stamp(A, C, 8)
    A(f"s_waitcnt vmcnt({vm.wait(('x', 0), ('wq', 0))})\ns_barrier")
    stamp(A, C, 1)
    for _, t in w_reads(0): A(t)
    issued = qproj(A, C, vm, issued, grp)
    stamp(A, C, 2)
    pre, issued = q_epilogue(A, C, vm, issued, grp)
    if T: T.before_attention()
    stamp(A, C, 3)
    attention(A, C, vm, pre, issued, T.hook if T else lambda *a: None, C.lagb if grp == "b" else C.laga)
    stamp(A, C, 5)
    if T: T.run()
    else:
        dump_setup(A)
        def store(k, p):
            for e in range(2): A(f"buffer_store_dwordx2 v[{ob(k, p)+2*e}:{ob(k, p)+2*e+1}], v{vXR + (p >> 1)}, s[{SWS}:{SWS+3}], s{sU+k} offen offset:{(p & 1)*64 + e*32}")
        stubs.append(normalise(A, C, tag, name, store))
        stamp(A, C, 6)
        flush(A, C, name)
        A("s_endpgm")
    return A

def isins(l):
    t = l.strip(); return t and not t.endswith(":") and not t.startswith((";", "."))
def sizes(lines):
    import subprocess, re
    src = '.amdgcn_target "amdgcn-amd-amdhsa--gfx950"\n.text\nT:\n' + "\n".join(re.sub(r"(s_c?branch\S*) \S+", r"\1 T", l) for l in lines if isins(l)) + "\ns_endpgm\n"
    open("sz.s", "w").write(src)
    subprocess.run(["clang", "-x", "assembler", "-target", "amdgcn-amd-amdhsa", "-mcpu=gfx950", "-c", "sz.s", "-o", "sz.o"], check=True)
    d = subprocess.run(["llvm-objdump", "-d", "--mcpu=gfx950", "sz.o"], capture_output=True, text=True).stdout
    ad = [int(m.group(1), 16) for m in re.finditer(r"// ([0-9A-F]+):", d)]
    return [b - a for a, b in zip(ad, ad[1:])]
HOPLEN = 36
def page_hops(lines, tag):
    sz = iter(sizes(lines)); ad = 0; page = 1; out = []; marks = []
    for i, l in enumerate(lines):
        if l.strip() == ";hop": marks.append([len(out), []]); out.append(l); ad += HOPLEN; continue
        out.append(l)
        if not isins(l): continue
        ad += next(sz)
        if ad >= page * 4096 and ("v_mfma" in l or ad >= page * 4096 + 40):
            if marks: marks[-1][1].append(len(out)); out.append(None); ad += 4
            page += 1
    for k, (pos, st) in enumerate(marks):
        lab = lambda n: f"{tag}_h{k}_{n}" if n < len(st) else f"{tag}_h{k}_r"
        for n, p in enumerate(st): out[p] = f"{lab(n)}:\n    s_cbranch_execz {lab(n + 4)}"
        out[pos] = "    s_mov_b64 exec, 0\n" + "".join(f"    s_cmp_eq_u32 s{sW}, {w}\n    s_cbranch_scc1 {lab(w)}\n" for w in range(3)) + f"    s_branch {lab(3)}\n{lab(99)}:\n    s_mov_b64 exec, -1"
    return out

def kernel(C, name):
    hazard.IGNORE_STAMPS = bool(C.fine)
    P = Asm(); prologue(P, C, name)
    stubs = []
    pa = path(C, name, "a", stubs); pb = path(C, name, "b", stubs)
    for p_ in (pa, pb):
        p_.L, paid = hazard.autowait(p_.L)
        p_.L, forced = hazard.fix(p_.L)
        print("forced pads:", forced, "paid waits:", paid, file=sys.stderr)
    R = Asm(); safe_attention(R, name)
    bad = hazard.check(P.L + pa.L, "a") + hazard.check(P.L + pb.L, "b") + hazard.check(R.L, "safe")
    S = Asm()
    for t in stubs: S(t)
    bad += hazard.check(S.L, "stubs")
    assert not bad, f"{bad} hazards"
    mid = Asm(); mid(f"s_bitcmp1_b32 s{sJ}, 0\ns_cbranch_scc1 {name}_pb0")
    txt = P.text() + mid.text(); hot = ""
    for p_, gname in ((pa, "a"), (pb, "b")):
        n = next(i for i, l in enumerate(p_.L) if l.strip() == ";hot")
        txt += f"{name}_p{gname}0:\n" + "\n".join(p_.L[:n]) + f"\n    s_branch {name}_p{gname}\n"
        hot += f".p2align 12\n{name}_p{gname}:\n" + "\n".join(page_hops(p_.L[n + 1:], f"{name}_{gname}")) + "\n"
    return txt + S.text() + hot + f"{name}_hot:\n" + R.text() + f"{name}_end:\n    s_endpgm\n"

def main():
    from gen_naive import naive_parts
    cfgs = json.loads(sys.argv[1]); names = []
    for c in cfgs:
        n = "j" + "".join(f"_{kk}{vv}" for kk, vv in c.items()); names.append(n)
        C = Cfg(**c)
        l, k = naive_parts()
        if C.tail == "dump": txt = build([("fa_kernel", 256, 256, 163840), l[2]], [("fa_kernel", kernel(C, "fa"), 256, 256), k[2]])
        elif C.stamps == 11:
            from emu3 import after
            txt = build([("fa_kernel", 256, 256, 163840), ("af_kernel", 256, 64, 0)], [("fa_kernel", kernel(C, "fa"), 256, 256), ("af_kernel", after("af", 11), 32, 0)])
        else: txt = build([(KN + "_kernel", 256, 256, 163840)], [(KN + "_kernel", kernel(C, KN), 256, 256)])
        open(n + ".s", "w").write(txt)
    open("list.txt", "w").write(" ".join(x + ".s" for x in names))

if __name__ == "__main__":
    import gen2
    gen2.main()
```

```python
import sys
from gen2 import *
import gen2
BLK, PART, FL, BAT = 66816, 41088, 16 * 66816, 1310720
W0, W1, XB = 98304, 0, 65536
vOR0, vOR1, vXO, vXDM = vWR, vKR, vXR, vXD
vRDY, vPOL, vPA, vFA = 29, 30, 10, 61
sSRC, sOP, sOS, sF1, sDX, sOK, sRB, sW8K = 8, 12, 66, 15, 16, 17, 18, 19
sPS = 69
sSEL = 3
sTA = 73
sFI, sFO = 20, 22
aF = 128
PRE = 6
vRW, vRR, vPSA, vF = vT, vT + 1, vT + 4, vVR
sF2 = sRET
vSEL = 48

class Tail:
    def __init__(self, C, name, grp, A, vm, stubs):
        self.C, self.name, self.grp, self.A, self.vm, self.stubs = C, name, grp, A, vm, stubs
        self.tag = f"{name}_{grp}"
        self.NT = 10 if grp == "a" else 8
        self.X = [0, 2, 1, 3] if grp == "a" else [0, 1, 3, 2]
        self.pre = 3 if grp == "a" else 4
        self.nl = 0
        self.early = C.ea if grp == "a" else C.eb
        gen2.EXB = 0 if grp == "a" else 65536
        gen2.SAFEK = 0 if grp == "a" else 81920

    def clear_prepare(self):
        self.A(f"""s_cmp_eq_u32 s{sHKV}, 1
        s_cselect_b32 s{sCNT}, 0, {OOB}
        v_lshrrev_b32 v{vQ}, 2, v0
        v_add_u32 v{vQ}, 12, v{vQ}
        v_and_b32 v{vQ+1}, 3, v0
        v_lshl_add_u32 v{vQ}, v{vQ}, 3, v{vQ+1}
        v_lshlrev_b32 v{vQ+1}, 3, v0
        v_min_u32 v{vQ}, v{vQ}, v{vQ+1}
        v_lshrrev_b32 v{vQ+5}, 5, v0
        v_lshlrev_b32 v{vQ+5}, 27, v{vQ+5}
        v_lshl_add_u32 v{vQ+5}, v{vQ}, 8, v{vQ+5}
        v_or_b32 v{vQ+5}, s{sCNT}, v{vQ+5}
        v_mov_b32 v{vQ}, 0
        v_mov_b32 v{vQ+1}, 0
        v_mov_b32 v{vQ+2}, 0
        v_mov_b32 v{vQ+3}, 0
        s_mul_i32 s{sT2}, s{sB}, {BAT}
        s_add_u32 s{sT2}, s{sT2}, {FL}""")
    def clear(self):
        for k in range(1 + self.C.dual):
            self.A(f"buffer_store_dwordx4 {r4('v', vQ)}, v{vQ+5}, s[{SWS}:{SWS+3}], s{sT2} offen offset:{1024*k} sc1")
            self.vm.add("clr0")
    def start(self):
        self.A(f"""v_mov_b32 v{vT+1}, {OOB}
        s_mul_i32 s{sT1}, s{sB}, {BAT}
        v_lshlrev_b32 v{vQ+4}, 20, v0
        v_or_b32 v{vQ+4}, s{sCNT}, v{vQ+4}""")
        if self.C.tlb:
            self.A(f"""v_lshrrev_b32 v{vT}, 1, v0
            v_mul_u32_u24 v{vT}, {BLK}, v{vT}
            v_and_b32 v{vT+2}, 1, v0
            v_mul_u32_u24 v{vT+2}, {BLK - 128 - 40960}, v{vT+2}
            v_cmp_gt_u32 vcc, 33, v0
            v_add_u32 v{vT}, v{vT}, v{vT+2}
            v_add_u32 v{vT}, 40960, v{vT}
            v_cndmask_b32 v{vT}, v{vT+1}, v{vT}, vcc
            buffer_load_dword v255, v{vT}, s[{SWS}:{SWS+3}], s{sT1} offen""")
            self.vm.add("clr")
        if self.C.tlb > 1:
            self.A(f"s_mul_i32 s{sT0}, s{sHG}, {1024*1152}")
            srd(self.A, SWO, 12, f"s{sT0}", 1024 * 1152)
            self.A(f"s_mul_i32 s{sT0}, s{sB}, 92160")
            srd(self.A, SOUT, 14, f"s{sT0}", 92160)
            self.A(f"""v_lshlrev_b32 v{vT}, {self.C.tsh}, v0
            buffer_load_dword v255, v{vT}, s[{SWO}:{SWO+3}], 0 offen
            buffer_load_dword v255, v{vT}, s[{SOUT}:{SOUT+3}], 0 offen""")
            self.vm.add("clr", 2)
    def ready(self):
        A = self.A
        srd(A, SDBG, 16, None, 256)
        A(f"""s_lshl_b32 s{sT0}, s{sB}, 4
        v_mov_b32 v{vQ+5}, 1
        s_waitcnt vmcnt({self.vm.wait("clr0")})
        buffer_store_dword v{vQ+5}, v{vQ+4}, s[{SDBG}:{SDBG+3}], s{sT0} offen sc1""")
        self.vm.add("clr")

    def setup_ops(self):
        t = vT + 2
        a = self.grp == "a"
        o = f"""v_lshrrev_b32 v{t}, 4, v2
        v_mul_u32_u24 v{t}, {1152 - 256}, v{t}
        v_add_u32 v{vWD}, v{vVD}, v{t}
        v_add_u32 v{vWD+1}, v{vVD+1}, v{t}
        v_add_u32 v{vWD+2}, {2*(4608-1024)}, v{vWD}
        v_add_u32 v{vWD+3}, {3*(4608-1024)}, v{vWD+1}
        v_add_u32 v{vWD+1}, {4608-1024}, v{vWD+1}
        s_lshl_b32 s{sW8K}, s{sW}, 13
        s_lshr_b32 s{sT2}, s{sJ}, 1
        s_mul_i32 s{sT2}, s{sT2}, {384 if a else 256}
        s_add_u32 s{sPS+6}, s{sT2}, {512 if a else 0}
        s_mul_i32 s{sT2}, s{sW}, {64*1152}
        s_add_u32 s{sT2}, s{sT2}, s{sPS+6}"""
        for k, x in enumerate(self.X):
            o += f"\ns_xor_b32 s{sSRC+k}, s{sJ}, {x}\ns_mul_i32 s{sSRC+k}, s{sSRC+k}, {256*1152}\ns_add_u32 s{sSRC+k}, s{sSRC+k}, s{sT2}"
        o += f"""
        s_mul_i32 s{sT2}, s{sB}, {BAT}
        s_mul_i32 s{sOP}, s{sW}, 10240
        s_add_u32 s{sT2}, s{sT2}, s{sOP}
        s_mul_i32 s{sOP}, s{sHKV}, {BLK}
        s_add_u32 s{sOP}, s{sOP}, s{sT2}
        s_add_u32 s{sOP+1}, s{sOP}, 4096
        s_add_u32 s{sOP+2}, s{sOP}, 8192"""
        for k in range(1, 4):
            o += f"\ns_xor_b32 s{sOS+k-1}, s{sHKV}, {self.X[k]}\ns_mul_i32 s{sOS+k-1}, s{sOS+k-1}, {BLK}\ns_add_u32 s{sOS+k-1}, s{sOS+k-1}, s{sT2}"
        o += f"""
        s_lshl_b32 s{sF1}, s{sHG}, 2
        s_add_u32 s{sF1}, s{sF1}, s{sW}
        s_lshl_b32 s{sF1}, s{sF1}, 11
        s_mul_i32 s{sT2}, s{sB}, {BAT}
        s_add_u32 s{sF1}, s{sF1}, s{sT2}
        s_add_u32 s{sF1}, s{sF1}, {FL}
        v_and_b32 v{vPA}, 7, v2
        v_xor_b32 v{vPA}, s{sJ}, v{vPA}
        v_lshlrev_b32 v{vPA}, 1, v{vPA}
        s_lshl_b32 s{sT2}, s{sS}, 7
        s_lshl_b32 s{sDX}, s{sW}, 6
        s_xor_b32 s{sT2}, s{sT2}, s{sDX}
        v_xor_b32 v{vOR0}, s{sT2}, v{vVR}
        s_lshl_b32 s{sT2}, s{sH}, 14
        s_add_u32 s{sT2}, s{sT2}, {W0 - vslot(0)}
        v_add_u32 v{vOR0}, s{sT2}, v{vOR0}"""
        for k in range(1, 8): o += f"\nv_xor_b32 v{vOR0+k}, {32*k}, v{vOR0}"
        if a:
            o += f"""
            s_lshr_b32 s{sDX}, s{sJ}, 1
            s_mul_i32 s{sDX}, s{sDX}, -320
            s_add_u32 s{sDX}, s{sDX}, 256
            v_lshrrev_b32 v{t}, 2, v2
            v_mul_u32_u24 v{t}, 1152, v{t}
            v_bfe_u32 v{t+1}, v2, 4, 1
            v_lshlrev_b32 v{t+1}, 1, v{t+1}
            v_and_b32 v{t+2}, 3, v2
            v_xor_b32 v{t+2}, v{t+2}, v{t+1}
            v_lshl_add_u32 v{vXDM}, v{t+2}, 4, v{t}
            v_add_u32 v{vXDM+1}, {16*1152-1024}, v{vXDM}
            v_lshrrev_b32 v{t}, 2, v2
            v_lshlrev_b32 v{t}, 6, v{t}
            v_lshl_add_u32 v{t}, v{t+1}, 4, v{t}
            v_and_b32 v{t+2}, 3, v2
            v_lshl_add_u32 v{t}, v{t+2}, 3, v{t}
            s_lshl_b32 s{sT2}, s{sW}, 11
            s_add_u32 s{sT2}, s{sT2}, {XB}
            v_add_u32 v{vXO}, s{sT2}, v{t}
            v_xor_b32 v{vXO+1}, 32, v{vXO}
            v_xor_b32 v{vXO+2}, 2048, v{vXO}
            v_xor_b32 v{vXO+3}, {2048+32}, v{vXO}"""
        return [x.strip() for x in o.split("\n") if x.strip()]

    def touch_setup(self):
        t = vT + 2
        o = f"""s_lshl_b32 s{sRB}, s{sB}, 4
        v_lshrrev_b32 v{t}, 3, v0
        v_mul_u32_u24 v{t}, 1152, v{t}
        v_and_b32 v{t+1}, 7, v0
        v_lshl_add_u32 v{t}, v{t+1}, 7, v{t}
        v_lshrrev_b32 v{vNEG}, 2, v{t+1}
        v_lshl_add_u32 v{vNEG}, v{vNEG}, 30, v{t}
        v_add_u32 v{t+1}, 3, v{t+1}
        v_lshrrev_b32 v{t+1}, 3, v{t+1}
        v_lshl_add_u32 v{vNEG+1}, v{t+1}, 30, v{t}
        s_bfe_u32 s74, s{sB}, 0x10002
        s_lshl_b32 s74, s74, 4
        s_and_b32 s73, s{sB}, 3
        s_lshl_b32 s73, s73, 1
        s_add_u32 s74, s74, s73
        s_lshr_b32 s73, s{sJ}, 1
        s_add_u32 s74, s74, s73
        s_mul_i32 s{sTA}, s74, {32*1152}
        s_add_u32 s{sTA+1}, s{sTA}, {256*1152}"""
        return [x.strip() for x in o.split("\n")]
    def touch_ops(self, ops, lo, hi, shift):
        for key in ("aa", "ab", "ba", "bb"):
            val = getattr(self.C, "t" + key)
            if val and val[0] == self.grp and lo <= int(val[1:]) < hi:
                g = int(val[1:]) - shift
                o = Op(f"buffer_load_dword v255, v{vNEG + (key[1] == 'a')}, s[{SWO}:{SWO+3}], s{sTA + (key[0] == 'b')} offen offset:{512 if key[1] == 'a' else 0}", "L", lo=g, dl=g + 4)
                o.tag = "touch"; ops.append(o)
    def before_attention(self): pass

    def loc(self, c):
        k, u = c >> 1, c & 1
        if k & 1: return (u ^ 1) * 32768, W1, u * 8192
        return u * 32768, W0, 16384 + u * 8192
    def dma(self, c):
        k, u = c >> 1, c & 1; off, win, xo = self.loc(c); gs = []
        for g in range(2):
            gs.append([f"s_add_u32 m0, s{sW8K}, {win + off + g*4096}", f"s_add_u32 s{sT1}, s{sSRC+k}, {(u*32 + 16*g)*1152}"]
                      + [f"buffer_load_dwordx4 v{vWD+a}, s[{SWO}:{SWO+3}], s{sT1} offen offset:{a*1024} lds" for a in range(4)])
        if self.grp == "a":
            gs.append([f"s_lshl_b32 m0, s{sW}, 11\ns_add_u32 m0, m0, {XB + xo}", f"s_add_u32 s{sT1}, s{sSRC+k}, {u*32*1152}\ns_add_u32 s{sT1}, s{sT1}, s{sDX}"]
                      + [f"buffer_load_dwordx4 v{vXDM+a}, s[{SWO}:{SWO+3}], s{sT1} offen offset:{a*1024} lds" for a in range(2)])
        return gs
    def oloads(self, k, sreg):
        return [f"buffer_load_dwordx4 {r4('a', 40*(k-1)+4*n)}, v{(3, vKD, vKD+1)[n >> 2]}, s[{SWS}:{SWS+3}], s{sreg} offen offset:{(n & 3)*1024} {self.C.lf}"
                for n in (0, 4, 8, 2, 6, 1, 5, 9, 3, 7)]
    def poll_txt(self, slow=False): return f"buffer_load_ushort v{vPOL}, v{vPA}, s[{SWS}:{SWS+3}], s{sF1} offen offset:{1024 if self.C.dual and not slow else 0} sc1"
    def flag_txt(self, half=False):
        st = f"buffer_store_short v{vRDY}, v{vPA}, s[{SWS}:{SWS+3}], s{sF1} offen"
        if half: return f"s_mov_b64 exec, 16\n{st} offset:1024\ns_mov_b64 exec, -1"
        return f"s_mov_b64 exec, 17\n{st} offset:1024\n{st} sc1\ns_mov_b64 exec, -1"
    def spin(self, lab, mask):
        one = lambda slow: f"""{self.poll_txt(slow)}
        s_add_u32 s{sCNT}, s{sCNT}, 1
        s_waitcnt vmcnt(0)
        v_cmp_ne_u32 vcc, 1, v{vPOL}
        s_nop 0
        s_and_b32 s{sT2}, vcc_lo, {mask}
        s_cbranch_scc0 {lab}_q"""
        fast = f"""{one(False)}
        s_and_b32 s{sT2}, s{sCNT}, 15
        s_cbranch_scc1 {lab}_p
        """ if self.C.dual else ""
        return f"""s_mov_b32 s{sCNT}, 0
        {lab}_p:
        {fast}{one(True)}
        s_cmp_lt_u32 s{sCNT}, {SPIN * (4 if self.C.dual else 1)}
        s_cbranch_scc1 {lab}_p
        {lab}_q:"""
    def acquire(self, ops, mask, gp, gc, first=()):
        self.nl += 1; lab = f"{self.tag}_aq{self.nl}"
        p = Op(self.poll_txt(), "L", lo=gp, dl=gp + 2, after=list(first)); p.tag = lab
        w = waitop([lab], lo=gc - 2, dl=gc - 2, after=[p])
        c = Op(f"v_cmp_ne_u32 vcc, 1, v{vPOL}", "v", lo=gc - 2, dl=gc - 2, same=[w])
        b = Op(f"s_and_b32 s{sT2}, vcc_lo, {mask}\ns_cbranch_scc1 {lab}\n{lab}_r:", "b", lo=gc, dl=gc, after=[c])
        ops += [p, w, c, b]
        self.stubs.append(f"{lab}:\n{self.spin(lab, mask)}\ns_branch {lab}_r")
        return b

    def hook(self, ops, ch, i, G, gate):
        C = self.C
        if i == 0:
            prev = None; su = self.setup_ops()
            for n, t in enumerate(su):
                prev = Op(t, "s" if t[0] == "s" else "v", lo=30, dl=(60 + 3 * n if n < 17 and self.early else 400 - 3 * (len(su) - n)), pri=10**5, after=[prev]); ops.append(prev)
                if n == 16: self.su16 = prev
        if i == 0: self.touch_ops(ops, 0, 680, 0)
        if i == 4:
            o = Op(f"buffer_load_dword v{vRDY}, v1, s[{SDBG}:{SDBG+3}], s{sRB} offen sc1", "L", lo=G - 30, dl=G - 14); o.tag = "rdy"; ops.append(o)
            lab = f"{self.tag}_rdy"
            w = waitop(["rdy"], lo=G + 161, dl=G + 163, after=[o])
            c = Op(f"v_cmp_ne_u32 vcc, 1, v{vRDY}", "v", lo=G + 162, dl=G + 170, after=[w])
            b = Op(f"s_cbranch_vccnz {lab}\n{lab}_r:", "b", lo=G + 164, dl=G + 178, after=[c], dist=2)
            ops += [w, c, b]; self.rdyok = b
            self.stubs.append(f"""{lab}:
            s_mov_b32 s{sCNT}, 0
            {lab}_p:
            buffer_load_dword v{vRDY}, v1, s[{SDBG}:{SDBG+3}], s{sRB} offen sc1
            s_add_u32 s{sCNT}, s{sCNT}, 1
            s_waitcnt vmcnt(0)
            v_cmp_ne_u32 vcc, 1, v{vRDY}
            s_cmp_ge_u32 s{sCNT}, {SPIN}
            s_cbranch_scc1 {lab}_r
            s_cbranch_vccnz {lab}_p
            s_branch {lab}_r""")
        if str(i) in self.early:
            n = self.early.index(str(i))
            ch.group(ops, self.dma(n >> 1)[n & 1], ("wo", n >> 1), [G + 144 + 4 * k for k in range(4)], first=[self.su16])
        if i == 5: self.gate5 = gate
        if i == 6:
            a = self.grp == "a"
            d0, d1 = (C.da if a else C.db).split("-"); pos = float(d0); rate = float(d1)
            plan = [(0, 0, None), (0, 1, None), (1, 0, None), (1, 1, None)][len(self.early):]
            if a: plan += [(0, 2, self.gate5), (1, 2, self.gate5)] + ([(2, 0, gate), (2, 1, gate)] if C.apre > 2 else [])
            else: plan += [(c, p, gate) for c in range(2, C.bpre) for p in range(2)]
            quiet = [85 * s_ + g for s_ in (4, 5, 6) for g in C.dg]
            for c, part, dep in plan:
                x = self.dma(c)[part]; gaps = []
                if dep: pos = max(pos, dep.lo + 1)
                if dep is gate: rate = min(rate, 4.6) if a or C.bpre == 4 else C.r7
                for _ in x[2:]:
                    near = [q for q in quiet if pos - 1 <= q <= pos + 1]
                    gaps.append(near[0] if near else int(pos)); pos = max(pos + rate, gaps[-1] + 2)
                ch.group(ops, x, ("wo", c), gaps, first=[dep])
            assert pos - rate < 678, pos
            prev = None
            for k in range(8):
                prev = Op(f"v_xor_b32 v{vOR1+k}, 8192, v{vOR0+k}", "v", lo=G + 76, dl=G + 165, after=[gate]); ops.append(prev)
        if i == 7 and self.grp == "b":
            p = Op(self.poll_txt(), "L", lo=G + C.p1, dl=G + C.p1, after=[self.rdyok]); p.tag = "pol1"; ops.append(p)

    def run(self):
        A, C, vm, NT, tag = self.A, self.C, self.vm, self.NT, self.tag
        a = self.grp == "a"
        def store(k, p):
            if a and C.sr or self.grp in C.nost and (k, p) != (0, 0): return
            A(f"buffer_store_dwordx4 {r4('v', ob(k, p))}, v3, s[{SWS}:{SWS+3}], s{sOP+k} offen offset:{p*1024} {C.of}"); vm.add("ost" if p & 1 else "ost0")
        def prebar():
            n = vm.wait(("wo", 0), ("wo", 1))
            return f"vmcnt({n}) " if n is not None else ""
        def checked():
            for n in range(PRE):
                for uu in range(2): A(self.rd((0, 0, 0, n), n, uu))
        self.stubs.append(normalise(A, C, tag, self.name, store, prebar, checked))
        A(f"v_add_u32 v{vKD}, 4096, v3\nv_add_u32 v{vKD+1}, 8192, v3\ns_mov_b32 s{sSAFE}, s{sOP}")
        stamp(A, C, 6)
        kept = lambda k, t: (k == 0) if t >= 8 else (t < 4 if k < 2 else t < 2)
        pool = [vS + 4*i for i in range(10)] + [vO + 80 + 4*i for i in range(4)] + [vO + 8*i + 4 for i in range(4)]
        areg = {}
        for t in range(NT):
            for k in range(3):
                if kept(k, t): areg[(k, t)] = vQ + 40 + 4*(t-8) if t >= 8 else vQ + 16*k + 4*t
                else: areg[(k, t)] = pool.pop(0)
        acc = lambda k, t: r4("v", areg[(k, t)])
        def bfr(s_, k, p): return r4("v", ob(k, p)) if s_ == 0 else r4("a", 40*(s_-1) + 4*(4*k + p))
        frags = []
        NO = C.na if a else C.no
        swap = a and C.sw
        sh = 4 if swap and "b" in C.two else 0
        if swap: NO = 7
        for c in ([0, 1, 2, 3, 4, 6, 5] if swap else range(NO)):
            for z in range(2):
                for t in range(NT): frags.append((c >> 1, c & 1, z, t))
        us = range(NO - 6, 2)
        frags += [(3, u, 0, t) for t in (3, 2) for u in us]
        frags += [(3, u, z, t) for t in reversed(range(4, NT)) for u in us for z in range(2)]
        frags += [(3, u, 1, t) for t in (3, 2) for u in us]
        frags += [(3, u, z, t) for t in (1, 0) for u in us for z in range(2)]
        NR = 32
        mf = []; first = []; lastuse = []; done = {}
        for n, (s_, u, z, t) in enumerate(frags):
            first.append(len(mf))
            for k in range(3 - z):
                d = acc(k, t)
                mf.append(f"{MF} {d}, {r4('a', aF + 4*(n % NR))}, {bfr(s_, k, 2*z + u)}, {'0' if n < NT else d}")
                done[(k, t)] = len(mf) - 1
            lastuse.append(len(mf) - 1)
        E = len(mf); CH = 5 * NT
        ops = []; ch = Chain(); bars = {}; vis = {}
        LEAD = C.lead
        latevis = {int(x) for x in (C.va if a else C.vb)}
        b1 = Op("s_barrier", "b", lo=6, dl=8)
        if a: ops.append(b1)
        for c in (1, 2, 3, 4, 7 if swap else 6):
            g = CH * c - 1
            need = [c + 1] if c + 1 < 6 and c + 1 not in latevis else []
            if swap and c == 4: need = []
            w = waitop([("wo", x) for x in need], lo=g - 1, dl=g - 1)
            bars[c] = Op("s_barrier", "b", lo=g, dl=g, after=[w]); ops += [w, bars[c]]
            for x in need: vis[x] = bars[c]
        if swap: bars[6] = bars[7]
        for c in sorted(({5, 7} if swap else {6, NO}) | latevis):
            g = CH * c - LEAD - 1; need = [5, 6] if c == 5 and swap else [6, 7] if NO == 6 and c == 6 else [c]
            w = waitop([("wo", x) for x in need], lo=g - 1, dl=g - 1)
            o = Op("s_barrier", "b", lo=g, dl=g, after=[w]); ops += [w, o]
            for x in need: vis[x] = o
        last = None; lastrd = {}
        for n in range(PRE, len(frags)):
            s_, u, z, t = frags[n]
            dep = []
            if t < 8 and s_ and lastrd[(z, t)][1] != s_:
                r = (vOR1 if z else vOR0) + t
                tg = Op(f"v_add_u32 v{r}, {(W1 - W0) & 0xffffffff if s_ & 1 else W0 - W1}, v{r}", "v", dl=first[n] - LEAD - 1, after=[lastrd[(z, t)][0]]); ops.append(tg); dep = [tg]
            ld = LEAD + (C.rush if s_ == 3 and first[n] >= NO * CH else 0) * (first[n] - NO * CH) // 10
            for uu in range(2):
                last = Op(self.rd(frags[n], n % NR, uu), "d", lo=max(lastuse[n - NR] if n >= NR else 0, first[n] - ld), dl=first[n] - 7, pri=first[n] - 30, same=[last, vis.get(2*s_ + u)], after=dep); ops.append(last)
            lastrd[(z, t)] = (last, s_)
        fg = C.fga if a else C.fg
        if a and C.sr:
            for n in range(10):
                g = int(C.s0 + C.sr * n)
                o = Op(f"buffer_store_dwordx4 {r4('v', ob(n >> 2, n & 3))}, v{(3, vKD, vKD+1)[n >> 2]}, s[{SWS}:{SWS+3}], s{sSAFE} offen offset:{(n & 3)*1024} {C.of}", "L", lo=g, dl=g + 1); o.tag = "ost"; ops.append(o)
            assert g + 2 < fg
        f1 = C.f1a if a else C.f1; fh = None
        if self.grp in C.two:
            w1 = waitop(["ost0"], lo=f1, dl=f1)
            fh = Op(self.flag_txt(True), "L", lo=f1 + 1, dl=f1 + 1, after=[w1]); fh.tag = "flag0"; ops += [w1, fh]
        hg_ = (f1 if fh and C.hop == 2 else fg) - 1
        if C.hop > 1: ops.append(Op(";hop", "s", lo=hg_, dl=hg_))
        wst = waitop(["ost"], lo=fg, dl=fg)
        fl = Op(self.flag_txt(), "L", lo=fg + 1, dl=fg + 1, after=[wst]); fl.tag = "flag"; fl.cnt = 1 + C.dual; ops += [wst, fl]
        if C.sg == 3 and not a: ops += [Op(stamp_txt(C, 1), "s", lo=fg - 2, dl=fg - 2), Op(stamp_txt(C, 2), "s", lo=fg + 2, dl=fg + 2)]
        pos = [1.0]
        def place(n, rate):
            g = []
            for _ in range(n): g.append(int(pos[0])); pos[0] += rate
            return g
        def chunk(c, after, lo, rate):
            pos[0] = max(pos[0], lo)
            for x in self.dma(c): ch.group(ops, x, ("wo", c), place(len(x) - 2, rate), first=after)
        def loads(k, after, lo, rate, sreg=None, part=slice(0, 10), waits=True):
            pos[0] = max(pos[0], lo); prev = after
            x = list(enumerate(self.oloads(k, sOS + k - 1 if sreg is None else sreg)))[part]
            for (n, t), g in zip(x, place(len(x), rate)):
                prev = Op(t, "L", lo=g, dl=g, after=[prev]); prev.tag = ("o", k, n); ops.append(prev)
                nd = {2: 0, 4: 3*NT, 7: CH, 9: CH + 3*NT}.get(n)
                if k == 3: nd = {9: 0}.get(n) if NO == 6 else {2: 0, 4: 3*NT, 9: CH}.get(n)
                if waits and nd is not None:
                    assert g < 2*k*CH + nd - 3, (k, n, g)
                    ops.append(waitop([prev.tag], lo=2*k*CH + nd - 3, dl=2*k*CH + nd - 3, after=[prev]))
            return prev
        R = C.lr
        if a:
            if C.apre > 2:
                x = self.dma(2)[2]; pos[0] = 3; ch.group(ops, x, ("wo", 2), place(2, R))
                chunk(3, [b1], 10, R)
            else:
                chunk(2, [], 2, C.l0); chunk(3, [b1], 10, C.l0)
            if fh:
                q = self.acquire(ops, 64, max(C.aq - 16, f1 + 2), C.aq, first=[fh])
                p = loads(1, q, C.aq + 2, R, part=slice(0, 5))
                chunk(4, [bars[1]], 0, C.la)
                g = max(int(pos[0]) - 2, fg + 8)
                p = q = self.acquire(ops, 4, max(g - 16, fg + 2), g, first=[fl, q])
                pos[0] = max(pos[0], g + 2)
            else:
                q = self.acquire(ops, 4, max(C.aq - 22, fg + 2), C.aq, first=[fl])
                p = loads(1, q, C.aq + 2, min(R, (2*CH - 6 - C.aq) / 2), part=slice(0, 5))
                chunk(4, [bars[1]], 0, C.la)
            loads(1, p, 0, C.la, part=slice(5, 10))
            chunk(5, [bars[2]], 0, C.la)
            def soft(k, mask, gp, gc, gate_gap, n1, after):
                lab = f"{tag}_s{k}"
                p = Op(self.poll_txt(), "L", lo=gp, dl=gp + 1, after=after); p.tag = lab
                w = waitop([lab], lo=gc, dl=gc, after=[p])
                c = Op(f"v_cmp_ne_u32 vcc, 1, v{vPOL}", "v", lo=gc, dl=gc, same=[w])
                sl = Op(f"s_and_b32 s{sOK}, vcc_lo, {mask}\ns_cselect_b32 s{sSEL}, {OOB}, s{sOS+k-1}", "b", lo=gc + 2, dl=gc + 2, after=[c])
                l = loads(k, sl, gc + 3, min(R, (gate_gap - gc - 5) / n1), sSEL, part=slice(0, n1), waits=False)
                g = Op(f"s_cmp_lg_u32 s{sOK}, 0\ns_cbranch_scc1 {lab}\n{lab}_r:", "b", lo=gate_gap, dl=gate_gap, after=[l])
                x = self.oloads(k, sOS + k - 1)[:n1]
                self.stubs.append(f"{lab}:\n{self.spin(lab, mask)}\n" + "\n".join(x) + f"\ns_branch {lab}_r")
                ops.extend([p, w, c, sl, g])
                return l, g
            if swap:
                chunk(6, [bars[3]], 0, min(R, (4*CH - C.c6 - max(pos[0], 3*CH + 1)) / 10))
                assert pos[0] < 4*CH
                lab = f"{tag}_late"
                pos[0] = 4*CH
                l3 = loads(3, None, 0, C.s3, sSEL, part=slice(0, 5), waits=False)
                ops.append(waitop([("o", 2, 4)], lo=4*CH + 3*NT - 3, dl=4*CH + 3*NT - 3))
                lg = int(pos[0]) + C.s4
                b = Op(f"s_cmp_lg_u32 s{sOK}, 0\ns_cbranch_scc1 {lab}\n{lab}_r:", "b", lo=lg, dl=lg, after=[l3]); ops.append(b)
                self.stubs.append(f"{lab}:\n{self.spin(lab, 8 << sh)}\n" + "\n".join(self.oloads(3, sOS + 2)[:5]) + f"\ns_branch {lab}_r")
                ops.append(waitop([l3.tag], lo=5*CH - 3, dl=5*CH - 3, after=[b]))
                q = self.acquire(ops, 10, max(4*CH + C.q2, lg + 1), 4*CH + C.q2 + 14, first=[b])
                x7 = self.dma(7)
                pos[0] = max(4*CH + C.q2, lg + 1) + 2
                for x in x7[:C.n7]: ch.group(ops, x, ("wo", 7), place(len(x) - 2, 12 / (4 * C.n7)), first=[bars[4], b])
                l2 = loads(2, q, 4*CH + C.q2 + 16, C.s3, part=slice(5, 10), waits=False)
                for x in x7[C.n7:]: ch.group(ops, x, ("wo", 7), place(len(x) - 2, C.s3), first=[bars[4], b])
                l = loads(3, l2, 0, C.s3, part=slice(5, 10), waits=False)
                assert pos[0] < 7*CH - LEAD - 6, pos[0]
                ops.append(waitop([l2.tag], lo=6*CH - 3, dl=6*CH - 3))
                ops.append(waitop([l.tag], lo=7*CH - 4, dl=7*CH - 4))
            elif C.am:
                g0 = max(int(pos[0]), 4*CH - C.am)
                l, g = soft(2, 2, g0 - C.a3, g0, 4*CH - 4, 5, [q])
                ops.append(waitop([l.tag], lo=4*CH - 3, dl=4*CH - 3, after=[g]))
                pos[0] = 4*CH
                loads(2, g, 0, 3, part=slice(5, 10))
                chunk(6, [bars[3]], 0, C.la)
                g1 = int(pos[0])
                l, g = soft(3, 8, g1 - C.a3, g1, g1 + 24, 5, [g])
                ops.append(waitop([l.tag], lo=6*CH - 4, dl=6*CH - 4, after=[g]))
                pos[0] = g1 + 26
                chunk(7, [bars[4], g], 0, C.la)
                loads(3, g, 0, C.la, part=slice(5, 10))
            else:
                chunk(6, [bars[3]], 0, min(R, (4*CH - C.c6 - max(pos[0], 3*CH + 1)) / 10))
                assert pos[0] < 4*CH
                lab = f"{tag}_late"
                pos[0] = 4*CH
                loads(2, None, 0, 3, part=slice(5, 10))
                ops.append(waitop([("o", 2, 4)], lo=4*CH + 3*NT - 3, dl=4*CH + 3*NT - 3))
                if C.c7 == 1: chunk(7, [bars[4]], 0, C.s3)
                l3 = loads(3, None, 0, C.s3 if C.c7 else R, sSEL, waits=False)
                lg = int(pos[0])
                b = Op(f"s_cmp_lg_u32 s{sOK}, 0\ns_cbranch_scc1 {lab}\n{lab}_r:", "b", lo=lg, dl=lg, after=[l3]); ops.append(b)
                self.stubs.append(f"{lab}:\n{self.spin(lab, 8)}\n" + "\n".join(self.oloads(3, sOS + 2)) + f"\ns_branch {lab}_r")
                if C.c7 == 2:
                    chunk(7, [bars[4], b], lg + 3, R)
                    ops.append(waitop([l3.tag], lo=6*CH - 4, dl=6*CH - 4, after=[b]))
                else: ops.append(Op("s_waitcnt vmcnt(0)", "s", lo=6*CH - 4, dl=6*CH - 4, after=[b]))
        else:
            lab = f"{tag}_late"
            w = waitop(["pol1"], lo=C.pc, dl=C.pc)
            c = Op(f"v_cmp_ne_u32 vcc, 1, v{vPOL}", "v", lo=C.pc, dl=C.pc, same=[w])
            sl = Op(f"s_and_b32 s{sOK}, vcc_lo, 10\ns_cselect_b32 s{sSEL}, {OOB}, s{sOS}", "b", lo=C.pc + 2, dl=C.pc + 2, after=[c]); ops += [w, c, sl]
            if C.bpre < 3: chunk(2, [], 2, (C.pc + 1) / 8)
            l1 = loads(1, sl, C.pc + 3, min(R, (C.l1e - C.pc - 3) / 10), sSEL, waits=False)
            lg = int(pos[0]) - 2
            assert not l1.lo <= fg + 1 <= lg
            b = Op(f"s_cmp_lg_u32 s{sOK}, 0\ns_cbranch_scc1 {lab}\n{lab}_r:", "b", lo=lg, dl=lg, after=[l1]); ops.append(b)
            self.stubs.append(f"{lab}:\ns_waitcnt vmcnt(0)\n{self.flag_txt()}\n{self.spin(lab, 10)}\n" + "\n".join(self.oloads(1, sOS)) + f"\ns_branch {lab}_r")
            ops.append(waitop([l1.tag], lo=2*CH - 3, dl=2*CH - 3, after=[b]))
            if C.bpre < 4: chunk(3, [b], lg + 2, R)
            chunk(4, [bars[1], b], lg + 2, R)
            chunk(5, [bars[2]], 2*CH + 1, R)
            p = loads(2, b, 0, R)
            q = self.acquire(ops, 4, C.pg, C.pg + 30, first=[b, fl])
            chunk(6, [bars[3]], 0, R)
            p = loads(3, q, C.pg + 32, R, part=slice(0, 5))
            chunk(7, [bars[4]], 0, R)
            loads(3, p, 0, R, part=slice(5, 10))
        print(f"{self.grp} last load gap", pos[0], file=sys.stderr)
        if C.sg == 1:
            for n, c in enumerate((2, 4, 6)): ops.append(Op(stamp_txt(C, 1 + n), "s", lo=c*CH - 30, dl=c*CH - 26))
            ops.append(Op(stamp_txt(C, 4), "s", lo=E - 14, dl=E - 12))
        prev = None
        for t in self.reduce_setup() + self.final_setup():
            prev = Op(t, "s" if t[0] == "s" else "v", lo=9, pri=10**4, after=[prev]); ops.append(prev)
        sent = [(2, 1, 4)] + ([(2, 4, 8), (1, 4, 7)] if a else []) + [(2, 3, 6), (0, 3, 1), (1, 3, 3), (2, 2, 5), (0, 2, 0), (1, 2, 2)]
        wr = []
        for k, P, idx in sent:
            x, y = areg[(k, 2*P)], areg[(k, 2*P + 1)]
            p = prev
            for d, s0, tt in ((y + 3, y + 2, 1), (y + 2, y, 1), (y, x, 0), (y + 1, x + 2, 0)):
                lo = done[(k, 2*P + tt)] + 4
                p = Op(f"v_cvt_pk_bf16_f32 v{d}, v{s0}, v{s0+1}", "v", lo=lo, dl=lo + 2, pri=lo - 40, same=[p]); ops.append(p)
            o = Op(f"ds_write_b128 v{vRW}, {r4('v', y)} offset:{idx*1024}", "L", lo=lo + 1, dl=lo + 4, pri=lo - 40, after=[p, bars[6]]); ops.append(o); wr.append(o)
        ww = Op("s_waitcnt lgkmcnt(0)", "s", dl=E - 2, pri=0, after=wr + [last], dist=2)
        bw = Op("s_barrier", "b", dl=E - 1, pri=0, after=[ww]); ops += [ww, bw]
        units = [(0, 1, sPS + 1, [(2, 3)]), (1, 1, sPS + 3, [(2, 1)])] + ([(0, 4, sOP, [(2, 7)])] if a else [])
        units += [(0, 0, sPS, [(2, 2)]), (1, 0, sPS + 2, [(2, 0)]), (2, 0, sPS + 4, [(1, 4), (2, 5), (3, 6)])]
        if a: units.insert(5, (2, 4, sOP + 1, [(1, 8), (2, 8), (3, 8)]))
        prev = bw; n = 0
        for k, P, so, fr in units:
            x, y = areg[(k, 2*P)], areg[(k, 2*P + 1)]
            if (k, P) == (2, 4): x, y = vO, vO + 8; fr = [(0, 8)] + fr
            for j, (xw, idx) in enumerate(fr):
                prev = Op(f"ds_read_b128 {r4('a', 4*n)}, v{vRW + xw} offset:{idx*1024}", "d", dl=E - 1, same=[prev]); prev.dl = max(E - 1, len(mf) - 7); ops.append(prev)
                for e, d in enumerate((x, y)):
                    mf.append(f"{MF} {r4('v', d)}, {r4('v', vSEL + 2 - 2*e)}, {r4('a', 4*n)}, {'0' if (k, P, j) == (2, 4, 0) else r4('v', d)}")
                n += 1
            lo = len(mf) + 3; p = None
            for d, s0 in ((x, x), (x + 1, x + 2), (x + 2, y), (x + 3, y + 2)):
                p = Op(f"v_cvt_pk_bf16_f32 v{d}, v{s0}, v{s0+1}", "v", lo=lo, same=[p]); ops.append(p)
            p = Op(f"buffer_store_dwordx4 {r4('v', x)}, v3, s[{SWS}:{SWS+3}], s{so} offen sc1", "L", after=[p]); ops.append(p)
        out, over, idle = schedule(mf, ops, 60)
        print(f"outproj {self.grp}: overflow {over} idle {idle}", file=sys.stderr)
        k0 = max(i for i, o in enumerate(out) if isinstance(o, str) and o.startswith(MF)) + 1
        rest = [o for o in out[k0:] if not isinstance(o, str)]
        out = out[:k0] + sorted(rest, key=lambda o: o.id)
        if a and not C.am:
            class Raw:
                def __init__(s, txt, tag=None, want=None): s.txt = txt; s.tag = tag; s.want = want
            lab = f"{tag}_w2"
            st = lambda n: [stamp_txt(C, n)] if C.sg == 3 else []
            ins = st(1) + [Raw(self.poll_txt(), lab)]
            for x in ([] if C.c7 else self.dma(7)): ins += [Raw(x[0]), Raw(x[1])] + [Raw(y, ("wo", 7)) for y in x[2:]]
            ins += st(2) + [Raw("", None, [lab]), Raw(f"v_cmp_ne_u32 vcc, 1, v{vPOL}\ns_nop 0\ns_and_b32 s{sT2}, vcc_lo, {2 << sh}\ns_cbranch_scc1 {lab}\n{lab}_r:")]
            self.stubs.append(f"{lab}:\n{self.spin(lab, 2 << sh)}\ns_branch {lab}_r")
            ins += [Raw(f"s_and_b32 s{sOK}, vcc_lo, {8 << sh}\ns_cselect_b32 s{sSEL}, {OOB}, s{sOS+2}")]
            ins += st(3) + [Raw(t, ("o", 2, n)) for n, t in enumerate(self.oloads(2, sOS + 1)[:5])]
            ins += [Raw("", None, [("o", 2, 2)])] + st(4)
            i1 = [i for i, o in enumerate(out) if isinstance(o, str) and o.startswith(MF)][4*CH]
            out = out[:i1] + ins + out[i1:]
        for o in out:
            if isinstance(o, str) or not a: continue
            kill = ("X" in C.abl2 and o.txt.startswith((f"buffer_load_dwordx4 v{vXDM},", f"buffer_load_dwordx4 v{vXDM+1},"))
                    or "M" in C.abl2 and o.txt.startswith(tuple(f"buffer_load_dwordx4 v{vWD+i}," for i in range(4)))
                    or "O" in C.abl2 and o.txt.startswith("buffer_load_dwordx4 a"))
            if kill: o.txt = "s_nop 0"; o.tag = None
        emit(A, vm, fine(C, "o", out))
        self.final()

    def rd(self, fr, slot, uu):
        s_, u, z, t = fr; off, win, xo = self.loc(2*s_ + u); r = aF + 4*slot + 2*uu
        if t >= 8: return f"ds_read_b64_tr_b16 a[{r}:{r+1}], v{vXO + 2*z + t - 8} offset:{xo + uu*1024}"
        return f"ds_read_b64_tr_b16 a[{r}:{r+1}], v{(vOR1 if z else vOR0) + t} offset:{off + uu*4096}"

    def reduce_setup(self):
        o = ""
        for x in range(4):
            o += f"s_xor_b32 s{sX0}, s{sW}, {x}\ns_lshl_b32 s{sX0}, s{sX0}, 14\ns_add_u32 s{sX0}, s{sX0}, {W0}\nv_add_u32 v{vRW+x}, s{sX0}, v3\n"
        o += f"""v_bfe_u32 v{vPSA+1}, v2, 4, 1
        v_lshrrev_b32 v{vPSA}, 5, v2
        v_lshl_add_u32 v{vPSA}, v{vPSA+1}, 1, v{vPSA}
        v_lshlrev_b32 v{vPSA}, 4, v{vPSA}
        v_and_b32 v{vPSA+1}, 15, v2
        v_mul_u32_u24 v{vPSA+1}, 1152, v{vPSA+1}
        v_add_u32 v{vPSA}, v{vPSA+1}, v{vPSA}
        s_mul_i32 s{sPS+5}, s{sB}, {BAT}
        s_mul_i32 s{sX0}, s{sHKV}, {BLK}
        s_add_u32 s{sPS+5}, s{sPS+5}, s{sX0}
        s_add_u32 s{sPS+5}, s{sPS+5}, {PART}
        s_mul_i32 s{sPS+4}, s{sW}, 5120
        s_add_u32 s{sPS+4}, s{sPS+4}, s{sPS+5}
        s_xor_b32 s{sPS+2}, s{sW}, 1
        s_mul_i32 s{sPS+2}, s{sPS+2}, 5120
        s_add_u32 s{sPS+2}, s{sPS+2}, s{sPS+5}
        s_lshl_b32 s{sX0}, s{sS}, 1
        s_add_u32 s{sX0}, s{sX0}, s{sH}
        s_lshl_b32 s{sX0}, s{sX0}, 10
        s_add_u32 s{sPS}, s{sPS+4}, s{sX0}
        s_add_u32 s{sPS+1}, s{sPS+2}, s{sX0}
        s_add_u32 s{sOP}, s{sPS+5}, s{sX0}
        s_add_u32 s{sOP}, s{sOP}, 20480
        s_xor_b32 s{sX0}, s{sX0}, 1024
        s_add_u32 s{sPS+3}, s{sPS+2}, s{sX0}
        s_add_u32 s{sPS+2}, s{sPS+4}, s{sX0}
        s_add_u32 s{sPS+4}, s{sPS+4}, 4096
        s_add_u32 s{sOP+1}, s{sPS+5}, {20480 + 4096}
        s_xor_b32 s{sX0}, s{sW}, 3
        s_min_u32 s{sX0}, s{sX0}, 1
        s_lshl_b32 s{sX0}, s{sX0}, 30
        s_or_b32 s{sOP+1}, s{sOP+1}, s{sX0}
        v_lshrrev_b32 v{vSEL}, 4, v2
        v_bfe_u32 v{vSEL+1}, v2, 2, 2
        v_xor_b32 v{vSEL}, v{vSEL}, v{vSEL+1}
        v_min_u32 v{vSEL}, 1, v{vSEL}
        v_sub_u32 v{vSEL}, 1, v{vSEL}
        v_mul_u32_u24 v{vSEL}, 0x3f80, v{vSEL}
        v_and_b32 v{vSEL+1}, 1, v2
        v_lshlrev_b32 v{vSEL+1}, 4, v{vSEL+1}
        v_lshlrev_b32 v{vSEL}, v{vSEL+1}, v{vSEL}
        v_bfe_u32 v{vSEL+1}, v2, 1, 1
        v_sub_u32 v{vSEL+1}, 0, v{vSEL+1}
        v_and_b32 v{vSEL+3}, v{vSEL}, v{vSEL+1}
        v_xor_b32 v{vSEL+2}, v{vSEL}, v{vSEL+3}
        v_mov_b32 v{vSEL}, 0
        v_mov_b32 v{vSEL+1}, 0
        v_mov_b32 v{vSEL+4}, 0
        v_mov_b32 v{vSEL+5}, 0"""
        return [x.strip() for x in o.split("\n") if x.strip()]

    def final_setup(self):
        a = self.grp == "a"; x, y = sX0, sSAFE
        o = f"""s_mul_i32 s{sF2+1}, s{sB}, {BAT}
        s_lshl_b32 s{x}, s{sJ}, 11
        s_add_u32 s{sF2}, s{sF2+1}, s{x}
        s_add_u32 s{sF2}, s{sF2}, {FL + 32768}
        v_and_b32 v{vF+4}, 3, v2
        v_xor_b32 v{vF+4}, s{sHG}, v{vF+4}
        v_lshlrev_b32 v{vF+4}, {self.C.f2s}, v{vF+4}
        s_mul_i32 s{x}, s{sJ}, {BLK}
        s_add_u32 s{sF2+1}, s{sF2+1}, s{x}
        s_add_u32 s{sF2+1}, s{sF2+1}, {PART}
        s_mul_i32 s{sOP+2}, s{sB}, 92160
        s_add_u32 s{sOP+2}, s{sOP+2}, s{sPS+6}
        s_lshl_b32 s{x}, s{sW}, 2
        s_add_u32 s{x}, s{x}, s{sHG}
        s_mul_i32 s{y}, s{x}, 52
        s_lshr_b32 s{y}, s{y}, 8
        s_mul_i32 s{sFI}, s{y}, 5
        s_sub_u32 s{sFO}, s{x}, s{sFI}
        s_add_u32 s{sFI}, s{sFI}, s{x}
        s_lshl_b32 s{sFI}, s{sFI}, 10
        s_mul_i32 s{sFO}, s{sFO}, {16*1152}
        s_lshl_b32 s{x}, s{y}, 7
        s_add_u32 s{sFO}, s{sFO}, s{x}
        s_lshr_b32 s{y}, s{y}, 1
        s_lshl_b32 s{y}, s{y}, 30
        s_or_b32 s{sFI}, s{sFI}, s{y}
        s_or_b32 s{sFO}, s{sFO}, s{y}
        s_add_u32 s{sFI+1}, s{sFI}, 5120
        s_add_u32 s{sFO+1}, s{sFO}, 64"""
        o = [l.strip() for l in o.split("\n")]
        if a:
            o += [f"s_lshl_b32 s{x}, s{sHG}, 10", f"s_add_u32 s{x}, s{x}, 20480", f"s_mul_i32 s{y}, s{sHG}, {16*1152}", f"s_add_u32 s{y}, s{y}, s{sDX}",
                  f"s_cmp_eq_u32 s{sW}, 3\ns_cselect_b32 s{sFI}, s{x}, s{sFI}\ns_cselect_b32 s{sFO}, s{y}, s{sFO}",
                  f"s_add_u32 s{y}, s{sDX}, {64*1152}", f"s_lshl_b32 s{x}, s{sHG}, 2", f"s_add_u32 s{x}, s{x}, s{sW}",
                  f"s_cmp_eq_u32 s{x}, 3\ns_cselect_b32 s{sFI+1}, {20480 + 4096}, s{sFI+1}\ns_cselect_b32 s{sFO+1}, s{y}, s{sFO+1}"]
        o += [f"v_add_u32 v{vF+p}, {4*BLK*p}, v3" for p in range(4)]
        for r in range(2): o += [f"s_add_u32 s{sFI+r}, s{sFI+r}, s{sF2+1}", f"s_add_u32 s{sFO+r}, s{sFO+r}, s{sOP+2}"]
        return o

    def final(self):
        A, C, tag = self.A, self.C, self.tag
        stamp(A, C, 7)
        A(f"""s_mov_b32 s{sCNT}, 0
        s_waitcnt vmcnt(0)
        s_barrier""")
        stamp(A, C, 8)
        A(f"""s_cmp_lg_u32 s{sW}, 0
        s_cbranch_scc1 {tag}_fq
        s_mov_b64 exec, 1
        buffer_store_dword v{vRDY}, v{vF+4}, s[{SWS}:{SWS+3}], s{sF2} offen sc1
        s_mov_b64 exec, 14""")
        pl = lambda k: f"buffer_load_dword v{vS+k}, v{vF+4}, s[{SWS}:{SWS+3}], s{sF2} offen sc1"
        D = C.pd
        for k in range(D - 1): A(pl(k) + f"\ns_sleep {C.ps}")
        if C.p0: A(f"s_sleep {C.p0}")
        A(f"{tag}_fp:")
        for k in range(D):
            A(f"""{pl((k + D - 1) % D)}
            s_waitcnt vmcnt({D - 1})
            v_cmp_ne_u32 vcc, 1, v{vS+k}
            s_add_u32 s{sCNT}, s{sCNT}, 1
            s_and_b32 s{sT2}, vcc_lo, 14
            s_cbranch_scc0 {tag}_fq""")
        if C.pl: A(f"s_sleep {C.pl}")
        A(f"s_cmp_lt_u32 s{sCNT}, {SPIN}\ns_cbranch_scc1 {tag}_fp\n{tag}_fq:\ns_mov_b64 exec, -1\ns_barrier")
        stamp(A, C, 9)
        for p in range(4):
            for r in range(2): A(f"buffer_load_dwordx4 {r4('a', 16*r+4*p)}, v{vF+p}, s[{SWS}:{SWS+3}], s{sFI+r} offen sc1")
        for p in range(4):
            A(f"s_waitcnt vmcnt({(3-p)*2})")
            for r in range(2):
                for e in range(2):
                    d = r4("v", vO + 8*r + 4*e)
                    A(f"{MF} {d}, {r4('v', vSEL + 2 - 2*e)}, {r4('a', 16*r+4*p)}, {'0' if p == 0 else d}")
        sw = [pack(A, vO + 8*r, vO + 8*r + 4, vO + 8*r, None, True) for r in range(2)]
        for r in range(2):
            for x in sw[r]: A(x)
            A(f"buffer_store_dwordx4 {r4('v', vO+8*r)}, v{vPSA}, s[{SOUT}:{SOUT+3}], s{sFO+r} offen {C.outf}")
        if C.stamps: A("s_waitcnt vmcnt(0)\ns_barrier")
        stamp(A, C, 10)
        flush(A, C, self.name)
        A("s_endpgm")
```

```python
import sys
from asmlib import *
from gen_naive import srd
from mb_tail import stamp, flush_stamps, STAMP
from mb_l2 import pro
FL = 48 << 20
MF = "v_mfma_f32_16x16x32_bf16 v[40:43], v[16:19], v[20:23], v[40:43]"

def weave(A, nm, items):
    n = len(items); done = 0
    for i in range(nm):
        A(MF)
        want = (i + 1) * n // nm if nm else n
        while done < want: A(items[done]); done += 1
    while done < n: A(items[done]); done += 1

def k(name, split=1, NB=5, NA=3, LA=2, LKA=3, LKB=3, nk=0, touch="AB", LO=6, comb=64, twoch=0, nh=2):
    A = Asm(); pro(A, name, nh)
    srd(A, 52, 14, 64 << 20)
    A("s_load_dwordx2 s[12:13], s[0:1], 40\ns_getpc_b64 s[10:11]\nv_lshlrev_b32 v3, 7, v0\nglobal_load_dword v50, v3, s[10:11]\ns_waitcnt lgkmcnt(0)")
    srd(A, 4, 12, 1280 * 1152)
    if split == 1: A("s_bfe_u32 s21, s24, 0x10003" if nh == 2 else "s_bfe_u32 s21, s24, 0x10002")
    else: A(f"s_mov_b32 s21, {1 if split == 2 else 0}")
    A(f"s_lshl_b32 s58, s24, 8\ns_add_u32 s58, s58, {FL}\ns_lshl_b32 s59, s23, 2\ns_add_u32 s59, s59, s58")
    A("v_mov_b32 v30, 0\nv_mov_b32 v31, 0\ns_mov_b64 exec, 1\nbuffer_store_dword v30, v31, s[52:55], s59 offen sc1\nbuffer_store_dword v30, v31, s[52:55], s59 offen offset:128 sc1\ns_mov_b64 exec, -1")
    for i in range(8): A(f"v_mov_b32 v{16+i}, 1.0")
    A("v_lshrrev_b32 v5, 3, v2\nv_and_b32 v6, 7, v2\nv_lshlrev_b32 v6, 4, v6\nv_lshlrev_b32 v7, 13, v5\nv_add_u32 v7, v7, v6\nv_mul_u32_u24 v8, 1152, v5\nv_add_u32 v8, v8, v6")
    A("s_lshl_b32 s28, s22, 14\ns_mov_b32 m0, s28\nv_lshlrev_b32 v9, 4, v2")
    A("s_lshl_b32 s30, s24, 4\ns_add_u32 s30, s30, s23\ns_lshl_b32 s30, s30, 17\ns_lshl_b32 s31, s22, 10\ns_add_u32 s30, s30, s31")
    def touch_x():
        A(f"v_lshlrev_b32 v3, 7, v0\ns_mul_i32 s25, s24, 92160\ns_and_b32 s26, s23, {nh-1}\ns_mul_i32 s26, s26, {92160//nh}\ns_add_u32 s25, s25, s26")
        A(f"v_cmp_gt_u32 vcc, 180, v0\ns_and_saveexec_b64 s[56:57], vcc\nbuffer_load_dword v70, v3, s[32:35], s25 offen")
        if nh == 2: A(f"s_add_u32 s25, s25, 23040\nbuffer_load_dword v71, v3, s[32:35], s25 offen")
        A("s_mov_b64 exec, s[56:57]")
    def touch_wq(nshare):
        A(f"v_lshrrev_b32 v3, 2, v0\nv_and_b32 v4, 3, v0\nv_lshlrev_b32 v4, 7, v4\nv_mul_u32_u24 v3, {nshare}, v3\ns_and_b32 s25, s24, {nshare-1}\nv_add_u32 v3, s25, v3\nv_lshlrev_b32 v3, 13, v3\nv_add_u32 v3, v3, v4\ns_lshl_b32 s25, s23, 9")
        for i in range((576 // nshare + 63) // 64):
            A(f"buffer_load_dword v{72+i}, v3, s[44:47], s25 offen\ns_add_u32 s25, s25, {64*nshare*8192}")
    def kv(c):
        sr = 36 if c % 2 == 0 else 40
        return [f"s_add_u32 s27, s30, {(c//2)*16384 + i*4096}\nbuffer_load_dwordx4 v9, s[{sr}:{sr+3}], s27 offen nt lds" for i in range(4)]
    def wo(c):
        return [f"s_add_u32 s27, s31, {c*16384 + i*4096}\nbuffer_load_dwordx4 v9, s[48:51], s27 offen lds" for i in range(4)]
    A(f"s_mul_i32 s31, s23, {256*1152}\ns_lshl_b32 s26, s22, 10\ns_add_u32 s31, s31, s26")
    nshareB = (8 if nh == 2 else 4) if split == 1 else (16 if nh == 2 else 8)
    A(f"s_cmp_eq_u32 s21, 0\ns_cbranch_scc1 {name}_pa")
    if "B" in touch: touch_wq(nshareB); touch_x()
    for c in range(NB):
        for t in kv(c): A(t)
    A(f"s_branch {name}_pj\n{name}_pa:")
    if "A" in touch: touch_x()
    if "a" in touch: touch_wq(nshareB)
    A(f"{name}_pj:")
    stamp(A, 1)
    A(f"s_lshl_b32 s25, s23, 9\ns_lshl_b32 s26, s22, 7\ns_add_u32 s25, s25, s26\ns_mul_i32 s26, s24, 92160\ns_mul_i32 s27, s22, {8*1152}\ns_add_u32 s26, s26, s27")
    def wst(j):
        o = [f"s_add_u32 s27, s25, {(j*4+i)*65536}\nbuffer_load_dwordx4 v7, s[44:47], s27 offen lds" for i in range(4)]
        o.append(f"s_add_u32 s27, s26, {(j//2)*128 + (j&1)*32*1152}\nbuffer_load_dwordx4 v8, s[32:35], s27 offen lds")
        if j & 1: o.append(f"s_add_u32 s27, s26, {(j//2)*128 + 48*1152}\ns_cmp_ge_u32 s22, 2\ns_cbranch_scc0 {name}_x{j}\nbuffer_load_dwordx4 v8, s[32:35], s27 offen lds\n{name}_x{j}:")
        return o
    for j in range(LA):
        for t in wst(j): A(t)
    kq = [t for c in range(16) for t in kv(c)]
    kdone = 0
    for j in range(18):
        A(f"s_waitcnt vmcnt({5*(min(LA, 18-j)-1)})\ns_barrier")
        it = wst(j + LA) if j + LA < 18 else []
        if nk:
            want = (j + 1) * nk * 4 // 18
            it = it + kq[kdone:want]; kdone = want
        weave(A, 20, it)
    stamp(A, 2)
    for grp, N0, LK in (("a", NA, LKA), ("b", NB, LKB)):
        if grp == "a": A(f"s_cmp_eq_u32 s21, 0\ns_cbranch_scc0 {name}_gb")
        else: A(f"{name}_gb:")
        issued = nk if nk else (0 if grp == "a" else NB)
        def get(c): return kv(c) if c < 16 else wo(c - 16)
        pre = []
        while issued < max(N0, 1) and grp == "a": pre += get(issued); issued += 1
        weave(A, 24, pre)
        for c in range(16):
            A(f"s_waitcnt vmcnt({4*(issued-c-1)})\ns_barrier")
            it = []
            while issued < c + 1 + LK: it += get(issued); issued += 1
            weave(A, 43, it)
        it = []
        while issued < 16 + LO: it += get(issued); issued += 1
        stamp(A, 3)
        weave(A, comb, it)
        if grp == "a": A(f"s_branch {name}_gj")
    A(f"{name}_gj:")
    A(f"s_mul_i32 s25, s24, {92160*16}\ns_mul_i32 s26, s23, 92160\ns_add_u32 s25, s25, s26\ns_lshl_b32 s26, s22, 10\ns_add_u32 s25, s25, s26")
    ops = [("L", c) for c in range(LO) for _ in range(4)]
    issued = LO; nst = 0
    for c in range(18):
        last = max(i for i, o in enumerate(ops) if o == ("L", c))
        A(f"s_waitcnt vmcnt({len(ops)-1-last})")
        it = []
        if c % 4 == 0 and c > 0:
            for u in range(5): it.append(f"buffer_store_dwordx4 v[16:19], v9, s[52:55], s25 offen sc1\ns_add_u32 s25, s25, 4096"); ops.append(("S", nst)); nst += 1
        if issued < 18:
            it += wo(issued); ops += [("L", issued)] * 4; issued += 1
        weave(A, 20, it)
    for u in range(3):
        if u == 2: A(f"s_cmp_ge_u32 s22, 2\ns_cbranch_scc1 {name}_s2")
        A(f"buffer_store_dwordx4 v[16:19], v9, s[52:55], s25 offen sc1\ns_add_u32 s25, s25, 4096")
    A(f"{name}_s2:")
    stamp(A, 4)
    A("s_waitcnt vmcnt(0)\ns_barrier")
    stamp(A, 5)
    A(f"s_cmp_lg_u32 s22, 0\ns_cbranch_scc1 {name}_w\ns_mov_b32 s29, 0")
    A("v_mov_b32 v30, 1\nv_and_b32 v33, 15, v0\nv_lshlrev_b32 v33, 2, v33\ns_mov_b64 exec, 1\nbuffer_store_dword v30, v31, s[52:55], s59 offen sc1\ns_mov_b64 exec, -1")
    A(f"{name}_poll:\nbuffer_load_dword v32, v33, s[52:55], s58 offen sc1\ns_waitcnt vmcnt(0)\nv_cmp_ne_u32 vcc, 1, v32\ns_add_u32 s29, s29, 1")
    A(f"s_cmp_ge_u32 s29, 20000\ns_cbranch_scc1 {name}_w\ns_cmp_lg_u64 vcc, 0\ns_cbranch_scc1 {name}_poll\n{name}_w:\ns_barrier")
    stamp(A, 6)
    A(f"s_mul_i32 s25, s24, {92160*16}\ns_mul_i32 s26, s23, 5760\ns_add_u32 s25, s25, s26\nv_lshlrev_b32 v3, 4, v0")
    for r in range(2):
        A(f"v_cmp_gt_u32 vcc, {360 - r*256}, v0\ns_and_saveexec_b64 s[56:57], vcc\ns_cbranch_execz {name}_r{r}\ns_mov_b32 s26, s25")
        for p in range(16): A(f"buffer_load_dwordx4 v[{64+r*64+4*p}:{67+r*64+4*p}], v3, s[52:55], s26 offen sc1\ns_add_u32 s26, s26, 92160")
        A(f"{name}_r{r}:\ns_mov_b64 exec, s[56:57]\ns_add_u32 s25, s25, 4096")
    A("s_waitcnt vmcnt(0)\ns_lshl_b32 s25, s24, 4\ns_add_u32 s25, s25, s23\ns_mul_i32 s25, s25, 5760")
    for r in range(2):
        for p in range(1, 16):
            for i in range(4): A(f"v_add_f32 v{64+r*64+i}, v{64+r*64+i}, v{64+r*64+4*p+i}")
        A(f"v_cmp_gt_u32 vcc, {360 - r*256}, v0\ns_and_saveexec_b64 s[56:57], vcc\ns_cbranch_execz {name}_o{r}")
        A(f"buffer_store_dwordx4 v[{64+r*64}:{67+r*64}], v3, s[4:7], s25 offen\n{name}_o{r}:\ns_mov_b64 exec, s[56:57]\ns_add_u32 s25, s25, 4096")
    A("s_waitcnt vmcnt(0)")
    stamp(A, 7)
    flush_stamps(A, 8, name)
    A(f"{name}_end:\ns_endpgm")
    return A.text()

if __name__ == "__main__":
    import json
    cfgs = json.loads(sys.argv[1])
    names = []
    for c in cfgs:
        n = "e" + "".join(f"_{kk}{vv}" for kk, vv in c.items()); names.append(n)
        open(n + ".s", "w").write(build([("mx_kernel", 256, 256, 163840)], [("mx_kernel", k("mx", **c), 256, 0)]))
    open("list.txt", "w").write(" ".join(x + ".s" for x in names))
```

```python
import sys
from asmlib import *
from gen_naive import srd
from mb_tail import stamp, flush_stamps, STAMP
from mb_l2 import pro
from emu import weave
FL = 48 << 20
PART = 16 << 20

def k(name, split=1, NB=3, NA=3, LA=3, LKA=3, LKB=4, tB="ywx", of="", wb=0, LO=5, comb=64, two=0, slp=0):
    nh = 4; nb = 8
    A = Asm()
    A("s_getpc_b64 s[90:91]\nv_lshlrev_b32 v3, 7, v0\nglobal_load_dword v50, v3, s[90:91]")
    pro(A, name, nh)
    srd(A, 52, 14, 64 << 20)
    if split == 1: A(f"s_bfe_u32 s21, s24, 0x10002")
    elif split == 3: A("s_and_b32 s21, s23, 1")
    else: A(f"s_mov_b32 s21, {1 if split == 2 else 0}")
    A("v_lshrrev_b32 v5, 3, v2\nv_and_b32 v6, 7, v2\nv_lshlrev_b32 v6, 4, v6\nv_lshlrev_b32 v7, 13, v5\nv_add_u32 v7, v7, v6\nv_mul_u32_u24 v8, 1152, v5\nv_add_u32 v8, v8, v6")
    A("s_lshl_b32 s28, s22, 14\ns_mov_b32 m0, s28\nv_lshlrev_b32 v9, 4, v2")
    A("s_lshl_b32 s30, s24, 4\ns_add_u32 s30, s30, s23\ns_lshl_b32 s30, s30, 17\ns_lshl_b32 s31, s22, 10\ns_add_u32 s30, s30, s31")
    reg = [70]
    def touch_x(bx, nsh, shreg):
        A(f"v_lshlrev_b32 v3, 7, v0\ns_xor_b32 s25, s24, {bx}\ns_mul_i32 s25, s25, 92160\ns_mul_i32 s26, {shreg}, {92160//nsh}\ns_add_u32 s25, s25, s26")
        A(f"v_cmp_gt_u32 vcc, 180, v0\ns_and_saveexec_b64 s[56:57], vcc")
        for i in range(720 // nsh // 180):
            A(f"buffer_load_dword v{reg[0]}, v3, s[32:35], s25 offen\ns_add_u32 s25, s25, 23040"); reg[0] += 1
        A("s_mov_b64 exec, s[56:57]")
    def touch_wq(hx, nshare):
        A(f"v_lshrrev_b32 v3, 2, v0\nv_and_b32 v4, 3, v0\nv_lshlrev_b32 v4, 7, v4\nv_mul_u32_u24 v3, {nshare}, v3\ns_and_b32 s25, s24, {nshare-1}\nv_add_u32 v3, s25, v3\nv_lshlrev_b32 v3, 13, v3\nv_add_u32 v3, v3, v4\ns_xor_b32 s25, s23, {hx}\ns_lshl_b32 s25, s25, 9")
        for i in range((576 // nshare + 63) // 64):
            A(f"buffer_load_dword v{reg[0]}, v3, s[44:47], s25 offen\ns_add_u32 s25, s25, {64*nshare*8192}"); reg[0] += 1
    def prog(p):
        for ch in p:
            if ch == "w": touch_wq(0, nb // 2)
            if ch == "W": touch_wq(0, nb)
            if ch == "o": touch_wq(1, nb)
            if ch == "x": A(f"s_and_b32 s20, s23, {nh-1}"); touch_x(0, nh, "s20")
            if ch == "y": A(f"s_and_b32 s20, s23, {nh-1}"); touch_x(nb // 2, nh, "s20")
            if ch == "X": A(f"s_bfe_u32 s20, s23, 0x10001"); touch_x(0, nh // 2, "s20")
    def kv(c):
        sr = 36 if c % 2 == 0 else 40
        return [f"s_add_u32 s27, s30, {(c//2)*16384 + i*4096}\nbuffer_load_dwordx4 v9, s[{sr}:{sr+3}], s27 offen nt lds" for i in range(4)]
    def wo(c):
        return [f"s_add_u32 s27, s31, {(c*4+i)*1024}\nbuffer_load_dwordx4 v9, s[48:51], s27 offen lds" for i in range(4)]
    A(f"s_cmp_eq_u32 s21, 0\ns_cbranch_scc1 {name}_pa")
    prog(tB)
    for c in range(NB):
        for t in kv(c): A(t)
    A(f"{name}_pa:")
    A(f"s_lshl_b32 s25, s23, 9\ns_lshl_b32 s26, s22, 7\ns_add_u32 s25, s25, s26\ns_mul_i32 s26, s24, 92160\ns_mul_i32 s27, s22, {8*1152}\ns_add_u32 s26, s26, s27")
    def wst(j):
        o = [f"s_add_u32 s27, s25, {(j*4+i)*65536}\nbuffer_load_dwordx4 v7, s[44:47], s27 offen lds" for i in range(4)]
        o.append(f"s_add_u32 s27, s26, {(j//2)*128 + (j&1)*32*1152}\nbuffer_load_dwordx4 v8, s[32:35], s27 offen lds")
        if j & 1: o.append(f"s_add_u32 s27, s26, {(j//2)*128 + 48*1152}\ns_cmp_ge_u32 s22, 2\ns_cbranch_scc0 {name}_x{j}\nbuffer_load_dwordx4 v8, s[32:35], s27 offen lds\n{name}_x{j}:")
        return o
    A(f"""s_lshr_b32 s92, s23, 2
    s_and_b32 s93, s23, 3
    s_lshl_b32 s94, s24, 2
    s_add_u32 s95, s94, s92
    s_lshl_b32 s95, s95, 2
    s_add_u32 s95, s95, s22
    s_lshl_b32 s95, s95, 7
    s_add_u32 s95, s95, {FL}
    s_lshl_b32 s96, s93, 2
    s_add_u32 s96, s96, s95
    s_add_u32 s97, s94, s93
    s_lshl_b32 s97, s97, 7
    s_add_u32 s97, s97, {FL + (1 << 20)}
    s_lshl_b32 s98, s92, 2
    s_add_u32 s98, s98, s97
    v_mov_b32 v30, 0
    v_mov_b32 v31, 0
    s_mov_b64 exec, 1
    buffer_store_dword v30, v31, s[52:55], s96 offen {of}
    buffer_store_dword v30, v31, s[52:55], s98 offen sc1
    s_mov_b64 exec, -1
    v_and_b32 v33, 3, v0
    v_lshlrev_b32 v33, 2, v33""")
    for j in range(LA):
        for t in wst(j): A(t)
    for i in range(8): A(f"v_mov_b32 v{16+i}, 1.0")
    A(f"s_mul_i32 s31, s23, {256*1152}\ns_mul_i32 s27, s22, {72*1024}\ns_add_u32 s31, s31, s27")
    for j in range(18 - LA):
        A(f"s_waitcnt vmcnt({5*(LA-1)})\ns_barrier")
        weave(A, 20, wst(j + LA))
    def get(c): return kv(c) if c < 16 else wo(c - 16)
    for grp, N0, LK in (("a", NA, LKA), ("b", NB, LKB)):
        if grp == "a": A(f"s_cmp_eq_u32 s21, 0\ns_cbranch_scc0 {name}_gb")
        else: A(f"{name}_gb:")
        issued = 0 if grp == "a" else NB
        extra = 0
        for j in range(18 - LA, 18):
            A(f"s_waitcnt vmcnt({5*(18-j-1) + extra})\ns_barrier")
            it = kv(issued); issued += 1; extra += 4
            weave(A, 20, it)
        stamp(A, 1)
        weave(A, 24, [])
        for c in range(16):
            A(f"s_waitcnt vmcnt({4*(issued-c-1)})\ns_barrier")
            it = []
            while issued < c + 1 + LK: it += get(issued); issued += 1
            weave(A, 43, it)
        stamp(A, 2)
        it = []
        while issued < 16 + LO: it += get(issued); issued += 1
        weave(A, comb, it)
        if grp == "a": A(f"s_branch {name}_gj")
    A(f"{name}_gj:")
    A(f"s_lshl_b32 s25, s24, 4\ns_add_u32 s25, s25, s23\ns_lshl_b32 s25, s25, 2\ns_add_u32 s25, s25, s22\ns_mul_i32 s25, s25, 10240")
    for u in range(10): A(f"buffer_store_dwordx4 v[16:19], v9, s[52:55], s25 offen {of}\ns_add_u32 s25, s25, 1024")
    stamp(A, 3)
    issued = LO
    weave(A, 30, [])
    A(f"s_waitcnt vmcnt(0)\nv_mov_b32 v30, 1\ns_mov_b64 exec, 1\nbuffer_store_dword v30, v31, s[52:55], s96 offen {of}\ns_mov_b64 exec, -1")
    it = []
    for c in range(3): it += wo(issued); issued += 1
    weave(A, 50, it)
    A("s_mov_b32 s29, 0")
    A(f"{name}_p1:\nbuffer_load_dword v32, v33, s[52:55], s95 offen sc1\ns_waitcnt vmcnt(0)\nv_cmp_ne_u32 vcc, 1, v32\ns_add_u32 s29, s29, 1")
    A(f"s_cmp_ge_u32 s29, 20000\ns_cbranch_scc1 {name}_p1d\ns_cmp_lg_u64 vcc, 0\ns_cbranch_scc1 {name}_p1\n{name}_p1d:")
    stamp(A, 4)
    for sj in range(1, 4):
        A(f"s_xor_b32 s25, s23, {sj}\ns_lshl_b32 s26, s24, 4\ns_add_u32 s25, s25, s26\ns_lshl_b32 s25, s25, 2\ns_add_u32 s25, s25, s22\ns_mul_i32 s25, s25, 10240")
        for u in range(10): A(f"buffer_load_dwordx4 v[{64+(sj-1)*40+4*u}:{67+(sj-1)*40+4*u}], v9, s[52:55], s25 offen sc1\ns_add_u32 s25, s25, 1024")
    if wb: A(f"s_cmp_lg_u32 s22, 3\ns_cbranch_scc1 {name}_nwb\ns_cmp_lg_u32 s93, 0\ns_cbranch_scc1 {name}_nwb\nbuffer_wbl2 sc1\n{name}_nwb:")
    weave(A, 10, wo(issued)); issued += 1
    A("s_waitcnt vmcnt(4)")
    stamp(A, 5)
    A(f"s_lshl_b32 s25, s24, 4\ns_add_u32 s25, s25, s23\ns_mul_i32 s25, s25, 24576\ns_lshl_b32 s26, s22, 10\ns_add_u32 s25, s25, s26\ns_add_u32 s25, s25, {PART}")
    ops = [("L", issued - 1)] * 4
    for c in range(5, 18):
        idx = [i for i, o in enumerate(ops) if o == ("L", c)]
        if idx: A(f"s_waitcnt vmcnt({len(ops)-1-max(idx)})")
        it = []
        if issued < 18: it += wo(issued); ops += [("L", issued)] * 4; issued += 1
        if c in (10, 14):
            A("s_barrier")
            for u in range(2): it.append(f"buffer_store_dwordx4 v[16:19], v9, s[52:55], s25 offen sc1\ns_add_u32 s25, s25, 4096"); ops.append(("S", 0))
        weave(A, 21, it)
    A("s_barrier")
    weave(A, 30, [])
    for u in range(2): A(f"buffer_store_dwordx4 v[16:19], v9, s[52:55], s25 offen sc1\ns_add_u32 s25, s25, 4096")
    stamp(A, 6)
    A("s_waitcnt vmcnt(0)\ns_barrier")
    stamp(A, 7)
    A(f"s_cmp_lg_u32 s22, 0\ns_cbranch_scc1 {name}_w\ns_mov_b32 s29, 0")
    A("s_mov_b64 exec, 1\nbuffer_store_dword v30, v31, s[52:55], s98 offen sc1\ns_mov_b64 exec, -1")
    A(f"{name}_poll:\nbuffer_load_dword v32, v33, s[52:55], s97 offen sc1\ns_waitcnt vmcnt(0)\nv_cmp_ne_u32 vcc, 1, v32\ns_add_u32 s29, s29, 1")
    A(f"s_cmp_ge_u32 s29, 20000\ns_cbranch_scc1 {name}_w\ns_cmp_lg_u64 vcc, 0\ns_cbranch_scc1 {name}_poll\n{name}_w:\ns_barrier")
    stamp(A, 8)
    A("s_load_dwordx2 s[12:13], s[0:1], 40")
    A(f"s_lshl_b32 s25, s24, 4\ns_add_u32 s25, s25, s93\ns_mul_i32 s25, s25, 24576\ns_mul_i32 s26, s92, 5760\ns_add_u32 s25, s25, s26\ns_add_u32 s25, s25, {PART}\nv_lshlrev_b32 v3, 4, v0")
    for r in range(2):
        A(f"v_cmp_gt_u32 vcc, {360 - r*256}, v0\ns_and_saveexec_b64 s[56:57], vcc\ns_cbranch_execz {name}_r{r}\ns_mov_b32 s26, s25")
        for p in range(4): A(f"buffer_load_dwordx4 v[{64+r*64+4*p}:{67+r*64+4*p}], v3, s[52:55], s26 offen sc1\ns_add_u32 s26, s26, {4*24576}")
        A(f"{name}_r{r}:\ns_mov_b64 exec, s[56:57]\ns_add_u32 s25, s25, 4096")
    A("s_waitcnt lgkmcnt(0)")
    srd(A, 4, 12, 1280 * 1152)
    A("s_waitcnt vmcnt(0)\ns_lshl_b32 s25, s24, 4\ns_add_u32 s25, s25, s23\ns_mul_i32 s25, s25, 5760")
    for r in range(2):
        for p in range(1, 4):
            for i in range(4): A(f"v_add_f32 v{64+r*64+i}, v{64+r*64+i}, v{64+r*64+4*p+i}")
        A(f"v_cmp_gt_u32 vcc, {360 - r*256}, v0\ns_and_saveexec_b64 s[56:57], vcc\ns_cbranch_execz {name}_o{r}")
        A(f"buffer_store_dwordx4 v[{64+r*64}:{67+r*64}], v3, s[4:7], s25 offen\n{name}_o{r}:\ns_mov_b64 exec, s[56:57]\ns_add_u32 s25, s25, 4096")
    A("s_waitcnt vmcnt(0)")
    stamp(A, 9)
    flush_stamps(A, 10, name)
    A(f"{name}_end:\ns_endpgm")
    return A.text()

def after(name, slot):
    A = Asm()
    A(f"s_cmp_ge_u32 s2, 256\ns_cbranch_scc1 {name}_end")
    stamp(A, 0)
    A("s_load_dwordx2 s[20:21], s[0:1], 56\ns_waitcnt lgkmcnt(0)")
    srd(A, 16, 20, 65536, STAMP + 4 * slot)
    flush_stamps(A, 1, name)
    A(f"{name}_end:\ns_endpgm")
    return A.text()

if __name__ == "__main__":
    import json
    cfgs = json.loads(sys.argv[1])
    names = []
    for c in cfgs:
        n = "g" + "".join(f"_{kk}{vv}" for kk, vv in c.items()); names.append(n)
        open(n + ".s", "w").write(build([("mx_kernel", 256, 256, 163840), ("af_kernel", 256, 64, 0)], [("mx_kernel", k("mx", **c), 256, 0), ("af_kernel", after("af", 10), 32, 0)]))
    open("list.txt", "w").write(" ".join(x + ".s" for x in names))
```

```python
import sys
from asmlib import *
from gen_naive import srd
from mb_tail import stamp, flush_stamps, STAMP

def pro(A, name, nh):
    A(f"s_cmp_ge_u32 s2, 256\ns_cbranch_scc1 {name}_end")
    stamp(A, 0)
    A("s_load_dwordx8 s[4:11], s[0:1], 0\ns_load_dwordx2 s[12:13], s[0:1], 32\ns_load_dwordx2 s[14:15], s[0:1], 56")
    A("v_lshrrev_b32 v1, 6, v0\ns_nop 0\nv_readfirstlane_b32 s22, v1\nv_and_b32 v2, 63, v0")
    if nh == 2:
        A("s_and_b32 s23, s2, 7\ns_lshl_b32 s23, s23, 1\ns_bfe_u32 s24, s2, 0x10003\ns_add_u32 s23, s23, s24\ns_lshr_b32 s24, s2, 4")
    else:
        A("s_and_b32 s23, s2, 3\ns_lshl_b32 s23, s23, 2\ns_bfe_u32 s24, s2, 0x20003\ns_add_u32 s23, s23, s24\ns_lshr_b32 s24, s2, 5\ns_bfe_u32 s25, s2, 0x10002\ns_lshl_b32 s25, s25, 3\ns_add_u32 s24, s24, s25")
    A("s_waitcnt lgkmcnt(0)")
    srd(A, 32, 4, 1280*1152); srd(A, 36, 6, 33554432); srd(A, 40, 8, 33554432); srd(A, 44, 10, 576*8192); srd(A, 48, 12, 4096*1152); srd(A, 16, 14, 65536, STAMP)

def rate(name, pat, nh, depth, dst, nw=4, flag=""):
    A = Asm(); pro(A, name, nh)
    A("s_lshl_b32 s28, s22, 13\ns_mov_b32 m0, s28")
    n = 288 // nw
    if pat == "wq8":
        A("v_lshrrev_b32 v5, 3, v2\nv_and_b32 v6, 7, v2\nv_lshlrev_b32 v6, 4, v6\nv_lshlrev_b32 v7, 13, v5\nv_add_u32 v7, v7, v6")
        base = f"s_lshl_b32 s25, s23, 9\ns_and_b32 s26, s22, 3\ns_lshl_b32 s26, s26, 7\ns_add_u32 s25, s25, s26\ns_lshr_b32 s26, s22, 2\ns_lshl_b32 s26, s26, 16\ns_add_u32 s25, s25, s26"; step = 65536 * (nw // 4); sr = 44
    elif pat == "wq2":
        A("v_lshrrev_b32 v5, 5, v2\nv_and_b32 v6, 31, v2\nv_lshlrev_b32 v6, 4, v6\nv_lshlrev_b32 v7, 13, v5\nv_add_u32 v7, v7, v6")
        base = f"s_lshl_b32 s25, s23, 9\ns_lshl_b32 s26, s22, 14\ns_add_u32 s25, s25, s26"; step = 16384 * nw; sr = 44
    else:
        A("v_lshlrev_b32 v7, 4, v2")
        base = f"s_mul_i32 s25, s23, {256*1152}\ns_lshl_b32 s26, s22, 10\ns_add_u32 s25, s25, s26"; step = 1024 * nw; sr = 48
    for p in range(3):
        A("s_barrier")
        stamp(A, 1 + p)
        A(base + f"\ns_mov_b32 s29, 0\n{name}_l{p}:")
        for u in range(4):
            if dst == "lds": A(f"buffer_load_dwordx4 v7, s[{sr}:{sr+3}], s25 offen {flag} lds")
            else: A(f"buffer_load_dwordx4 v[{16+4*u}:{19+4*u}], v7, s[{sr}:{sr+3}], s25 offen {flag}")
            A(f"s_add_u32 s25, s25, {step}\ns_waitcnt vmcnt({depth})")
        A(f"s_add_u32 s29, s29, 4\ns_cmp_lt_u32 s29, {n}\ns_cbranch_scc1 {name}_l{p}\ns_waitcnt vmcnt(0)")
    A("s_barrier")
    stamp(A, 4)
    flush_stamps(A, 5, name)
    A(f"{name}_end:\ns_endpgm")
    return A.text()

def lat(name, kdepth, half):
    A = Asm(); pro(A, name, 2)
    A(f"s_cmp_eq_u32 s22, 1\ns_cbranch_scc1 {name}_kv")
    A(f"v_lshlrev_b32 v7, 4, v2\ns_mul_i32 s25, s23, {256*1152}\ns_mov_b32 m0, 0")
    A("buffer_load_dwordx4 v7, s[48:51], s25 offen sc1 lds\ns_waitcnt vmcnt(0)")
    A(f"s_mov_b32 s29, 0\n{name}_d:\ns_sleep 8\ns_add_u32 s29, s29, 1\ns_cmp_lt_u32 s29, 8\ns_cbranch_scc1 {name}_d")
    stamp(A, 1)
    for i in range(4): A("buffer_load_dwordx4 v7, s[48:51], s25 offen sc1 lds\ns_waitcnt vmcnt(0)")
    stamp(A, 2)
    A(f"s_branch {name}_j\n{name}_kv:")
    if half: A(f"s_bitcmp1_b32 s2, 4\ns_cbranch_scc1 {name}_j")
    A(f"v_lshlrev_b32 v9, 4, v2\ns_lshl_b32 s25, s24, 4\ns_add_u32 s25, s25, s23\ns_lshl_b32 s25, s25, 17\ns_mov_b32 m0, 65536\ns_mov_b32 s29, 0")
    if kdepth:
        A(f"{name}_kl:\nbuffer_load_dwordx4 v9, s[36:39], s25 offen nt lds\nbuffer_load_dwordx4 v9, s[40:43], s25 offen nt lds\ns_waitcnt vmcnt({kdepth})")
        A(f"s_add_u32 s25, s25, 1024\ns_add_u32 s29, s29, 1\ns_cmp_lt_u32 s29, 128\ns_cbranch_scc1 {name}_kl")
    A("s_waitcnt vmcnt(0)")
    A(f"{name}_j:\ns_barrier")
    stamp(A, 3)
    A("s_waitcnt lgkmcnt(0)\ns_sub_u32 s68, s64, s62\ns_add_u32 s68, s68, s60")
    flush_stamps(A, 5, name)
    A(f"{name}_end:\ns_endpgm")
    return A.text()

if __name__ == "__main__":
    for n, c in {"r_wq8_2_16": ("wq8", 2, 16, "lds"), "r_wq8_4_16": ("wq8", 4, 16, "lds"), "r_wq2_2_16": ("wq2", 2, 16, "lds"), "r_wq2_4_16": ("wq2", 4, 16, "lds"),
                 "r_wo_2_16": ("wo", 2, 16, "lds"), "r_wo_2_8": ("wo", 2, 8, "lds"), "r_wo_2_4": ("wo", 2, 4, "lds"), "r_wo_2_16v": ("wo", 2, 16, "v"), "r_wo_2_16nt": ("wo", 2, 16, "lds", 4, "nt"),
                 "r_wo_2_16sc1": ("wo", 2, 16, "lds", 4, "sc1")}.items():
        open(n + ".s", "w").write(build([("mx_kernel", 256, 256, 163840)], [("mx_kernel", rate("mx", *c), 128, 0)]))
    open("r_wo_2_8w8.s", "w").write(build([("mx_kernel", 256, 512, 163840)], [("mx_kernel", rate("mx", "wo", 2, 8, "lds", 8), 128, 0)]))
    for n, c in {"l_0": (0, 0), "l_8": (8, 0), "l_16": (16, 0), "l_32": (32, 0), "l_60h": (60, 1)}.items():
        open(n + ".s", "w").write(build([("mx_kernel", 256, 128, 163840)], [("mx_kernel", lat("mx", *c), 128, 0)]))
```

```python
import sys
from asmlib import *
from gen_naive import srd
STAMP = 64 << 20

def stamp(A, i): A(f"s_memrealtime s[{60+2*i}:{61+2*i}]")
def flush_stamps(A, n, name):
    A("s_waitcnt lgkmcnt(0)")
    for i in range(n): A(f"v_mov_b32 v{4+i}, s{60+2*i}")
    A("s_lshl_b32 s26, s2, 6\nv_mov_b32 v3, s26\nv_cmp_eq_u32 vcc, 0, v0\ns_and_saveexec_b64 s[30:31], vcc")
    A(f"s_cbranch_execz {name}_end")
    for i in range(n): A(f"buffer_store_dword v{4+i}, v3, s[16:19], 0 offen offset:{4*i}")

def tail(name, stflag, ldflag, units, nway, sync, pace):
    A = Asm()
    A(f"s_cmp_ge_u32 s2, 256\ns_cbranch_scc1 {name}_end")
    stamp(A, 0)
    A("s_load_dwordx4 s[4:7], s[0:1], 40\ns_load_dwordx2 s[20:21], s[0:1], 56")
    A("v_lshrrev_b32 v1, 6, v0\ns_nop 0\nv_readfirstlane_b32 s22, v1\nv_and_b32 v2, 63, v0\nv_lshlrev_b32 v2, 4, v2")
    A("s_waitcnt lgkmcnt(0)")
    srd(A, 8, 20, 64 << 20); srd(A, 12, 6, 256); srd(A, 16, 20, 65536, STAMP); srd(A, 36, 4, 1280*1152)
    lg = nway.bit_length() - 1
    A(f"s_lshr_b32 s23, s2, {lg}\ns_and_b32 s24, s2, {nway-1}")
    for i in range(8): A(f"v_mov_b32 v{16+i}, 1.0")
    FL = 48 << 20
    if sync == "flag":
        A(f"s_lshl_b32 s27, s23, 8\ns_lshl_b32 s28, s24, 2\ns_add_u32 s28, s28, s27\ns_add_u32 s28, s28, {FL}\ns_add_u32 s27, s27, {FL}")
        A("v_mov_b32 v30, 0\nv_mov_b32 v31, 0\nbuffer_store_dword v30, v31, s[8:11], s28 offen sc1\ns_waitcnt vmcnt(0)")
    A(f"s_memrealtime s[50:51]\ns_waitcnt lgkmcnt(0)\ns_and_b32 s52, s60, 0xfffff800\ns_add_u32 s52, s52, 0x1000")
    A(f"{name}_al:\ns_memrealtime s[50:51]\ns_waitcnt lgkmcnt(0)\ns_sub_u32 s53, s52, s50\ns_cmp_gt_i32 s53, 0\ns_cbranch_scc1 {name}_al")
    stamp(A, 0)
    A(f"s_mul_i32 s25, s2, {units*1024}\ns_lshl_b32 s26, s22, 10\ns_add_u32 s25, s25, s26")
    nst = (units + 3) // 4
    for i in range(nst):
        if i * 4 + 3 >= units:
            A(f"s_cmp_ge_u32 s22, {units - i*4}\ns_cbranch_scc1 {name}_sk{i}")
        for p in range(pace): A("v_mfma_f32_16x16x32_bf16 v[40:43], v[16:19], v[20:23], v[40:43]")
        A(f"buffer_store_dwordx4 v[16:19], v2, s[8:11], s25 offen {stflag}\ns_add_u32 s25, s25, 4096")
        A(f"{name}_sk{i}:")
    stamp(A, 1)
    A("s_waitcnt vmcnt(0)")
    if stflag == "": A("s_barrier\nbuffer_wbl2 sc1\ns_waitcnt vmcnt(0)")
    A("s_barrier")
    stamp(A, 2)
    if sync != "none":
        A(f"s_cmp_lg_u32 s22, 0\ns_cbranch_scc1 {name}_w")
        A("s_mov_b32 s54, 0")
        if sync == "atomic":
            A(f"s_lshl_b32 s27, s23, 2\nv_mov_b32 v30, 1\nv_mov_b32 v31, 0\ns_mov_b64 s[56:57], exec\ns_mov_b64 exec, 1")
            A("buffer_atomic_add v30, v31, s[12:15], s27 offen sc1")
            A(f"{name}_poll:\nbuffer_load_dword v32, v31, s[12:15], s27 offen sc1\ns_waitcnt vmcnt(0)\nv_readfirstlane_b32 s55, v32\ns_add_u32 s54, s54, 1")
            A(f"s_cmp_ge_u32 s54, 20000\ns_cbranch_scc1 {name}_pd\ns_cmp_lt_u32 s55, {nway}\ns_cbranch_scc1 {name}_poll")
            A(f"{name}_pd:\ns_mov_b64 exec, s[56:57]")
        else:
            A(f"v_mov_b32 v30, 1\nv_mov_b32 v31, 0\nv_and_b32 v33, {nway-1}, v0\nv_lshlrev_b32 v33, 2, v33\ns_mov_b64 s[56:57], exec\ns_mov_b64 exec, 1")
            A("buffer_store_dword v30, v31, s[8:11], s28 offen sc1\ns_mov_b64 exec, s[56:57]")
            A(f"{name}_poll:\nbuffer_load_dword v32, v33, s[8:11], s27 offen sc1\ns_waitcnt vmcnt(0)\nv_cmp_ne_u32 vcc, 1, v32\ns_add_u32 s54, s54, 1")
            A(f"s_cmp_ge_u32 s54, 20000\ns_cbranch_scc1 {name}_w\ns_cmp_lg_u64 vcc, 0\ns_cbranch_scc1 {name}_poll")
        A(f"{name}_w:")
        if stflag == "": A("buffer_inv sc1\ns_waitcnt vmcnt(0)")
        A("s_barrier")
    stamp(A, 3)
    if sync != "none":
        reduce_body(A, name, units, nway, ldflag)
    stamp(A, 4)
    A("s_waitcnt vmcnt(0)")
    stamp(A, 5)
    flush_stamps(A, 6, name)
    A(f"{name}_end:\ns_endpgm")
    return A.text()

def reduce_body(A, name, units, nway, ldflag):
    pieces = units * 64 // nway
    rounds = (pieces + 255) // 256
    A(f"s_mul_i32 s25, s23, {units*1024*nway}\ns_mul_i32 s26, s24, {pieces*16}\ns_add_u32 s25, s25, s26\nv_lshlrev_b32 v3, 4, v0")
    for r in range(rounds):
        A(f"v_cmp_gt_u32 vcc, {pieces - r*256}, v0\ns_and_saveexec_b64 s[56:57], vcc\ns_cbranch_execz {name}_r{r}")
        A("s_mov_b32 s26, s25")
        for p in range(nway):
            A(f"buffer_load_dwordx4 v[{64+r*64+4*p}:{67+r*64+4*p}], v3, s[8:11], s26 offen {ldflag}\ns_add_u32 s26, s26, {units*1024}")
        A(f"{name}_r{r}:\ns_mov_b64 exec, s[56:57]\ns_add_u32 s25, s25, 4096")
    A("s_waitcnt vmcnt(0)")
    A(f"s_mul_i32 s25, s2, {pieces*16}")
    for r in range(rounds):
        for p in range(1, nway):
            for i in range(4): A(f"v_add_f32 v{64+r*64+i}, v{64+r*64+i}, v{64+r*64+4*p+i}")
        A(f"v_cmp_gt_u32 vcc, {pieces - r*256}, v0\ns_and_saveexec_b64 s[56:57], vcc\ns_cbranch_execz {name}_o{r}")
        A(f"buffer_store_dwordx4 v[{64+r*64}:{67+r*64}], v3, s[36:39], s25 offen")
        A(f"{name}_o{r}:\ns_mov_b64 exec, s[56:57]\ns_add_u32 s25, s25, 4096")

def red2(name, units, nway):
    A = Asm()
    A(f"s_cmp_ge_u32 s2, 256\ns_cbranch_scc1 {name}_end")
    stamp(A, 0)
    A("s_load_dwordx4 s[4:7], s[0:1], 40\ns_load_dwordx2 s[20:21], s[0:1], 56\ns_waitcnt lgkmcnt(0)")
    srd(A, 8, 20, 64 << 20); srd(A, 16, 20, 65536, STAMP + 24); srd(A, 36, 4, 1280*1152)
    lg = nway.bit_length() - 1
    A(f"s_lshr_b32 s23, s2, {lg}\ns_and_b32 s24, s2, {nway-1}")
    reduce_body(A, name, units, nway, "")
    stamp(A, 1)
    A("s_waitcnt vmcnt(0)")
    stamp(A, 2)
    flush_stamps(A, 3, name)
    A(f"{name}_end:\ns_endpgm")
    return A.text()

if __name__ == "__main__":
    out, stf, ldf, units, nway, sync, pace = sys.argv[1:8]
    stf = stf.replace("-", "").replace("+", " "); ldf = ldf.replace("-", "").replace("+", " ")
    l = [("tl_kernel", 256, 256, 163840)]
    k = [("tl_kernel", tail("tl", stf if sync != "none" or stf else "sc0", ldf, int(units), int(nway), sync, int(pace)), 256, 0)]
    if sync == "none":
        l.append(("rd_kernel", 256, 256, 0)); k.append(("rd_kernel", red2("rd", int(units), int(nway)), 256, 0))
    open(out, "w").write(build(l, k))
```

```python
import sys, json, io, contextlib
import gen2
from asmlib import *
names = []
for c in json.loads(sys.argv[1]):
    n = "v" + "".join(f"_{k}{v}" for k, v in c.items())
    try:
        with contextlib.redirect_stderr(io.StringIO()):
            txt = build([(KN + "_kernel", 256, 256, 163840)], [(KN + "_kernel", gen2.kernel(gen2.Cfg(**c), KN), 256, 256)])
    except AssertionError as e:
        print("skip", n, str(e)[:60]); continue
    if "kvf" in c: txt = txt.replace(" nt lds", " " + c["kvf"].replace("+", " ") + " lds")
    if "wf" in c:
        import re
        txt = re.sub(r"(offset:\d+) lds", lambda m: m.group(1) + " " + c["wf"].replace("+", " ") + " lds", txt)
    if "tf2" in c:
        import re
        txt = re.sub(r"(buffer_load_dword v255,.*)", lambda m: m.group(1) + " " + c["tf2"], txt)
    open(n + ".s", "w").write(txt); names.append(n)
open("list.txt", "w").write(" ".join(x + ".s" for x in names))
```
